```python
import torch

def _softmax(x, axis=-1):
    return torch.softmax(x, dim=axis)

def _gelu(x):
    return torch.nn.functional.gelu(x, approximate='tanh')

def _silu(x):
    return torch.nn.functional.silu(x)

def _sigmoid(x):
    return torch.sigmoid(x)

def _layernorm(x, axis=-1, eps=1e-05):
    m = x.mean(dim=axis, keepdim=True)
    v = x.var(dim=axis, keepdim=True, unbiased=False)
    return (x - m) / torch.sqrt(v + eps)

def _scatter_add(tgt, idx, src, axis=0):
    return tgt.clone().index_add_(axis, idx, src)

def _segment_sum(src, seg, n):
    out = torch.zeros((n,) + src.shape[1:], dtype=src.dtype)
    return out.index_add_(0, seg, src)

def _pad(x, pw):
    flat = tuple((v for pair in reversed(pw) for v in pair))
    return torch.nn.functional.pad(x, flat)
kernel_name = 'adaLN_cond__compressed_kv_cla__dense_activation_relu__decode'

def setup_inputs():

    _w = lambda a: (lambda t: t.to(torch.bfloat16) if t.is_floating_point() else t)(torch.as_tensor(a))

    def _A_setup():
        B, H, Sq, Sk, D, M = (2, 32, 1, 8192, 128, 512)
        Dc = 4 * D
        return {'x': _w((lambda *s: torch.randn(*s, dtype=torch.bfloat16) * 0.05)(B, Sq, M)), 'c_kv': _w((lambda *s: torch.randn(*s, dtype=torch.bfloat16) * 1.6)(B, Sk, Dc)), 'w_q': _w((lambda *s: torch.randn(*s, dtype=torch.bfloat16) * 1.6)(M, H, D) * M ** (-0.5)), 'w_uk': _w((lambda *s: torch.randn(*s, dtype=torch.bfloat16) * 1.6)(Dc, H, D) * Dc ** (-0.5)), 'w_uv': _w((lambda *s: torch.randn(*s, dtype=torch.bfloat16) * 1.6)(Dc, H, D) * Dc ** (-0.5)), 'w_o': _w((lambda *s: torch.randn(*s, dtype=torch.bfloat16) * 1.6)(H, D, M) * (H * D) ** (-0.5))}
    _A_in = _A_setup()

    def _B_setup():
        B, S, D, Dff = (2, 1, 512, 1792)
        return {'x': _w((lambda *s: torch.randn(*s, dtype=torch.bfloat16) * 0.05)(B, S, D)), 'w1': _w((lambda *s: torch.randn(*s, dtype=torch.bfloat16) * 0.05)(D, Dff)), 'w2': _w((lambda *s: torch.randn(*s, dtype=torch.bfloat16) * 0.05)(Dff, D))}
    _B_in = _B_setup()
    return {'A_x': _A_in['x'], 'A_c_kv': _A_in['c_kv'], 'A_w_q': _A_in['w_q'], 'A_w_uk': _A_in['w_uk'], 'A_w_uv': _A_in['w_uv'], 'A_w_o': _A_in['w_o'], 'B_x': _B_in['x'], 'B_w1': _B_in['w1'], 'B_w2': _B_in['w2'], 'c': _w((lambda *s: torch.randn(*s, dtype=torch.bfloat16) * 0.2)(2, 512) * 8.0), 'w_mod': _w((lambda *s: torch.randn(*s, dtype=torch.bfloat16) * 0.2)(512, 6 * 512) * 512 ** (-0.5) * 8.0)}

def reference(A_x, A_c_kv, A_w_q, A_w_uk, A_w_uv, A_w_o, B_x, B_w1, B_w2, c, w_mod):

    def _A_ref(x, c_kv, w_q, w_uk, w_uv, w_o):
        B, Sq, M = (x.shape[0], x.shape[1], x.shape[2])
        Sk = c_kv.shape[1]
        H, D = (w_q.shape[1], w_q.shape[2])
        q = torch.einsum('bqm,mhd->bhqd', x, w_q)
        k = torch.einsum('bkc,chd->bhkd', c_kv, w_uk)
        v = torch.einsum('bkc,chd->bhkd', c_kv, w_uv)
        scores = torch.einsum('bhqd,bhkd->bhqk', q, k) * D ** (-0.5)
        off = Sk - Sq
        qi = torch.arange(Sq)[:, None]
        kj = torch.arange(Sk)[None, :]
        cmask = kj <= qi + off
        scores = torch.where(cmask[None, None], scores, -1000000000.0)
        p = _softmax(scores, axis=-1)
        ctx = torch.einsum('bhqk,bhkd->bhqd', p, v)
        return torch.einsum('bhqd,hdm->bqm', ctx, w_o)

    def _B_ref(x, w1, w2):
        h = torch.einsum('bsd,df->bsf', x, w1)
        zero = torch.zeros_like(h)
        h = torch.maximum(h, zero)
        return torch.einsum('bsf,fd->bsd', h, w2)
    x = A_x
    mod = (_silu(c) @ w_mod).reshape(c.shape[0], 6, 1, -1)
    sa, ca, ga, sb, cb, gb = (mod[:, 0].clone(), mod[:, 1].clone(), mod[:, 2].clone(), mod[:, 3].clone(), mod[:, 4].clone(), mod[:, 5].clone())
    h = _layernorm(x, axis=-1) * (1 + ca) + sa
    x = x + ga * _A_ref(h, A_c_kv, A_w_q, A_w_uk, A_w_uv, A_w_o)
    h = _layernorm(x, axis=-1) * (1 + cb) + sb
    x = x + gb * _B_ref(h, B_w1, B_w2)
    return x
```

```python
KNAME = "adaLN_cond__compressed_kv_cla__dense_activation_relu__decode"

HEADER_COMMENT = """; Kernarg layout for this problem (112 bytes, ptrs only, base s[0:1]):
"""


class Asm:
    def __init__(self):
        self.lines = []
        self._lbl = 0

    def __call__(self, s=""):
        for ln in s.split("\n"):
            ln = ln.rstrip()
            if ln.strip() == "":
                continue
            if ln.strip().endswith(":") and not ln.strip().startswith(";"):
                self.lines.append(ln.strip())
            else:
                self.lines.append("    " + ln.strip())

    def label(self, base="L"):
        self._lbl += 1
        return f"{base}_{self._lbl}"

    def text(self):
        return "\n".join(self.lines) + "\n"


def wrap(body, grid, block, lds, vgpr=512, sgpr=102, accum=256):
    k = KNAME + "_kernel"
    s = HEADER_COMMENT
    s += f"; @launch grid=({grid},1,1) block=({block},1,1) lds={lds}\n"
    s += '.amdgcn_target "amdgcn-amd-amdhsa--gfx950"\n.text\n'
    s += f".globl {k}\n.p2align 8\n.type {k},@function\n{k}:\n"
    s += body
    s += "    s_endpgm\n"
    s += '.section .rodata,"a"\n.p2align 6\n'
    s += f".amdhsa_kernel {k}\n"
    s += f"  .amdhsa_next_free_vgpr {vgpr}\n  .amdhsa_next_free_sgpr {sgpr}\n  .amdhsa_accum_offset {accum}\n"
    s += "  .amdhsa_group_segment_fixed_size 0\n  .amdhsa_kernarg_size 112\n  .amdhsa_user_sgpr_count 2\n"
    s += "  .amdhsa_user_sgpr_kernarg_segment_ptr 1\n  .amdhsa_system_sgpr_workgroup_id_x 1\n.end_amdhsa_kernel\n"
    return s
```

```python
import re

TRANS = ("v_exp_f32", "v_log_f32", "v_rcp_f32", "v_rsq_f32", "v_sqrt_f32", "v_sin_f32", "v_cos_f32")
REG = re.compile(r"^(v|a|s)(\d+)$|^(v|a|s)\[(\d+):(\d+)\]$")


def regs(op):
    op = op.strip()
    if op.startswith("-"):
        op = op[1:]
    op = op.strip("|")
    if op in ("vcc", "vcc_lo", "vcc_hi"):
        return {("s", "vcc")}
    if op in ("exec", "exec_lo", "exec_hi"):
        return {("s", "exec")}
    if op == "m0":
        return {("s", "m0")}
    m = REG.match(op)
    if not m:
        return set()
    if m.group(1):
        return {(m.group(1), int(m.group(2)))}
    return {(m.group(3), i) for i in range(int(m.group(4)), int(m.group(5)) + 1)}


class I:
    def __init__(self, text):
        self.text = text
        t = text.split(";")[0].strip()
        self.mn = t.split()[0] if t else ""
        rest = t[len(self.mn):].strip()
        rest = re.sub(r"quad_perm:\[[^\]]*\]", "quad_perm", rest)
        rest = re.sub(r"(op_sel|op_sel_hi|neg_lo|neg_hi):\[[^\]]*\]", "", rest)
        parts = [p.strip() for p in rest.split(",")] if rest else []
        mods = ""
        if parts:
            w = parts[-1].split()
            parts[-1] = w[0] if w else ""
            mods = " ".join(w[1:])
        self.ops, self.mods = parts, mods
        mn = self.mn
        self.mfma = mn.startswith("v_mfma")
        self.valu = mn.startswith("v_") and not self.mfma
        self.vmem = mn.startswith(("buffer_", "global_"))
        self.ds = mn.startswith("ds_")
        self.salu = mn.startswith("s_")
        self.dpp = self.valu and ("_dpp" in mn or "quad_perm" in mods or "row_" in mods)
        self.trans = mn.startswith(TRANS)
        self.dot = mn.startswith("v_dot")
        self.perm = mn.startswith("v_permlane")
        self.w, self.r = set(), set()
        R = [regs(p) for p in parts]
        U = lambda l: set().union(*l) if l else set()
        self.states = 1
        self.wide_store = set()
        if mn == "s_nop":
            self.states = int(parts[0]) + 1
        elif self.mfma:
            self.w, self.A, self.B, self.C = R[0], R[1], R[2], R[3]
            self.r = R[1] | R[2] | R[3]
            self.passes = 8 if "32x32" in mn else 4
        elif self.valu:
            self.w = set(R[0])
            self.r = U(R[1:])
            if self.perm:
                self.w = R[0] | R[1]
                self.r = R[0] | R[1]
            if self.dpp or mn.startswith(("v_fmac", "v_dot2c", "v_writelane")):
                self.r |= R[0]
            if "_co_" in mn:
                self.w |= R[1]
        elif self.vmem:
            lds = "lds" in mods.split()
            self.ldsdma = lds
            if "load" in mn and not lds:
                self.w, self.r = R[0], U(R[1:])
            else:
                self.r = U(R)
                if mn.endswith(("x3", "x4")) and "store" in mn:
                    self.wide_store = R[0] if mn.startswith("buffer") else R[1]
        elif self.ds:
            if "read" in mn or "permute" in mn or "swizzle" in mn:
                self.w, self.r = R[0], U(R[1:])
            else:
                self.r = U(R)
        elif self.salu:
            if mn.startswith(("s_cmp", "s_cbranch", "s_branch", "s_waitcnt", "s_barrier", "s_setprio", "s_endpgm", "s_bitcmp", "s_setpc")):
                self.r = U(R)
            else:
                self.w = set(R[0]) if R else set()
                self.r = U(R[1:])
                if "saveexec" in mn:
                    self.w |= {("s", "exec")}


def need(p, c):
    n = 0
    vw = {x for x in p.w if x[0] != "s"}
    sw = {x for x in p.w if x[0] == "s"}
    if p.valu:
        if c.vmem and sw & c.r:
            n = max(n, 5)
        if c.valu and sw & c.r:
            n = max(n, 4 if c.mn.startswith(("v_readlane", "v_writelane")) else 2)
        if c.dpp and vw & c.r:
            n = max(n, 2)
        if c.perm and vw & c.r:
            n = max(n, 2)
        if c.mn.startswith(("v_readlane", "v_readfirstlane")) and vw & c.r:
            n = max(n, 1)
        if p.trans and (c.valu or c.mfma) and vw & c.r:
            n = max(n, 1)
        if c.mfma and vw & c.r:
            n = max(n, 2)
        if p.dot and vw & (c.r | c.w):
            same = c.mn == p.mn and not (vw & (regs(c.ops[1]) | regs(c.ops[2])))
            if not same:
                n = max(n, 3)
    if p.salu and ("s", "m0") in p.w and c.vmem and c.ldsdma:
        n = max(n, 1)
    if p.wide_store and p.wide_store & c.w:
        n = max(n, 2)
    if p.mfma:
        big = 12 if p.passes == 8 else 8
        if c.mfma:
            if p.w & (c.A | c.B):
                n = max(n, big)
            if p.w & c.C and not (p.w == c.C and p.passes == c.passes):
                n = max(n, big - 2)
            if p.w & c.w and not (p.w & c.C):
                n = max(n, big)
        elif (c.valu or c.vmem or c.ds) and p.w & (c.r | c.w):
            n = max(n, big)
        if c.valu and p.C & c.w:
            n = max(n, 7 if p.passes == 8 else 3)
    return n


def pad(text):
    out, hist = [], []
    for ln in text.split("\n"):
        t = ln.split(";")[0].strip()
        if not t or t.endswith(":") or t.startswith("."):
            out.append(ln)
            continue
        c = I(ln)
        dist, add = 0, 0
        for p in reversed(hist):
            add = max(add, need(p, c) - dist)
            dist += p.states
            if dist >= 12:
                break
        while add > 0:
            k = min(add, 16)
            nop = f"    s_nop {k-1}"
            out.append(nop)
            hist.append(I(nop))
            add -= k
        out.append(ln)
        hist.append(c)
        if c.mn in ("s_branch", "s_endpgm", "s_setpc_b64"):
            hist = []
        hist = hist[-16:]
    return "\n".join(out)
```

```python
import sys
from asmlib import Asm, wrap, KNAME
from hazard import pad

FLAG, H1, HQ = 0x1000, 0x10000, 0x20000
SB = 0x80000
H2, H3B, H4, M2O, ML, H5 = SB, SB + 0x10000, SB + 0x20000, SB + 0x24000, SB + 0x28000, SB + 0x30000
H3 = 0x100000
STAMP = 200 << 20
TAGC = 0x9E3779B9
NPOLL = 20000

Q = 131072
SIL = Q + 8192
PB = Q
MX = Q + 8192
XU = 32768
WQ, WK, W2R = 0, 32768, 65536
X1, X2 = 131072, 135168
XO = 139264
YB = 139264
ST = 149504
AB = 151552
SL = 139264
XF = 152064

WS = "s[36:39]"
R1, R2, R3, R4 = "s[40:43]", "s[44:47]", "s[48:51]", "s[52:55]"
sW, sXCD, sID, sTAG, sCNT = "s3", "s56", "s58", "s59", "s57"
LOG2E = 0x3FB8AA3B
QSCALE = 0x3E0293EE


def vr(b, n=4):
    return f"v[{b}:{b+n-1}]"


def ar(b, n=4):
    return f"a[{b}:{b+n-1}]"


class G:
    def __init__(self, diag=False, **opt):
        self.a = Asm()
        self.diag = diag
        self.opt = opt

    def stamp(self, i):
        if self.diag:
            self.a(f"s_memrealtime s[{64+2*i}:{65+2*i}]")

    def srd(self, r, ptr, size):
        b = int(r[2:4])
        self.a(f"s_mov_b64 s[{b}:{b+1}], s[{ptr}:{ptr+1}]\ns_mov_b32 s{b+2}, {size}")

    def execmask(self, m):
        lo, hi = m & 0xFFFFFFFF, m >> 32
        self.a(f"s_mov_b32 exec_lo, 0x{lo:x}\ns_mov_b32 exec_hi, 0x{hi:x}")

    def premask(self, s, m):
        lo, hi = m & 0xFFFFFFFF, m >> 32
        self.a(f"s_mov_b32 s{s}, 0x{lo:x}\ns_mov_b32 s{s+1}, 0x{hi:x}")

    def poll(self, loads, check):
        a = self.a
        lp, ok = a.label("POLL"), a.label("POK")
        a(f"s_movk_i32 {sCNT}, {NPOLL}\n{lp}:")
        a(loads)
        a("s_waitcnt vmcnt(0)")
        a(check)
        a(f"""
        s_cbranch_vccz {ok}
        s_sub_u32 {sCNT}, {sCNT}, 1
        s_cbranch_scc0 {lp}
        {ok}:
        """)

    @staticmethod
    def sent(regs, t):
        regs = list(regs)
        if len(regs) == 1:
            return f"v_cmp_eq_u32 vcc, -1, v{regs[0]}"
        s = []
        if len(regs) % 2 == 0:
            s.append(f"v_max_u32 v{t}, v{regs[0]}, v{regs[1]}")
            regs = regs[2:]
        else:
            s.append(f"v_max3_u32 v{t}, v{regs[0]}, v{regs[1]}, v{regs[2]}")
            regs = regs[3:]
        while regs:
            s.append(f"v_max3_u32 v{t}, v{t}, v{regs[0]}, v{regs[1]}")
            regs = regs[2:]
        s.append(f"v_cmp_eq_u32 vcc, -1, v{t}")
        return "\n".join(s)

    def dpp(self, op, regs, ctrl):
        for r in regs:
            self.a(f"{op}_dpp v{r}, v{r}, v{r} {ctrl} row_mask:0xf bank_mask:0xf")

    def swapred(self, op, regs, tmps, which):
        a = self.a
        for r, t in zip(regs, tmps):
            a(f"v_mov_b32 v{t}, v{r}")
        for r, t in zip(regs, tmps):
            a(f"v_permlane{which}_swap_b32 v{r}, v{t}")
        for r, t in zip(regs, tmps):
            a(f"{op} v{r}, v{r}, v{t}")

    def silu(self, pairs, t):
        a = self.a
        n = len(pairs)
        x = [t + i for i in range(2 * n)]
        e = [t + 2 * n + i for i in range(2 * n)]
        for i, p in enumerate(pairs):
            a(f"v_lshlrev_b32 v{x[2*i]}, 16, v{p}\nv_and_b32 v{x[2*i+1]}, 0xffff0000, v{p}")
        for i in range(2 * n):
            a(f"v_mul_f32 v{e[i]}, 0x{LOG2E | 0x80000000:x}, v{x[i]}")
        for i in range(2 * n):
            a(f"v_exp_f32 v{e[i]}, v{e[i]}")
        for i in range(2 * n):
            a(f"v_add_f32 v{e[i]}, 1.0, v{e[i]}")
        for i in range(2 * n):
            a(f"v_rcp_f32 v{e[i]}, v{e[i]}")
        for i in range(2 * n):
            a(f"v_mul_f32 v{x[i]}, v{x[i]}, v{e[i]}")
        for i, p in enumerate(pairs):
            a(f"v_cvt_pk_bf16_f32 v{p}, v{x[2*i]}, v{x[2*i+1]}")

    def entry(self):
        a = self.a
        if self.diag:
            for i in range(1, 16):
                a(f"s_mov_b64 s[{64+2*i}:{65+2*i}], 0")
        self.stamp(0)
        a(f"""
        s_cmp_ge_u32 s2, 256
        s_cbranch_scc1 EXIT
        s_load_dwordx16 s[4:19], s[0:1], 0
        s_load_dwordx8 s[20:27], s[0:1], 64
        s_load_dwordx4 s[28:31], s[0:1], 96
        v_lshrrev_b32 v1, 6, v0
        v_and_b32 v0, 63, v0
        v_readfirstlane_b32 {sW}, v1
        s_and_b32 {sXCD}, s2, 7
        s_lshr_b32 s57, s2, 4
        s_lshl4_add_u32 {sID}, {sXCD}, s57
        v_lshlrev_b32 v1, 4, v0
        v_lshrrev_b32 v2, 4, v0
        v_and_b32 v3, 15, v0
        s_mov_b32 s39, 0x20000
        s_mov_b32 s43, 0x20000
        s_mov_b32 s47, 0x20000
        s_mov_b32 s51, 0x20000
        s_mov_b32 s55, 0x20000
        s_bitcmp1_b32 s2, 3
        s_cbranch_scc1 WROLE
        """)

    def h3clear(self):
        a = self.a
        a("s_mov_b32 s34, s62")
        for i in range(8):
            a(f"buffer_store_dwordx4 v[64:67], v68, {WS}, s34 offen sc1")
            if i < 7:
                a(f"s_add_u32 s34, s34, {131072 * (13 if i == 3 else 1)}")

    def arole(self):
        a = self.a
        a(f"""
        s_and_b32 s60, {sID}, 15
        s_lshr_b32 s61, {sID}, 4
        v_lshlrev_b32 v4, 4, v3
        v_lshl_or_b32 v68, v2, 19, v4
        v_mov_b32 v64, -1
        v_mov_b32 v65, -1
        v_mov_b32 v66, -1
        v_mov_b32 v67, -1
        s_lshl_b32 s62, {sW}, 15
        s_lshl_b32 s63, {sID}, 8
        s_add_u32 s62, s62, s63
        s_add_u32 s62, s62, {H3}
        s_cmp_ge_u32 {sW}, 2
        s_cbranch_scc1 A_W23
        v_lshrrev_b32 v5, 3, v0
        v_and_b32 v6, 7, v0
        v_lshlrev_b32 v7, 1, v2
        v_xor_b32 v7, v6, v7
        v_mul_u32_u24 v8, 6144, v5
        v_lshrrev_b32 v9, 2, v7
        v_lshl_add_u32 v8, v9, 10, v8
        v_and_b32 v9, 3, v7
        v_lshl_add_u32 v8, v9, 4, v8
        v_and_b32 v10, 1, v5
        v_lshlrev_b32 v10, 10, v10
        v_lshl_add_u32 v11, v2, 3, v6
        v_lshl_add_u32 v11, v11, 5, v10
        v_lshl_add_u32 v12, v2, 3, v10
        s_lshl1_add_u32 s32, s61, {sW}
        s_mul_i32 s32, s32, {32 * 6144}
        s_lshl_b32 s33, s60, 6
        s_add_u32 s32, s32, s33
        s_lshl_b32 s34, {sW}, 5
        s_add_u32 s33, s33, s34
        s_lshl_b32 s34, {sW}, 12
        s_add_u32 m0, s34, {Q}
        s_waitcnt lgkmcnt(0)
        """)
        self.srd(R2, 4, 2048)
        self.srd(R1, 24, 512 * 6144)
        a(f"""
        buffer_load_dwordx4 v[16:19], v11, {R2}, 0 offen
        buffer_load_dwordx4 v[20:23], v11, {R2}, 0 offen offset:16
        buffer_load_dwordx2 v[24:25], v12, {R2}, s33 offen
        """)
        for j in range(4):
            a(f"buffer_load_dwordx4 v8, {R1}, s32 offen offset:{1024*j} nt lds")
            if j < 3:
                a(f"s_add_u32 s32, s32, {8 * 6144 - 1024}")
        a(f"s_load_dword {sTAG}, s[30:31], 0 glc")
        self.srd(WS, 30, 0x10000000)
        self.h3clear()
        a(f"""
        v_lshrrev_b32 v13, 2, v0
        v_lshlrev_b32 v13, 7, v13
        v_and_b32 v14, 3, v5
        v_xor_b32 v14, {sW}, v14
        v_lshl_add_u32 v13, v14, 5, v13
        v_and_b32 v14, 3, v0
        v_lshl_add_u32 v13, v14, 3, v13
        v_add_u32 v13, {Q}, v13
        v_xor_b32 v14, 64, v13
        v_lshrrev_b32 v15, 3, v10
        v_lshl_add_u32 v15, v2, 4, v15
        v_add_u32 v15, {SIL}, v15
        s_cmp_eq_u32 s61, 0
        s_cselect_b32 s32, 1.0, 0
        v_mov_b32 v56, s32
        v_mov_b32 v57, s32
        v_mov_b32 v58, s32
        v_mov_b32 v59, s32
        v_lshlrev_b32 v5, 4, v5
        s_lshl_b32 s32, s60, 11
        s_lshl_b32 s33, s61, 8
        s_add_u32 s32, s32, s33
        s_lshl_b32 s33, {sW}, 7
        s_add_u32 s32, s32, s33
        s_add_u32 s32, s32, {H1}
        s_mov_b32 s33, 0x3f803f80
        v_mov_b32 v26, 0
        v_mov_b32 v27, 0
        """)
        self.premask(96, 0x0101010101010101)
        a("s_waitcnt vmcnt(13)")
        for i in range(8):
            a(f"v_dot2c_f32_bf16 v26, s33, v{16+i}\nv_dot2c_f32_bf16 v27, v{16+i}, v{16+i}")
        self.dpp("v_add_f32", [26, 27], "quad_perm:[1,0,3,2]")
        self.dpp("v_add_f32", [26, 27], "quad_perm:[2,3,0,1]")
        self.dpp("v_add_f32", [26, 27], "row_half_mirror")
        self.swapred("v_add_f32", [26, 27], [16, 17], 16)
        self.swapred("v_add_f32", [26, 27], [16, 17], 32)
        a(f"""
        v_mul_f32 v26, 0x3b000000, v26
        v_mov_b32 v16, 0x3727c5ac
        v_fmac_f32 v16, 0x3b000000, v27
        v_fma_f32 v16, -v26, v26, v16
        v_rsq_f32 v16, v16
        s_waitcnt vmcnt(12)
        v_lshlrev_b32 v20, 16, v24
        v_and_b32 v21, 0xffff0000, v24
        v_lshlrev_b32 v22, 16, v25
        v_and_b32 v23, 0xffff0000, v25
        """)
        for i in range(4):
            a(f"v_sub_f32 v{20+i}, v{20+i}, v26")
        for i in range(4):
            a(f"v_mul_f32 v{20+i}, v{20+i}, v16")
        a("s_waitcnt vmcnt(8) lgkmcnt(0)")
        self.stamp(1)
        a(f"""
        s_barrier
        ds_read_b128 v[44:47], v15
        """)
        for s in range(2):
            for blk in range(2):
                for u in range(2):
                    a(f"ds_read_b64_tr_b16 {vr(28 + (s*2+blk)*4 + 2*u, 2)}, v{13+blk} offset:{s*4096 + u*2048}")
            if s == 0:
                a("ds_read_b128 v[48:51], v15 offset:64")
        a(f"""
        s_add_u32 {sTAG}, {sTAG}, 0x{TAGC:x}
        v_mov_b32 v62, {sTAG}
        v_mov_b32 v63, {sTAG}
        s_waitcnt lgkmcnt(7)
        v_mfma_f32_16x16x32_bf16 v[52:55], v[28:31], v[44:47], 0
        s_waitcnt lgkmcnt(5)
        v_mfma_f32_16x16x32_bf16 v[56:59], v[32:35], v[44:47], v[56:59]
        s_waitcnt lgkmcnt(2)
        v_mfma_f32_16x16x32_bf16 v[52:55], v[36:39], v[48:51], v[52:55]
        s_waitcnt lgkmcnt(0)
        v_mfma_f32_16x16x32_bf16 v[56:59], v[40:43], v[48:51], v[56:59]
        s_mov_b64 exec, s[96:97]
        v_pk_fma_f32 v[52:53], v[20:21], v[56:57], v[52:53]
        v_pk_fma_f32 v[54:55], v[22:23], v[58:59], v[54:55]
        v_cvt_pk_bf16_f32 v60, v52, v53
        v_cvt_pk_bf16_f32 v61, v54, v55
        buffer_store_dwordx4 v[60:63], v5, {WS}, s32 offen sc1
        s_mov_b64 exec, -1
        """)
        self.stamp(2)
        a(f"""
        s_branch A_STREAM
        A_W23:
        s_cmp_eq_u32 {sW}, 3
        s_cbranch_scc1 A_W3
        v_lshrrev_b32 v5, 5, v0
        v_and_b32 v6, 31, v0
        v_lshlrev_b32 v7, 2, v6
        v_lshl_add_u32 v7, v5, 10, v7
        s_lshl_b32 s32, s61, 7
        s_waitcnt lgkmcnt(0)
        """)
        self.srd(R3, 22, 2048)
        a(f"""
        buffer_load_dword v16, v7, {R3}, s32 offen
        s_load_dword {sTAG}, s[30:31], 0 glc
        """)
        self.srd(WS, 30, 0x10000000)
        self.h3clear()
        a(f"""
        v_lshlrev_b32 v8, 6, v2
        v_bfe_u32 v9, v0, 1, 2
        v_lshl_add_u32 v8, v9, 4, v8
        v_and_b32 v9, 8, v0
        v_add_u32 v8, v8, v9
        v_and_b32 v9, 1, v0
        v_lshl_add_u32 v8, v9, 2, v8
        v_add_u32 v8, {SIL}, v8
        s_waitcnt vmcnt(8)
        """)
        self.silu([16], 20)
        a(f"""
        ds_write_b32 v8, v16
        s_branch A_W23B
        A_W3:
        s_lshl_b32 s32, {sID}, 11
        s_add_u32 s32, s32, {SB}
        s_waitcnt lgkmcnt(0)
        """)
        self.srd(WS, 30, 0x10000000)
        a(f"""
        buffer_store_dwordx4 v[64:67], v1, {WS}, s32 offen sc1
        buffer_store_dwordx4 v[64:67], v1, {WS}, s32 offen offset:1024 sc1
        s_load_dword {sTAG}, s[30:31], 0 glc
        """)
        self.h3clear()
        a(f"""
        s_waitcnt vmcnt(8)
        A_W23B:
        s_waitcnt lgkmcnt(0)
        """)
        self.stamp(1)
        a(f"""
        s_barrier
        s_add_u32 {sTAG}, {sTAG}, 0x{TAGC:x}
        A_STREAM:
        """)
        self.srd(R4, 6, 1 << 24)
        a(f"""
        s_lshl_b32 s32, {sID}, 17
        s_lshl_b32 s33, {sW}, 15
        s_add_u32 s32, s32, s33
        """)
        fk = lambda k: ((k & 7) << 1) | ((k >> 3) & 1)
        for k in range(32):
            if k % 4 == 0:
                a(f"s_add_u32 m0, s33, {k*1024}")
            if k == 16:
                a("s_add_u32 s32, s32, 16384")
            if k < 16:
                a(f"v_xor_b32 v{70+k}, {fk(k)*16 + (k & ~3)*1024}, v1")
            a(f"buffer_load_dwordx4 v{70+(k&15)}, {R4}, s32 offen offset:{(k&3)*1024} nt lds")
        self.stamp(3)
        self.srd(R1, 12, 1 << 22)
        a(f"""
        v_and_b32 v4, 31, v0
        v_lshrrev_b32 v5, 5, v0
        v_and_b32 v6, 7, v0
        v_bfe_u32 v7, v0, 3, 1
        v_lshl_or_b32 v6, v6, 1, v7
        v_xor_b32 v6, v6, v5
        v_lshlrev_b32 v6, 4, v6
        v_lshl_add_u32 v6, v4, 10, v6
        v_add_u32 v69, s33, v6
        v_xor_b32 v6, v3, v5
        v_lshlrev_b32 v6, 4, v6
        v_lshl_add_u32 v6, v4, 8, v6
        v_add_u32 v70, {Q}, v6
        """)
        for i in range(1, 8):
            a(f"v_xor_b32 v{70+i}, {32*i}, v70")
        a(f"""
        v_bfe_u32 v6, v0, 2, 3
        v_lshl_add_u32 v7, v5, 4, v6
        v_lshlrev_b32 v7, 10, v7
        v_lshl_add_u32 v7, v6, 5, v7
        v_and_b32 v6, 3, v0
        v_lshl_add_u32 v7, v6, 3, v7
        s_lshl_b32 s32, {sW}, 8
        v_add_u32 v78, s32, v7
        v_xor_b32 v6, v3, v2
        v_lshlrev_b32 v6, 4, v6
        v_lshl_add_u32 v124, v2, 8, v6
        v_xor_b32 v125, 64, v124
        v_xor_b32 v126, 128, v124
        v_xor_b32 v127, 192, v124
        v_lshlrev_b32 v6, 4, v3
        v_lshl_add_u32 v82, v2, 13, v6
        s_lshl_b32 s32, {sW}, 2
        s_add_u32 s32, s32, {MX}
        v_lshlrev_b32 v6, 4, v4
        v_add_u32 v8, s32, v6
        v_add_u32 v9, {MX}, v6
        s_lshl_b32 s32, {sW}, 11
        s_add_u32 s32, s32, {PB}
        v_add_u32 v10, s32, v1
        v_lshlrev_b32 v6, 4, v3
        v_lshl_add_u32 v6, v2, 9, v6
        v_add_u32 v11, {PB}, v6
        v_lshlrev_b32 v12, 10, v0
        s_lshr_b32 s60, {sID}, 6
        s_lshl2_add_u32 s60, s60, {sW}
        s_lshl_b32 s60, s60, 13
        s_add_u32 s60, s60, {H2}
        s_and_b32 s63, {sID}, 3
        s_lshl2_add_u32 s63, s63, {sW}
        s_lshl_b32 s63, s63, 18
        s_lshr_b32 s32, {sID}, 2
        s_lshl_b32 s32, s32, 8
        s_add_u32 s63, s63, s32
        s_lshl2_add_u32 s61, s61, {sW}
        s_lshl_b32 s61, s61, 7
        s_add_u32 s61, s61, {FLAG}
        s_add_u32 s2, s61, 64
        s_mov_b32 s0, {sTAG}
        s_mov_b32 s1, {sTAG}
        s_movk_i32 {sCNT}, {NPOLL}
        A_FPOLL:
        s_buffer_load_dwordx16 s[4:19], {WS}, s61 glc
        s_buffer_load_dwordx16 s[20:35], {WS}, s2 glc
        s_sub_u32 {sCNT}, {sCNT}, 1
        s_cbranch_scc1 A_FTIME
        s_waitcnt lgkmcnt(0)
        """)
        for i in range(16):
            a(f"s_cmp_lg_u64 s[{4+2*i}:{5+2*i}], s[0:1]\ns_cbranch_scc1 A_FPOLL")
        a(f"""
        A_FTIME:
        s_waitcnt lgkmcnt(0)
        s_movk_i32 {sCNT}, 2000
        A_QDMA:
        """)
        self.stamp(4)
        a(f"""
        s_lshl_b32 s32, {sW}, 13
        s_add_u32 m0, s32, {Q}
        s_add_u32 s33, s60, 4096
        """)
        for j in range(8):
            if j == 4:
                a(f"s_add_u32 m0, s32, {Q + 4096}")
            a(f"buffer_load_dwordx4 v{124+(j&3)}, {WS}, {'s60' if j < 4 else 's33'} offen offset:{(j&3)*1024} sc1 lds")
        a("s_waitcnt vmcnt(8)")
        self.stamp(5)
        for i in range(8):
            if i:
                a(f"v_xor_b32 v{79+(i&1)}, {32*i}, v69")
            for q in range(4):
                a(f"ds_read_b128 {ar((q*8+i)*4)}, v{69 if i == 0 else 79+(i&1)} offset:{q*256}")
        a("v_mov_b32 v81, 0\ns_mov_b32 s32, s63\ns_waitcnt vmcnt(0)")
        self.stamp(6)
        a("s_barrier")
        D, NS = 4, 5
        bs = lambda s: 84 + 4 * (s % NS)
        rdB = lambda s: f"ds_read_b128 {vr(bs(s))}, v{70+(s&7)} offset:{(s>>3)*8192}"
        for s in range(D):
            a(rdB(s))
        for s in range(32):
            if s < D:
                n = (D - 1 - s) + 3 * s
            else:
                n = 2 + sum(3 if t + D < 32 else 2 for t in range(s - D + 1, s))
            a(f"s_waitcnt lgkmcnt({n})")
            a(f"v_mfma_f32_32x32x16_bf16 v[108:123], {ar(4*s)}, {vr(bs(s))}, {'0' if s == 0 else 'v[108:123]'}")
            kwh, j, u = s >> 4, (s >> 1) & 7, s & 1
            a(f"v_xor_b32 v{79+u}, {j*32 + u*16 + kwh*65536}, v78")
            if s + D < 32:
                a(rdB(s + D))
            for kl in range(2):
                kw = 2 * kwh + kl
                a(f"ds_read_b64_tr_b16 {ar(128 + (kw*8+j)*4 + 2*u, 2)}, v{79+u} offset:{u*8192 + kl*32768}")
            a(f"v_max3_u32 v81, v81, v{bs(s)}, v{bs(s)+2}")
            if s < 8:
                a(f"buffer_load_dwordx4 {vr(128+4*s)}, v82, {R1}, s32 offen nt")
                a("s_add_u32 s32, s32, 32768")
            if s == 20:
                a("s_barrier")
        a(f"""
        v_cmp_eq_u32 vcc, -1, v81
        s_cbranch_vccnz A_REDO
        A_QOK:
        """)
        self.stamp(7)
        a("v_max3_f32 v4, v108, v109, v110\nv_max3_f32 v5, v111, v112, v113")
        a("v_max3_f32 v4, v4, v114, v115\nv_max3_f32 v5, v5, v116, v117")
        a("v_max3_f32 v4, v4, v118, v119\nv_max3_f32 v5, v5, v120, v121")
        a("v_max3_f32 v4, v4, v122, v123\nv_max_f32 v4, v4, v5")
        self.swapred("v_max_f32", [4], [5], 32)
        a(f"""
        ds_write_b32 v8, v4
        s_waitcnt lgkmcnt(0)
        s_barrier
        ds_read_b128 v[4:7], v9
        s_waitcnt lgkmcnt(0)
        v_max3_f32 v4, v4, v5, v6
        v_max_f32 v14, v4, v7
        """)
        for st in range(2):
            for i in range(8):
                a(f"v_sub_f32 v{108+8*st+i}, v{108+8*st+i}, v14")
            for i in range(8):
                a(f"v_exp_f32 v{108+8*st+i}, v{108+8*st+i}")
            for i in range(4):
                a(f"v_cvt_pk_bf16_f32 v{84+4*st+i}, v{108+8*st+2*i}, v{109+8*st+2*i}")
            a(f"ds_write_b128 v10, {vr(84+4*st)} offset:{st*1024}")
        a("s_waitcnt lgkmcnt(0)\ns_barrier")
        self.stamp(8)
        for ht in range(2):
            for kw in range(4):
                a(f"ds_read_b128 {vr(160+(ht*4+kw)*4)}, v11 offset:{kw*2048 + ht*256}")
        a(f"""
        s_mov_b32 s33, 0x3f803f80
        v_mov_b32 v15, 0
        v_mov_b32 v16, 0
        s_lshl_b32 s34, {sW}, 3
        s_lshl_b32 s96, 0xff, s34
        s_mov_b32 s97, 0
        s_lshl_b32 s35, {sID}, 3
        s_add_u32 s35, s35, {ML}
        s_mov_b32 s34, s62
        """)
        side = []
        for ht in range(2):
            for i in range(16):
                side.append(f"v_dot2c_f32_bf16 v{15+ht}, s33, v{160+ht*16+i}")
        side += ["s_nop 0", "v_permlane16_swap_b32 v15, v16", "v_add_f32 v15, v15, v16", "v_mov_b32 v16, v15", "s_nop 0",
                 "v_permlane32_swap_b32 v15, v16", "v_add_f32 v15, v15, v16",
                 f"s_mov_b64 exec, s[96:97]\nbuffer_store_dwordx2 v[14:15], v12, {WS}, s35 offen sc1\ns_mov_b64 exec, -1"]
        acc = lambda ht, j: 192 + ht * 32 + j * 4
        gr = lambda ht, r: 84 + ht * 16 + r * 4
        late = {}
        for ht in range(2):
            for jp in range(4):
                blk = ht * 4 + jp
                cv = [f"v_cvt_pk_bf16_f32 v{gr(ht, r)+jp}, v{acc(ht, 2*jp)+r}, v{acc(ht, 2*jp+1)+r}" for r in range(4)]
                if jp == 3:
                    nv = []
                    for r in range(4):
                        nv.append(cv[r])
                        st = f"buffer_store_dwordx4 {vr(gr(ht, r))}, v68, {WS}, s34 offen sc1"
                        if not (ht == 1 and r == 3):
                            st += f"\ns_add_u32 s34, s34, {131072 * (13 if r == 3 else 1)}"
                        nv.append(st)
                    cv = nv
                late[blk + 1] = cv
        first = True
        for blk in range(8):
            ht, jp = blk >> 2, blk & 3
            pend = list(late.get(blk, []))
            for kw in range(4):
                if blk == 0:
                    a(f"s_waitcnt lgkmcnt({7-kw})")
                for jj in range(2):
                    j = 2 * jp + jj
                    c = "0" if kw == 0 else vr(acc(ht, j))
                    a(f"v_mfma_f32_16x16x32_bf16 {vr(acc(ht, j))}, {vr(160+(ht*4+kw)*4)}, {ar(128+(kw*8+j)*4)}, {c}")
                    if blk == 0 and kw == 3 and jj == 1:
                        a("s_waitcnt lgkmcnt(0)")
                    n = 2
                    if blk >= 1 and kw >= 2:
                        for _ in range(2):
                            if pend:
                                a(pend.pop(0))
                                n -= 1
                    if blk >= 1:
                        for _ in range(n):
                            if side:
                                a(side.pop(0))
            assert not pend
        assert not side
        for x in late[8]:
            a(x)
        self.stamp(9)
        a(f"""
        s_lshl_b32 s32, {sW}, 7
        s_and_b32 s32, s32, 128
        s_lshl_b32 s33, {sW}, 13
        v_xor_b32 v4, s32, v1
        v_add_u32 v4, s33, v4
        v_xor_b32 v5, 64, v4
        s_waitcnt vmcnt(9)
        """)
        for j in range(8):
            a(f"ds_write_b128 v{4+(j>>2)}, {vr(128+4*j)} offset:{j*1024}")
        a(f"""
        s_and_b32 s32, {sW}, 1
        s_lshl_b32 s33, s32, 3
        v_xor_b32 v6, s33, v0
        v_lshlrev_b32 v6, 3, v6
        s_lshr_b32 s34, {sW}, 1
        s_lshr_b32 s35, {sID}, 2
        s_lshl1_add_u32 s35, s35, s34
        s_lshl_b32 s35, s35, 9
        s_add_u32 s35, s35, {ML}
        s_lshl3_add_u32 s34, s34, s32
        s_lshl_b32 s34, s34, 11
        s_lshl_b32 s32, {sID}, 15
        s_add_u32 s34, s34, s32
        s_add_u32 s34, s34, {H3}
        v_lshlrev_b32 v7, 4, v3
        v_lshl_add_u32 v7, v2, 12, v7
        v_bfe_u32 v8, v0, 2, 2
        v_xor_b32 v9, {sW}, v8
        v_lshlrev_b32 v9, 6, v9
        v_lshl_add_u32 v9, v8, 12, v9
        v_lshl_add_u32 v9, v2, 8, v9
        v_and_b32 v8, 3, v0
        v_lshl_add_u32 v9, v8, 4, v9
        v_mul_u32_u24 v10, 288, v8
        v_lshl_add_u32 v10, v2, 4, v10
        s_mul_i32 s32, {sW}, 288
        v_lshlrev_b32 v11, 4, v3
        v_lshl_add_u32 v11, v2, 3, v11
        v_add_u32 v11, s32, v11
        v_and_b32 v12, 1, v0
        v_lshlrev_b32 v12, 4, v12
        s_mov_b32 s32, 0xffff
        v_lshlrev_b32 v12, v12, s32
        v_lshrrev_b32 v13, 1, v3
        """)
        for i in range(4):
            a(f"v_cmp_eq_u32 vcc, {i}, v13\nv_cndmask_b32 v{20+i}, 0, v12, vcc")
        a(f"""
        v_bfe_u32 v12, v0, 1, 1
        v_lshlrev_b32 v12, 8, v12
        v_lshl_add_u32 v12, v2, 4, v12
        s_lshl_b32 s60, {sID}, 9
        s_lshl_b32 s32, {sW}, 6
        s_add_u32 s60, s60, s32
        s_add_u32 s60, s60, {H3B}
        """)
        self.premask(96, 0x0005000500050005)
        a("s_waitcnt lgkmcnt(0)\ns_barrier")
        for s in range(4):
            for t in range(2):
                for u in range(2):
                    a(f"ds_read_b64_tr_b16 {vr(128+(s*2+t)*4+2*u, 2)}, v9 offset:{u*16384 + s*1024 + t*8}")
        self.poll(f"buffer_load_dwordx2 v[16:17], v6, {WS}, s35 offen sc1", self.sent([16], 18))
        self.stamp(10)
        oloads = "\n".join(f"buffer_load_dwordx4 {vr(160+4*j)}, v7, {WS}, s34 offen offset:{j*256} sc1" for j in range(8))
        a(oloads)
        a("v_mov_b32 v18, v16")
        for c in ("quad_perm:[1,0,3,2]", "quad_perm:[2,3,0,1]", "row_half_mirror", "row_mirror"):
            self.dpp("v_max_f32", [18], c)
        self.swapred("v_max_f32", [18], [19], 16)
        self.swapred("v_max_f32", [18], [19], 32)
        a("v_sub_f32 v16, v16, v18\nv_exp_f32 v16, v16\nv_mul_f32 v18, v16, v17")
        for c in ("quad_perm:[1,0,3,2]", "quad_perm:[2,3,0,1]", "row_half_mirror", "row_mirror"):
            self.dpp("v_add_f32", [18], c)
        self.swapred("v_add_f32", [18], [19], 16)
        self.swapred("v_add_f32", [18], [19], 32)
        a("v_rcp_f32 v18, v18\nv_mul_f32 v16, v16, v18\nv_cvt_pk_bf16_f32 v16, v16, v16")
        for j in range(8):
            for i in range(4):
                a(f"v_and_b32_dpp v{192+4*j+i}, v16, v{20+i} row_newbcast:{j} row_mask:0xf bank_mask:0xf")
        chk = self.sent([160 + 4 * j for j in range(8)], 18)
        a(f"""
        s_movk_i32 {sCNT}, {NPOLL}
        A_OWAIT:
        s_waitcnt vmcnt(0)
        {chk}
        s_cbranch_vccnz A_OREDO
        A_OOK:
        """)
        self.stamp(11)
        for j in range(8):
            c = "0" if j < 2 else vr(24 + 4 * (j & 1))
            a(f"v_mfma_f32_16x16x32_bf16 {vr(24+4*(j&1))}, {vr(192+4*j)}, {vr(160+4*j)}, {c}")
        a(f"""
        s_mov_b32 exec_hi, 0
        v_pk_add_f32 v[24:25], v[24:25], v[28:29]
        v_pk_add_f32 v[26:27], v[26:27], v[30:31]
        v_cvt_pk_bf16_f32 v24, v24, v25
        v_cvt_pk_bf16_f32 v25, v26, v27
        ds_write_b64 v11, v[24:25] offset:{XU}
        s_mov_b32 exec_hi, -1
        s_waitcnt lgkmcnt(0)
        s_barrier
        """)
        for s in range(4):
            a(f"ds_read_b128 {vr(32+4*s)}, v10 offset:{XU + s*64}")
        for s in range(4):
            a(f"s_waitcnt lgkmcnt({3-s})")
            for t in range(2):
                c = "0" if s == 0 else vr(24 + 4 * t)
                a(f"v_mfma_f32_16x16x32_bf16 {vr(24+4*t)}, {vr(128+(s*2+t)*4)}, {vr(32+4*s)}, {c}")
        self.dpp("v_add_f32", range(24, 32), "quad_perm:[1,0,3,2]")
        a("s_mov_b64 exec, s[96:97]")
        for i in range(4):
            a(f"v_cvt_pk_bf16_f32 v{32+i}, v{24+2*i}, v{25+2*i}")
        a(f"buffer_store_dwordx4 v[32:35], v12, {WS}, s60 offen sc1")
        self.stamp(12)
        a(f"""
        s_branch FIN
        A_REDO:
        s_sub_u32 {sCNT}, {sCNT}, 1
        s_cbranch_scc1 A_QOK
        s_waitcnt lgkmcnt(0)
        s_barrier
        s_branch A_QDMA
        A_OREDO:
        s_sub_u32 {sCNT}, {sCNT}, 1
        s_cbranch_scc1 A_OOK
        {oloads}
        s_branch A_OWAIT
        """)

    def tagpoll(self, voff, soff):
        self.poll(f"buffer_load_dwordx3 v[80:82], {voff}, {WS}, {soff} offen sc1\n"
                  f"buffer_load_dwordx3 v[84:86], {voff}, {WS}, {soff} offen offset:1024 sc1",
                  f"v_cmp_ne_u32 s[32:33], {sTAG}, v82\nv_cmp_ne_u32 vcc, {sTAG}, v86\ns_or_b64 vcc, vcc, s[32:33]")

    def smallgemm(self, xb, wbase):
        a = self.a
        for s in range(4):
            a(f"ds_read_b128 {vr(88+4*s)}, v9 offset:{xb - X1 + s*1024}")
        for s in range(4):
            a(f"s_waitcnt lgkmcnt({3-s})")
            for t in range(2):
                c = "0" if s == 0 else vr(104 + 4 * t)
                a(f"v_mfma_f32_16x16x32_bf16 {vr(104+4*t)}, {vr(wbase+(s*2+t)*4)}, {vr(88+4*s)}, {c}")
        for t in range(2):
            for r in range(4):
                a(f"v_add_f32_dpp v{112+r}, v{104+4*t+r}, v{104+4*t+r} row_ror:8 row_mask:0xf bank_mask:{'0x3' if t == 0 else '0xc'}")
        self.dpp("v_add_f32", range(112, 116), "quad_perm:[2,3,0,1]")

    def wrole(self):
        a = self.a
        a(f"""
        WROLE:
        s_lshr_b32 s60, {sID}, 2
        s_and_b32 s61, {sID}, 3
        s_lshl2_add_u32 s62, s61, {sW}
        s_lshl_b32 s32, s62, 18
        s_lshl_b32 s33, s60, 8
        s_add_u32 s32, s32, s33
        s_lshl_b32 s33, {sW}, 13
        s_mov_b32 m0, s33
        v_lshlrev_b32 v4, 2, v2
        v_xor_b32 v4, v4, v3
        v_lshlrev_b32 v4, 4, v4
        v_lshl_add_u32 v4, v2, 13, v4
        v_xor_b32 v5, v2, v3
        v_lshlrev_b32 v5, 4, v5
        v_lshl_add_u32 v5, v2, 13, v5
        v_xor_b32 v6, 64, v5
        v_xor_b32 v7, 128, v5
        v_xor_b32 v8, 192, v5
        s_mov_b32 s34, s32
        s_waitcnt lgkmcnt(0)
        """)
        self.srd(R1, 8, 1 << 22)
        self.srd(R2, 10, 1 << 22)
        for m, (R, so) in enumerate(((R1, "s32"), (R2, "s34"))):
            for j in range(8):
                if j == 4 or (m == 1 and j == 0):
                    a(f"s_add_u32 m0, s33, {m*WK + (j>>2)*4096}")
                v = 4 if m == 0 else 5 + (j >> 1)
                a(f"buffer_load_dwordx4 v{v}, {R}, {so} offen offset:{(j&3)*1024} nt lds")
                if j < 7:
                    a(f"s_add_u32 {so}, {so}, {32768 - 1024 + (4096 if j == 3 else 0)}")
        a(f"s_load_dword {sTAG}, s[30:31], 0 glc")
        self.srd(WS, 30, 0x10000000)
        self.stamp(1)
        a(f"""
        v_bfe_u32 v4, v0, 2, 2
        v_xor_b32 v5, {sW}, v4
        v_lshlrev_b32 v5, 6, v5
        v_lshrrev_b32 v6, 2, v0
        v_lshl_add_u32 v5, v6, 8, v5
        v_and_b32 v6, 3, v0
        v_lshl_add_u32 v10, v6, 4, v5
        v_lshl_add_u32 v5, v4, 3, v6
        v_lshlrev_b32 v5, 8, v5
        v_xor_b32 v7, v2, v3
        v_lshl_add_u32 v5, v7, 4, v5
        s_add_u32 s32, s33, {WK}
        v_add_u32 v11, s32, v5
        v_add_u32 v9, {X1}, v1
        s_lshl_b32 s32, {sW}, 10
        s_add_u32 s32, s32, {X1}
        v_bfe_u32 v4, v0, 1, 2
        v_lshlrev_b32 v4, 8, v4
        v_and_b32 v5, 1, v0
        v_lshl_add_u32 v4, v5, 6, v4
        v_lshl_add_u32 v4, v2, 4, v4
        v_and_b32 v6, 8, v0
        v_add3_u32 v12, v4, v6, s32
        v_bfe_u32 v4, v0, 3, 2
        v_lshlrev_b32 v4, 8, v4
        v_lshl_add_u32 v4, v5, 4, v4
        v_bfe_u32 v6, v0, 1, 1
        v_lshl_add_u32 v4, v6, 6, v4
        v_and_b32 v6, 32, v0
        v_add_u32 v4, v4, v6
        v_bfe_u32 v6, v0, 2, 1
        v_lshl_add_u32 v4, v6, 3, v4
        v_add_u32 v13, s32, v4
        v_lshrrev_b32 v4, 2, v0
        v_lshl_add_u32 v4, v4, 1, v5
        v_lshlrev_b32 v14, 4, v4
        v_lshlrev_b32 v4, 15, v6
        v_lshl_add_u32 v4, v2, 4, v4
        v_and_b32 v6, 8, v0
        v_add_u32 v15, v4, v6
        v_lshlrev_b32 v120, 9, v0
        s_lshl_b32 s62, s62, 11
        s_add_u32 s62, s62, {H1}
        s_lshl2_add_u32 s63, s60, {sW}
        s_lshl_b32 s63, s63, 11
        s_add_u32 s63, s63, {HQ}
        s_lshl_b32 s34, s61, 9
        s_add_u32 s34, s34, s63
        s_lshl_b32 s35, s61, 5
        s_add_u32 s35, s35, s60
        s_lshl_b32 s2, s35, 2
        s_add_u32 s2, s2, {FLAG}
        s_lshl2_add_u32 s35, s35, {sW}
        s_lshl_b32 s35, s35, 6
        s_add_u32 s35, s35, {H2}
        s_lshl_b32 s0, {sW}, 1
        s_lshl_b32 s0, 3, s0
        s_mov_b32 s1, 0
        """)
        self.premask(96, 0x3333333333333333)
        self.premask(98, 0x1111111111111111)
        a(f"""
        s_waitcnt vmcnt(8) lgkmcnt(0)
        s_add_u32 {sTAG}, {sTAG}, 0x{TAGC:x}
        """)
        self.stamp(2)
        a(f"""
        s_barrier
        v_mov_b32 v118, {sTAG}
        v_mov_b32 v119, {sTAG}
        """)
        for s in range(4):
            for t in range(2):
                for u in range(2):
                    a(f"ds_read_b64_tr_b16 {vr(16+(s*2+t)*4+2*u, 2)}, v10 offset:{s*8192 + u*4096 + t*8}")
        self.tagpoll("v1", "s62")
        self.stamp(3)
        a(f"""
        ds_write_b64 v12, v[80:81]
        ds_write_b64 v12, v[84:85] offset:128
        s_waitcnt lgkmcnt(0)
        s_barrier
        """)
        self.smallgemm(X1, 16)
        a(f"""
        s_mov_b64 exec, s[96:97]
        v_cvt_pk_bf16_f32 v116, v112, v113
        v_cvt_pk_bf16_f32 v117, v114, v115
        buffer_store_dwordx4 v[116:119], v14, {WS}, s34 offen sc1
        s_mov_b64 exec, -1
        """)
        self.stamp(4)
        for s in range(4):
            if s:
                a(f"v_xor_b32 v4, {64*s}, v11")
            for t in range(2):
                a(f"ds_read_b128 {vr(48+(s*2+t)*4)}, v{4 if s else 11} offset:{t*1024}")
        self.tagpoll("v1", "s63")
        self.stamp(5)
        flag = f"s_mov_b64 exec, s[0:1]\nbuffer_store_dword v118, v120, {WS}, s2 offen sc1\ns_mov_b64 exec, -1"
        a(f"""
        ds_write_b64 v13, v[80:81] offset:{X2 - X1}
        ds_write_b64 v13, v[84:85] offset:{X2 - X1 + 128}
        s_waitcnt lgkmcnt(0)
        s_barrier
        """)
        if self.opt.get("earlyflag"):
            a(flag)
        self.smallgemm(X2, 48)
        self.dpp("v_add_f32", range(112, 116), "quad_perm:[1,0,3,2]")
        a("s_mov_b64 exec, s[98:99]")
        for r in range(4):
            a(f"v_mul_f32 v{112+r}, 0x{QSCALE:x}, v{112+r}")
        a(f"""
        v_cvt_pk_bf16_f32 v116, v112, v113
        v_cvt_pk_bf16_f32 v117, v114, v115
        buffer_store_dwordx2 v[116:117], v15, {WS}, s35 offen sc1
        """)
        if not self.opt.get("earlyflag"):
            a(flag)
        else:
            a("s_mov_b64 exec, -1")
        self.stamp(6)
        a(f"""
        s_and_b32 s60, {sID}, 15
        s_and_b32 s61, {sID}, 3
        s_lshl2_add_u32 s61, {sXCD}, s61
        s_cmp_lt_u32 s60, 8
        s_cbranch_scc1 W_SETO
        s_cmp_lt_u32 s60, 12
        s_cbranch_scc1 W_SETM
        s_cmp_ge_u32 s61, 28
        s_cbranch_scc1 FIN
        """)
        self.srd(R1, 18, 512 * 3584)
        a(f"""
        s_movk_i32 s62, 3584
        s_lshl_b32 s32, s61, 7
        s_branch W_LOAD
        W_SETM:
        """)
        self.srd(R1, 24, 512 * 6144)
        a(f"""
        s_movk_i32 s62, 6144
        s_lshl_b32 s32, s61, 7
        s_add_u32 s32, s32, 2048
        s_branch W_LOAD
        W_SETO:
        """)
        self.srd(R1, 14, 1 << 22)
        a(f"""
        s_movk_i32 s62, 1024
        s_lshl_b32 s32, {sXCD}, 19
        s_lshl_b32 s33, s60, 7
        s_add_u32 s32, s32, s33
        W_LOAD:
        s_lshl_b32 s33, {sW}, 7
        s_mul_i32 s33, s33, s62
        s_add_u32 s32, s32, s33
        s_lshl_b32 s33, s62, 3
        s_sub_u32 s33, s33, 1024
        s_add_u32 s63, s33, 4096
        s_lshl_b32 s34, {sW}, 14
        v_lshrrev_b32 v4, 3, v0
        v_mul_lo_u32 v4, v4, s62
        v_and_b32 v5, 1, v2
        v_lshlrev_b32 v5, 1, v5
        v_and_b32 v6, 7, v0
        v_xor_b32 v5, v5, v6
        v_lshl_add_u32 v6, v5, 4, v4
        v_xor_b32 v5, 4, v5
        v_lshl_add_u32 v7, v5, 4, v4
        """)
        for j in range(16):
            if j % 4 == 0:
                a(f"s_add_u32 m0, s34, {W2R + j*1024}")
            a(f"buffer_load_dwordx4 v{6+(j&1)}, {R1}, s32 offen offset:{(j&3)*1024} nt lds")
            if j < 15:
                a(f"s_add_u32 s32, s32, {'s63' if j % 4 == 3 else 's33'}")
        a(f"""
        v_bfe_u32 v4, v0, 2, 2
        v_lshl_add_u32 v5, v2, 3, v4
        v_lshlrev_b32 v5, 7, v5
        v_bfe_u32 v6, v0, 3, 2
        v_xor_b32 v6, {sW}, v6
        v_lshl_add_u32 v5, v6, 5, v5
        v_and_b32 v6, 3, v0
        v_lshl_add_u32 v5, v6, 3, v5
        v_add_u32 v10, {W2R}, v5
        s_cmp_lt_u32 s60, 8
        s_cbranch_scc1 W_WAIT
        s_cmp_lt_u32 s60, 12
        s_cbranch_scc1 W_PREM
        """)
        self.srd(R2, 20, 1792 * 1024)
        a(f"""
        s_lshl_b32 s32, s61, 16
        s_add_u32 s32, s32, s34
        v_xor_b32 v5, 16, v1
        v_xor_b32 v6, 32, v1
        v_xor_b32 v7, 48, v1
        """)
        for j in range(16):
            if j % 4 == 0:
                a(f"s_add_u32 m0, s34, {j*1024}")
                if j:
                    a("s_add_u32 s32, s32, 4096")
            a(f"buffer_load_dwordx4 v{[1, 5, 6, 7][j&3]}, {R2}, s32 offen offset:{(j&3)*1024} nt lds")
        a(f"""
        s_branch W_WAIT
        W_PREM:
        """)
        self.srd(R3, 22, 2048)
        a(f"""
        s_lshl_b32 s32, {sW}, 9
        v_lshlrev_b32 v4, 3, v0
        buffer_load_dwordx2 v[16:17], v4, {R3}, s32 offen
        s_lshr_b32 s33, {sW}, 1
        s_lshl_b32 s33, s33, 5
        s_add_u32 s32, s32, s33
        s_add_u32 s32, s32, {SL}
        v_add_u32 v4, s32, v4
        s_waitcnt vmcnt(0)
        """)
        self.silu([16, 17], 20)
        a(f"""
        ds_write_b64 v4, v[16:17]
        W_WAIT:
        s_waitcnt vmcnt(0) lgkmcnt(0)
        """)
        self.stamp(7)
        a("s_barrier")
        for s in range(16):
            for u in range(2):
                a(f"ds_read_b64_tr_b16 {ar(4*s+2*u, 2)}, v10 offset:{s*4096 + u*512}")
        a(f"""
        s_cmp_lt_u32 s60, 8
        s_cbranch_scc0 W_NOTO
        """)
        self.orole()
        a(f"""
        W_NOTO:
        v_and_b32 v4, 3, v0
        v_mul_u32_u24 v4, 2112, v4
        v_bfe_u32 v5, v0, 2, 1
        v_mul_u32_u24 v5, 1056, v5
        v_lshl_add_u32 v5, v2, 4, v5
        s_cmp_lt_u32 s60, 12
        s_cbranch_scc1 W_M2
        """)
        self.ffn()
        a("W_M2:")
        self.m2()

    def actgemm(self, addr, fill=None):
        a = self.a
        fill = list(fill or [])
        for s in range(12):
            a(f"ds_read_b128 {vr(128+4*s)}, v{addr} offset:{s*64}")
        for s in range(16):
            a(f"s_waitcnt lgkmcnt({min(11, 15-s)})")
            c = "0" if s < 2 else vr(104 + 4 * (s & 1))
            a(f"v_mfma_f32_16x16x32_bf16 {vr(104+4*(s&1))}, {vr(128+4*s)}, {ar(4*s)}, {c}")
            if s < 4:
                a(f"ds_read_b128 {vr(128+4*(s+12))}, v{addr} offset:{(s+12)*64}")
            for _ in range(3):
                if fill:
                    a(fill.pop(0))
        assert not fill

    def orole(self):
        a = self.a
        a(f"""
        s_lshl2_add_u32 s34, {sXCD}, {sW}
        s_lshl_b32 s34, s34, 11
        s_add_u32 s34, s34, {H3B}
        v_and_b32 v4, 1, v2
        v_lshlrev_b32 v4, 3, v4
        v_lshrrev_b32 v5, 1, v2
        v_or_b32 v4, v4, v5
        v_lshlrev_b32 v4, 4, v4
        v_xor_b32 v4, v4, v1
        s_lshl_b32 s32, {sW}, 11
        s_add_u32 s32, s32, {XO}
        v_add_u32 v11, s32, v4
        v_xor_b32 v12, 32, v11
        v_and_b32 v4, 3, v0
        v_bfe_u32 v5, v0, 2, 1
        v_lshl_add_u32 v6, v4, 1, v5
        v_lshlrev_b32 v6, 8, v6
        v_xor_b32 v4, v4, v2
        v_lshl_add_u32 v6, v4, 4, v6
        v_lshl_add_u32 v6, v5, 7, v6
        v_bfe_u32 v4, v0, 3, 1
        v_lshl_add_u32 v6, v4, 6, v6
        v_add_u32 v13, {XO}, v6
        v_xor_b32 v14, 128, v13
        v_lshlrev_b32 v5, 10, v5
        v_lshl_add_u32 v15, v2, 3, v5
        s_lshl_b32 s35, {sXCD}, 11
        s_lshl2_add_u32 s32, s60, {sW}
        s_lshl_b32 s32, s32, 5
        s_add_u32 s35, s35, s32
        s_add_u32 s35, s35, {H4}
        """)
        self.premask(96, 0x0011001100110011)
        self.poll(f"buffer_load_dwordx4 v[80:83], v1, {WS}, s34 offen sc1\n"
                  f"buffer_load_dwordx4 v[84:87], v1, {WS}, s34 offen offset:1024 sc1", self.sent([80, 84], 4))
        self.stamp(8)
        a(f"""
        ds_write_b128 v11, v[80:83]
        ds_write_b128 v12, v[84:87] offset:1024
        s_waitcnt lgkmcnt(0)
        s_barrier
        """)
        for sp in range(8):
            a(f"ds_read_b128 {vr(128+4*sp)}, v{13+(sp&1)} offset:{(sp>>1)*2048}")
        for sp in range(8):
            a(f"s_waitcnt lgkmcnt({7-sp})")
            for k in range(2):
                c = "0" if sp == 0 else vr(104 + 4 * k)
                a(f"v_mfma_f32_16x16x32_bf16 {vr(104+4*k)}, {ar(4*(2*sp+k))}, {vr(128+4*sp)}, {c}")
        for r in range(4):
            a(f"v_add_f32_dpp v{112+r}, v{108+r}, v{104+r} row_ror:8 row_mask:0xf bank_mask:0xf")
        self.dpp("v_add_f32", range(112, 116), "quad_perm:[1,0,3,2]")
        self.dpp("v_add_f32", range(112, 116), "quad_perm:[2,3,0,1]")
        a(f"""
        s_mov_b64 exec, s[96:97]
        v_cvt_pk_bf16_f32 v116, v112, v113
        v_cvt_pk_bf16_f32 v117, v114, v115
        buffer_store_dwordx2 v[116:117], v15, {WS}, s35 offen sc1
        """)
        self.stamp(9)
        a("s_branch FIN")

    def selmat(self, esel, on):
        a = self.a
        a(f"""
        v_and_b32 v24, 1, v{esel}
        v_lshlrev_b32 v24, 4, v24
        s_movk_i32 s32, 0x3f80
        v_lshlrev_b32 v24, v24, s32
        v_lshrrev_b32 v25, 1, v{esel}
        v_lshl_or_b32 v25, v{on}, 2, v25
        """)
        for i in range(4):
            a(f"v_cmp_eq_u32 vcc, {i}, v25\nv_cndmask_b32 v{20+i}, 0, v24, vcc")

    def ffn(self):
        a = self.a
        a(f"""
        s_mov_b32 s32, {YB}
        v_add3_u32 v11, v4, v5, s32
        v_bfe_u32 v4, v0, 2, 2
        v_lshl_add_u32 v5, v2, 3, v4
        v_lshlrev_b32 v5, 10, v5
        v_lshl_add_u32 v5, v4, 4, v5
        v_and_b32 v4, 3, v0
        v_lshl_add_u32 v5, v4, 6, v5
        s_lshl_b32 s33, {sW}, 8
        v_add_u32 v4, s33, v5
        """)
        for tp in range(4):
            if tp:
                a(f"v_xor_b32 v{4+tp}, {16*tp}, v4")
            for th in range(2):
                for s in range(2):
                    for u in range(2):
                        t = 2 * tp + th
                        a(f"ds_read_b64_tr_b16 {ar(64+(t*2+s)*4+2*u, 2)}, v{4+tp} offset:{s*32768 + u*4096 + th*8}")
        self.srd(R2, 4, 2048)
        a(f"""
        v_lshrrev_b32 v4, 5, v0
        v_and_b32 v5, 1, v2
        v_lshl_add_u32 v6, v3, 1, v5
        v_lshlrev_b32 v7, 3, v6
        v_lshl_add_u32 v8, v4, 10, v7
        buffer_load_dwordx2 v[16:17], v8, {R2}, s33 offen
        v_mul_u32_u24 v8, 1056, v4
        s_add_u32 s32, s33, {YB}
        v_add3_u32 v12, v8, v7, s32
        v_lshlrev_b32 v7, 4, v6
        v_lshl_add_u32 v13, v4, 13, v7
        s_lshl_b32 s34, {sW}, 9
        s_add_u32 s34, s34, {M2O}
        s_add_u32 s35, s34, 4096
        v_and_b32 v6, 31, v0
        v_lshlrev_b32 v6, 3, v6
        v_lshl_add_u32 v6, v4, 10, v6
        s_add_u32 s32, s33, {ST}
        v_add_u32 v14, s32, v6
        v_lshlrev_b32 v6, 4, v3
        v_lshl_add_u32 v6, v4, 8, v6
        v_lshl_add_u32 v6, v5, 10, v6
        v_add_u32 v15, {ST}, v6
        v_lshlrev_b32 v6, 4, v3
        v_lshl_add_u32 v26, v2, 10, v6
        s_add_u32 s62, s33, {H4}
        s_add_u32 s63, s62, 4096
        s_add_u32 s0, s62, 8192
        s_add_u32 s1, s62, 12288
        v_mul_u32_u24 v6, 160, v5
        v_lshl_add_u32 v6, v3, 1, v6
        s_lshl_b32 s32, {sW}, 5
        s_add_u32 s32, s32, {AB}
        v_add_u32 v27, s32, v6
        v_bfe_u32 v6, v0, 2, 1
        v_mul_u32_u24 v6, 160, v6
        v_lshl_add_u32 v6, v2, 4, v6
        v_add_u32 v28, {AB}, v6
        v_bfe_u32 v6, v0, 3, 1
        v_mul_u32_u24 v7, 7168, v6
        v_lshl_add_u32 v7, v5, 7, v7
        v_and_b32 v8, 7, v0
        v_lshl_add_u32 v29, v8, 4, v7
        v_xor_b32 v6, v6, v5
        s_mul_i32 s2, {sW}, 14336
        s_lshl_b32 s32, s61, 8
        s_add_u32 s2, s2, s32
        s_add_u32 s2, s2, {H5}
        """)
        self.selmat(8, 6)
        self.poll(f"buffer_load_dwordx4 v[32:35], v13, {WS}, s34 offen sc1\n"
                  f"buffer_load_dwordx4 v[36:39], v13, {WS}, s34 offen offset:2048 sc1\n"
                  f"buffer_load_dwordx4 v[40:43], v13, {WS}, s35 offen sc1", self.sent(range(32, 44), 4))
        self.stamp(8)
        for r in range(4):
            a(f"v_add_f32 v{40+r}, 1.0, v{40+r}")
        a(f"""
        v_cvt_pk_bf16_f32 v4, v40, v41
        v_cvt_pk_bf16_f32 v5, v42, v43
        v_cvt_pk_bf16_f32 v6, v36, v37
        v_cvt_pk_bf16_f32 v7, v38, v39
        ds_write_b64 v12, v[4:5] offset:2112
        ds_write_b64 v12, v[6:7] offset:4224
        v_lshlrev_b32 v40, 16, v4
        v_and_b32 v41, 0xffff0000, v4
        v_lshlrev_b32 v42, 16, v5
        v_and_b32 v43, 0xffff0000, v5
        v_lshlrev_b32 v36, 16, v16
        v_and_b32 v37, 0xffff0000, v16
        v_lshlrev_b32 v38, 16, v17
        v_and_b32 v39, 0xffff0000, v17
        """)
        so = ["s62", "s63", "s0", "s1"]
        self.poll("\n".join(f"buffer_load_dwordx4 {vr(48+4*j)}, v26, {WS}, {so[j]} offen sc1" for j in range(4)),
                  self.sent(range(48, 64, 2), 4))
        self.stamp(9)
        for j in range(4):
            c = "0" if j == 0 else "v[44:47]"
            a(f"v_mfma_f32_16x16x32_bf16 v[44:47], v[20:23], {vr(48+4*j)}, {c}")
        a(f"""
        v_pk_fma_f32 v[36:37], v[32:33], v[44:45], v[36:37]
        v_pk_fma_f32 v[38:39], v[34:35], v[46:47], v[38:39]
        v_pk_mul_f32 v[40:41], v[40:41], v[36:37]
        v_pk_mul_f32 v[42:43], v[42:43], v[38:39]
        v_cvt_pk_bf16_f32 v4, v40, v41
        v_cvt_pk_bf16_f32 v5, v42, v43
        ds_write_b64 v12, v[4:5]
        v_pk_add_f32 v[6:7], v[36:37], v[38:39]
        v_pk_mul_f32 v[8:9], v[36:37], v[36:37]
        v_pk_fma_f32 v[8:9], v[38:39], v[38:39], v[8:9]
        v_add_f32 v6, v6, v7
        v_add_f32 v7, v8, v9
        ds_write_b64 v14, v[6:7]
        s_waitcnt lgkmcnt(0)
        s_barrier
        ds_read_b128 v[32:35], v15
        ds_read_b128 v[36:39], v15 offset:512
        """)
        d = lambda c: [f"v_add_f32_dpp v{r}, v{r}, v{r} {c} row_mask:0xf bank_mask:0xf" for r in (32, 33)] + ["s_nop 0"]
        fill = ["v_pk_add_f32 v[32:33], v[32:33], v[34:35]", "v_pk_add_f32 v[36:37], v[36:37], v[38:39]",
                "v_pk_add_f32 v[32:33], v[32:33], v[36:37]"]
        for c in ("quad_perm:[1,0,3,2]", "quad_perm:[2,3,0,1]", "row_half_mirror", "row_mirror"):
            fill += d(c)
        fill += ["v_mov_b32 v34, v32", "v_mov_b32 v35, v33", "s_nop 0",
                 "v_permlane32_swap_b32 v32, v34", "v_permlane32_swap_b32 v33, v35", "s_nop 0",
                 "v_pk_add_f32 v[32:33], v[32:33], v[34:35]", "v_mov_b32 v34, 0x3727c5ac",
                 "v_mul_f32 v32, 0x3b000000, v32", "v_fmac_f32 v34, 0x3b000000, v33",
                 "v_fma_f32 v34, -v32, v32, v34", "v_rsq_f32 v34, v34"]
        self.actgemm(11, fill)
        a(f"""
        s_mov_b32 exec_hi, 0
        v_pk_add_f32 v[104:105], v[104:105], v[108:109]
        v_add_f32 v106, v106, v110
        v_fma_f32 v104, -v32, v105, v104
        v_fma_f32 v104, v34, v104, v106
        v_max_f32 v104, 0, v104
        v_cvt_pk_bf16_f32 v104, v104, v104
        ds_write_b16 v27, v104
        s_mov_b32 exec_hi, -1
        s_waitcnt lgkmcnt(0)
        s_barrier
        ds_read_b128 v[32:35], v28
        ds_read_b128 v[36:39], v28 offset:64
        """)
        self.stamp(10)
        for s in range(2):
            a(f"s_waitcnt lgkmcnt({1-s})")
            for t in range(8):
                c = "0" if s == 0 else vr(128 + 4 * t)
                a(f"v_mfma_f32_16x16x32_bf16 {vr(128+4*t)}, {vr(32+4*s)}, {ar(64+(t*2+s)*4)}, {c}")
        a("s_mov_b32 exec_hi, 0")
        for i in range(4):
            a(f"v_cvt_pk_bf16_f32 v{40+i}, v{128+8*i}, v{132+8*i}")
        a(f"buffer_store_dwordx4 v[40:43], v29, {WS}, s2 offen sc1")
        self.stamp(11)
        a("s_branch FIN")

    def m2(self):
        a = self.a
        a(f"""
        v_add_u32 v11, {SL}, v5
        v_lshlrev_b32 v4, 2, v3
        v_lshl_add_u32 v12, v2, 13, v4
        s_lshl2_add_u32 s34, s61, {sW}
        s_lshl_b32 s34, s34, 6
        s_add_u32 s34, s34, {M2O}
        s_waitcnt lgkmcnt(0)
        """)
        self.actgemm(11)
        a(f"""
        s_mov_b32 exec_hi, 0
        v_add_f32 v104, v104, v108
        v_cvt_pk_bf16_f32 v104, v104, v104
        v_lshlrev_b32 v104, 16, v104
        buffer_store_dword v104, v12, {WS}, s34 offen sc1
        s_mov_b32 exec_hi, -1
        """)
        self.stamp(8)
        a(f"""
        s_cmp_lt_u32 s61, 24
        s_cbranch_scc1 FIN
        s_cmp_lg_u32 {sW}, 0
        s_cbranch_scc1 FIN
        s_sub_u32 s61, s61, 24
        """)
        self.srd(R2, 4, 2048)
        self.srd(R3, 26, 2048)
        a(f"""
        v_bfe_u32 v4, v0, 3, 1
        v_and_b32 v5, 7, v0
        v_lshl_add_u32 v6, v5, 2, v2
        v_lshlrev_b32 v7, 2, v6
        v_lshl_add_u32 v7, v4, 10, v7
        s_lshl_b32 s33, s61, 7
        buffer_load_dword v16, v7, {R2}, s33 offen
        v_lshlrev_b32 v7, 3, v6
        v_lshl_add_u32 v11, v4, 13, v7
        v_lshl_add_u32 v7, v4, 8, v7
        v_add_u32 v12, {XF}, v7
        v_bfe_u32 v6, v0, 2, 1
        v_lshl_add_u32 v6, v6, 2, v2
        v_and_b32 v7, 3, v0
        v_lshl_add_u32 v6, v6, 3, v7
        v_lshlrev_b32 v8, 2, v6
        v_lshl_add_u32 v13, v4, 13, v8
        v_lshl_add_u32 v8, v4, 8, v8
        v_add_u32 v14, {XF}, v8
        v_lshlrev_b32 v8, 1, v6
        v_lshl_add_u32 v15, v4, 10, v8
        v_lshrrev_b32 v8, 3, v0
        v_lshlrev_b32 v8, 10, v8
        v_lshl_add_u32 v26, v5, 4, v8
        s_lshl_b32 s34, s61, 8
        s_add_u32 s34, s34, {M2O}
        s_add_u32 s35, s34, 6144
        s_add_u32 s62, s33, {H4}
        s_add_u32 s63, s62, 8192
        s_mul_i32 s0, s61, 7168
        s_add_u32 s0, s0, {H5}
        s_add_u32 s1, s0, 4096
        v_bfe_u32 v8, v0, 2, 2
        v_and_b32 v6, 1, v0
        v_lshl_add_u32 v8, v8, 1, v6
        v_bfe_u32 v6, v0, 1, 1
        """)
        self.selmat(8, 6)
        self.poll(f"buffer_load_dwordx2 v[32:33], v11, {WS}, s34 offen sc1\n"
                  f"buffer_load_dword v34, v13, {WS}, s35 offen sc1\n"
                  f"buffer_load_dword v35, v13, {WS}, s35 offen offset:16 sc1", self.sent(range(32, 36), 4))
        a("v_lshlrev_b32 v36, 16, v16\nv_and_b32 v37, 0xffff0000, v16")
        self.poll(f"buffer_load_dwordx4 v[48:51], v26, {WS}, s62 offen sc1\n"
                  f"buffer_load_dwordx4 v[52:55], v26, {WS}, s63 offen sc1", self.sent(range(48, 56, 2), 4))
        self.stamp(9)
        a(f"""
        v_mfma_f32_16x16x32_bf16 v[44:47], v[20:23], v[48:51], 0
        v_mfma_f32_16x16x32_bf16 v[44:47], v[20:23], v[52:55], v[44:47]
        v_pk_fma_f32 v[36:37], v[32:33], v[44:45], v[36:37]
        ds_write_b64 v12, v[36:37]
        s_waitcnt lgkmcnt(0)
        ds_read_b32 v36, v14
        ds_read_b32 v37, v14 offset:16
        s_cmp_lg_u32 s61, 0
        s_cbranch_scc1 W_NOGEN
        s_mov_b64 exec, 1
        buffer_store_dword v118, v0, {WS}, 0 offen sc1
        s_mov_b64 exec, -1
        W_NOGEN:
        """)
        self.poll("\n".join(f"buffer_load_dwordx4 {vr(48+4*j)}, v1, {WS}, {'s0' if j < 4 else 's1'} offen offset:{(j&3)*1024} sc1" for j in range(7)),
                  self.sent(range(48, 76, 4), 4))
        self.stamp(10)
        for j in range(7):
            c = "0" if j < 2 else vr(40 + 4 * (j & 1))
            a(f"v_mfma_f32_16x16x32_bf16 {vr(40+4*(j&1))}, v[20:23], {vr(48+4*j)}, {c}")
        a(f"""
        s_waitcnt lgkmcnt(0)
        v_pk_add_f32 v[40:41], v[40:41], v[44:45]
        v_pk_fma_f32 v[36:37], v[34:35], v[40:41], v[36:37]
        v_cvt_pk_bf16_f32 v36, v36, v37
        buffer_store_short v36, v15, {R3}, s33 offen
        buffer_store_short_d16_hi v36, v15, {R3}, s33 offen offset:8
        """)
        self.stamp(11)

    def fin(self):
        a = self.a
        a("FIN:")
        if self.diag:
            a("s_mov_b64 exec, -1\ns_waitcnt vmcnt(0)")
            self.stamp(15)
            a(f"""
            s_waitcnt lgkmcnt(0)
            s_lshl2_add_u32 s32, s101, {sW}
            s_lshl_b32 s32, s32, 6
            s_add_u32 s32, s32, {STAMP}
            """)
            for i in range(16):
                a(f"v_mov_b32 v{16+i}, s{64+2*i}")
            a("s_mov_b64 exec, 1")
            for i in range(4):
                a(f"buffer_store_dwordx4 {vr(16+4*i)}, v0, {WS}, s32 offen offset:{16*i}")
        a("EXIT:")

    def build(self):
        if self.diag:
            self.a("s_mov_b32 s101, s2")
        self.entry()
        self.arole()
        self.wrole()
        self.fin()
        return wrap(pad(self.a.text()), 256, 256, 163840)


if __name__ == "__main__":
    out = sys.argv[1]
    opts = dict(kv.split("=") for kv in sys.argv[2:])
    opts = {k: int(v) for k, v in opts.items()}
    open(out, "w").write(G(**opts).build())
```

```python
import sys
from asmlib import Asm, wrap, KNAME
from hazard import pad

FLAG, H1, HQ = 0x1000, 0x10000, 0x20000
SB = 0x80000
H2, H3B, H4, M2O, ML, H5 = SB, SB + 0x10000, SB + 0x20000, SB + 0x24000, SB + 0x28000, SB + 0x30000
H3 = 0x100000
STAMP = 200 << 20
TAGC = 0x9E3779B9
NPOLL = 20000

Q = 131072
SIL = Q + 8192
PB = Q
MX = Q + 8192
XU = 32768
WQ, WK, W2R = 0, 32768, 65536
X1, X2 = 131072, 135168
XO = 139264
YB = 139264
ST = 149504
AB = 151552
SL = 139264
XF = 152064

WS = "s[36:39]"
R1, R2, R3, R4 = "s[40:43]", "s[44:47]", "s[48:51]", "s[52:55]"
sW, sXCD, sID, sTAG, sCNT = "s3", "s56", "s58", "s59", "s57"
LOG2E = 0x3FB8AA3B
QSCALE = 0x3E0293EE


def vr(b, n=4):
    return f"v[{b}:{b+n-1}]"


def ar(b, n=4):
    return f"a[{b}:{b+n-1}]"


class G:
    def __init__(self, diag=False, **opt):
        self.a = Asm()
        self.diag = diag
        self.opt = opt

    def stamp(self, i):
        if self.diag:
            self.a(f"s_memrealtime s[{64+2*i}:{65+2*i}]")

    def srd(self, r, ptr, size):
        b = int(r[2:4])
        self.a(f"s_mov_b64 s[{b}:{b+1}], s[{ptr}:{ptr+1}]\ns_mov_b32 s{b+2}, {size}")

    def execmask(self, m):
        lo, hi = m & 0xFFFFFFFF, m >> 32
        self.a(f"s_mov_b32 exec_lo, 0x{lo:x}\ns_mov_b32 exec_hi, 0x{hi:x}")

    def premask(self, s, m):
        lo, hi = m & 0xFFFFFFFF, m >> 32
        self.a(f"s_mov_b32 s{s}, 0x{lo:x}\ns_mov_b32 s{s+1}, 0x{hi:x}")

    def poll(self, loads, check):
        a = self.a
        lp, ok = a.label("POLL"), a.label("POK")
        a(f"s_movk_i32 {sCNT}, {NPOLL}\n{lp}:")
        a(loads)
        a("s_waitcnt vmcnt(0)")
        a(check)
        a(f"""
        s_cbranch_vccz {ok}
        s_sub_u32 {sCNT}, {sCNT}, 1
        s_cbranch_scc0 {lp}
        {ok}:
        """)

    @staticmethod
    def sent(regs, t):
        regs = list(regs)
        if len(regs) == 1:
            return f"v_cmp_eq_u32 vcc, -1, v{regs[0]}"
        s = []
        if len(regs) % 2 == 0:
            s.append(f"v_max_u32 v{t}, v{regs[0]}, v{regs[1]}")
            regs = regs[2:]
        else:
            s.append(f"v_max3_u32 v{t}, v{regs[0]}, v{regs[1]}, v{regs[2]}")
            regs = regs[3:]
        while regs:
            s.append(f"v_max3_u32 v{t}, v{t}, v{regs[0]}, v{regs[1]}")
            regs = regs[2:]
        s.append(f"v_cmp_eq_u32 vcc, -1, v{t}")
        return "\n".join(s)

    def dpp(self, op, regs, ctrl):
        for r in regs:
            self.a(f"{op}_dpp v{r}, v{r}, v{r} {ctrl} row_mask:0xf bank_mask:0xf")

    def swapred(self, op, regs, tmps, which):
        a = self.a
        for r, t in zip(regs, tmps):
            a(f"v_mov_b32 v{t}, v{r}")
        for r, t in zip(regs, tmps):
            a(f"v_permlane{which}_swap_b32 v{r}, v{t}")
        for r, t in zip(regs, tmps):
            a(f"{op} v{r}, v{r}, v{t}")

    def silu(self, pairs, t):
        a = self.a
        n = len(pairs)
        x = [t + i for i in range(2 * n)]
        e = [t + 2 * n + i for i in range(2 * n)]
        for i, p in enumerate(pairs):
            a(f"v_lshlrev_b32 v{x[2*i]}, 16, v{p}\nv_and_b32 v{x[2*i+1]}, 0xffff0000, v{p}")
        for i in range(2 * n):
            a(f"v_mul_f32 v{e[i]}, 0x{LOG2E | 0x80000000:x}, v{x[i]}")
        for i in range(2 * n):
            a(f"v_exp_f32 v{e[i]}, v{e[i]}")
        for i in range(2 * n):
            a(f"v_add_f32 v{e[i]}, 1.0, v{e[i]}")
        for i in range(2 * n):
            a(f"v_rcp_f32 v{e[i]}, v{e[i]}")
        for i in range(2 * n):
            a(f"v_mul_f32 v{x[i]}, v{x[i]}, v{e[i]}")
        for i, p in enumerate(pairs):
            a(f"v_cvt_pk_bf16_f32 v{p}, v{x[2*i]}, v{x[2*i+1]}")

    def entry(self):
        a = self.a
        if self.diag:
            for i in range(1, 16):
                a(f"s_mov_b64 s[{64+2*i}:{65+2*i}], 0")
        self.stamp(0)
        a(f"""
        s_cmp_ge_u32 s2, 256
        s_cbranch_scc1 EXIT
        s_load_dwordx16 s[4:19], s[0:1], 0
        s_load_dwordx8 s[20:27], s[0:1], 64
        s_load_dwordx4 s[28:31], s[0:1], 96
        v_lshrrev_b32 v1, 6, v0
        v_and_b32 v0, 63, v0
        v_readfirstlane_b32 {sW}, v1
        s_and_b32 {sXCD}, s2, 7
        s_lshr_b32 s57, s2, 4
        s_lshl4_add_u32 {sID}, {sXCD}, s57
        v_lshlrev_b32 v1, 4, v0
        v_lshrrev_b32 v2, 4, v0
        v_and_b32 v3, 15, v0
        s_mov_b32 s39, 0x20000
        s_mov_b32 s43, 0x20000
        s_mov_b32 s47, 0x20000
        s_mov_b32 s51, 0x20000
        s_mov_b32 s55, 0x20000
        s_bitcmp1_b32 s2, 3
        s_cbranch_scc1 WROLE
        """)

    def h3clear(self):
        a = self.a
        a("s_mov_b32 s34, s62")
        for i in range(8):
            a(f"buffer_store_dwordx4 v[64:67], v68, {WS}, s34 offen sc1")
            if i < 7:
                a(f"s_add_u32 s34, s34, {131072 * (13 if i == 3 else 1)}")

    def arole(self):
        a = self.a
        a(f"""
        s_and_b32 s60, {sID}, 15
        s_lshr_b32 s61, {sID}, 4
        v_lshlrev_b32 v4, 4, v3
        v_lshl_or_b32 v68, v2, 19, v4
        v_mov_b32 v64, -1
        v_mov_b32 v65, -1
        v_mov_b32 v66, -1
        v_mov_b32 v67, -1
        s_lshl_b32 s62, {sW}, 15
        s_lshl_b32 s63, {sID}, 8
        s_add_u32 s62, s62, s63
        s_add_u32 s62, s62, {H3}
        s_cmp_ge_u32 {sW}, 2
        s_cbranch_scc1 A_W23
        v_lshrrev_b32 v5, 3, v0
        v_and_b32 v6, 7, v0
        v_lshlrev_b32 v7, 1, v2
        v_xor_b32 v7, v6, v7
        v_mul_u32_u24 v8, 6144, v5
        v_lshrrev_b32 v9, 2, v7
        v_lshl_add_u32 v8, v9, 10, v8
        v_and_b32 v9, 3, v7
        v_lshl_add_u32 v8, v9, 4, v8
        v_and_b32 v10, 1, v5
        v_lshlrev_b32 v10, 10, v10
        v_lshl_add_u32 v11, v2, 3, v6
        v_lshl_add_u32 v11, v11, 5, v10
        v_lshl_add_u32 v12, v2, 3, v10
        s_lshl1_add_u32 s32, s61, {sW}
        s_mul_i32 s32, s32, {32 * 6144}
        s_lshl_b32 s33, s60, 6
        s_add_u32 s32, s32, s33
        s_lshl_b32 s34, {sW}, 5
        s_add_u32 s33, s33, s34
        s_lshl_b32 s34, {sW}, 12
        s_add_u32 m0, s34, {Q}
        s_waitcnt lgkmcnt(0)
        """)
        self.srd(R2, 4, 2048)
        self.srd(R1, 24, 512 * 6144)
        a(f"""
        buffer_load_dwordx4 v[16:19], v11, {R2}, 0 offen
        buffer_load_dwordx4 v[20:23], v11, {R2}, 0 offen offset:16
        buffer_load_dwordx2 v[24:25], v12, {R2}, s33 offen
        """)
        for j in range(4):
            a(f"buffer_load_dwordx4 v8, {R1}, s32 offen offset:{1024*j} nt lds")
            if j < 3:
                a(f"s_add_u32 s32, s32, {8 * 6144 - 1024}")
        a(f"s_load_dword {sTAG}, s[30:31], 0")
        self.srd(WS, 30, 0x10000000)
        self.h3clear()
        a(f"""
        v_lshrrev_b32 v13, 2, v0
        v_lshlrev_b32 v13, 7, v13
        v_and_b32 v14, 3, v5
        v_xor_b32 v14, {sW}, v14
        v_lshl_add_u32 v13, v14, 5, v13
        v_and_b32 v14, 3, v0
        v_lshl_add_u32 v13, v14, 3, v13
        v_add_u32 v13, {Q}, v13
        v_xor_b32 v14, 64, v13
        v_lshrrev_b32 v15, 3, v10
        v_lshl_add_u32 v15, v2, 4, v15
        v_add_u32 v15, {SIL}, v15
        s_cmp_eq_u32 s61, 0
        s_cselect_b32 s32, 1.0, 0
        v_mov_b32 v56, s32
        v_mov_b32 v57, s32
        v_mov_b32 v58, s32
        v_mov_b32 v59, s32
        v_lshlrev_b32 v5, 4, v5
        s_lshl_b32 s32, s60, 11
        s_lshl_b32 s33, s61, 8
        s_add_u32 s32, s32, s33
        s_lshl_b32 s33, {sW}, 7
        s_add_u32 s32, s32, s33
        s_add_u32 s32, s32, {H1}
        s_mov_b32 s33, 0x3f803f80
        v_mov_b32 v26, 0
        v_mov_b32 v27, 0
        """)
        self.premask(96, 0x0101010101010101)
        a("s_waitcnt vmcnt(13)")
        for i in range(8):
            a(f"v_dot2c_f32_bf16 v26, s33, v{16+i}\nv_dot2c_f32_bf16 v27, v{16+i}, v{16+i}")
        self.dpp("v_add_f32", [26, 27], "quad_perm:[1,0,3,2]")
        self.dpp("v_add_f32", [26, 27], "quad_perm:[2,3,0,1]")
        self.dpp("v_add_f32", [26, 27], "row_half_mirror")
        self.swapred("v_add_f32", [26, 27], [16, 17], 16)
        self.swapred("v_add_f32", [26, 27], [16, 17], 32)
        a(f"""
        v_mul_f32 v26, 0x3b000000, v26
        v_mov_b32 v16, 0x3727c5ac
        v_fmac_f32 v16, 0x3b000000, v27
        v_fma_f32 v16, -v26, v26, v16
        v_rsq_f32 v16, v16
        s_waitcnt vmcnt(12)
        v_lshlrev_b32 v20, 16, v24
        v_and_b32 v21, 0xffff0000, v24
        v_lshlrev_b32 v22, 16, v25
        v_and_b32 v23, 0xffff0000, v25
        """)
        for i in range(4):
            a(f"v_sub_f32 v{20+i}, v{20+i}, v26")
        for i in range(4):
            a(f"v_mul_f32 v{20+i}, v{20+i}, v16")
        a("s_waitcnt vmcnt(8) lgkmcnt(0)")
        self.stamp(1)
        a(f"""
        s_barrier
        ds_read_b128 v[44:47], v15
        """)
        for s in range(2):
            for blk in range(2):
                for u in range(2):
                    a(f"ds_read_b64_tr_b16 {vr(28 + (s*2+blk)*4 + 2*u, 2)}, v{13+blk} offset:{s*4096 + u*2048}")
            if s == 0:
                a("ds_read_b128 v[48:51], v15 offset:64")
        a(f"""
        s_add_u32 {sTAG}, {sTAG}, 0x{TAGC:x}
        v_mov_b32 v62, {sTAG}
        v_mov_b32 v63, {sTAG}
        s_waitcnt lgkmcnt(7)
        v_mfma_f32_16x16x32_bf16 v[52:55], v[28:31], v[44:47], 0
        s_waitcnt lgkmcnt(5)
        v_mfma_f32_16x16x32_bf16 v[56:59], v[32:35], v[44:47], v[56:59]
        s_waitcnt lgkmcnt(2)
        v_mfma_f32_16x16x32_bf16 v[52:55], v[36:39], v[48:51], v[52:55]
        s_waitcnt lgkmcnt(0)
        v_mfma_f32_16x16x32_bf16 v[56:59], v[40:43], v[48:51], v[56:59]
        s_mov_b64 exec, s[96:97]
        v_pk_fma_f32 v[52:53], v[20:21], v[56:57], v[52:53]
        v_pk_fma_f32 v[54:55], v[22:23], v[58:59], v[54:55]
        v_cvt_pk_bf16_f32 v60, v52, v53
        v_cvt_pk_bf16_f32 v61, v54, v55
        buffer_store_dwordx4 v[60:63], v5, {WS}, s32 offen sc1
        s_mov_b64 exec, -1
        """)
        self.stamp(2)
        a(f"""
        s_branch A_STREAM
        A_W23:
        s_cmp_eq_u32 {sW}, 3
        s_cbranch_scc1 A_W3
        v_lshrrev_b32 v5, 5, v0
        v_and_b32 v6, 31, v0
        v_lshlrev_b32 v7, 2, v6
        v_lshl_add_u32 v7, v5, 10, v7
        s_lshl_b32 s32, s61, 7
        s_waitcnt lgkmcnt(0)
        """)
        self.srd(R3, 22, 2048)
        a(f"""
        buffer_load_dword v16, v7, {R3}, s32 offen
        s_load_dword {sTAG}, s[30:31], 0
        """)
        self.srd(WS, 30, 0x10000000)
        self.h3clear()
        a(f"""
        v_lshlrev_b32 v8, 6, v2
        v_bfe_u32 v9, v0, 1, 2
        v_lshl_add_u32 v8, v9, 4, v8
        v_and_b32 v9, 8, v0
        v_add_u32 v8, v8, v9
        v_and_b32 v9, 1, v0
        v_lshl_add_u32 v8, v9, 2, v8
        v_add_u32 v8, {SIL}, v8
        s_waitcnt vmcnt(8)
        """)
        self.silu([16], 20)
        a(f"""
        ds_write_b32 v8, v16
        s_branch A_W23B
        A_W3:
        s_lshl_b32 s32, {sID}, 11
        s_add_u32 s32, s32, {SB}
        s_waitcnt lgkmcnt(0)
        """)
        self.srd(WS, 30, 0x10000000)
        a(f"""
        buffer_store_dwordx4 v[64:67], v1, {WS}, s32 offen sc1
        buffer_store_dwordx4 v[64:67], v1, {WS}, s32 offen offset:1024 sc1
        s_load_dword {sTAG}, s[30:31], 0
        """)
        self.h3clear()
        a(f"""
        s_waitcnt vmcnt(8)
        A_W23B:
        s_waitcnt lgkmcnt(0)
        """)
        self.stamp(1)
        a(f"""
        s_barrier
        s_add_u32 {sTAG}, {sTAG}, 0x{TAGC:x}
        A_STREAM:
        """)
        self.srd(R4, 6, 1 << 24)
        a(f"""
        s_lshl_b32 s32, {sID}, 17
        s_lshl_b32 s33, {sW}, 15
        s_add_u32 s32, s32, s33
        """)
        fk = lambda k: ((k & 7) << 1) | ((k >> 3) & 1)
        for k in range(32):
            if k % 4 == 0:
                a(f"s_add_u32 m0, s33, {k*1024}")
            if k == 16:
                a("s_add_u32 s32, s32, 16384")
            if k < 16:
                a(f"v_xor_b32 v{70+k}, {fk(k)*16 + (k & ~3)*1024}, v1")
            a(f"buffer_load_dwordx4 v{70+(k&15)}, {R4}, s32 offen offset:{(k&3)*1024} nt lds")
        self.stamp(3)
        self.srd(R1, 12, 1 << 22)
        a(f"""
        v_and_b32 v4, 31, v0
        v_lshrrev_b32 v5, 5, v0
        v_and_b32 v6, 7, v0
        v_bfe_u32 v7, v0, 3, 1
        v_lshl_or_b32 v6, v6, 1, v7
        v_xor_b32 v6, v6, v5
        v_lshlrev_b32 v6, 4, v6
        v_lshl_add_u32 v6, v4, 10, v6
        v_add_u32 v69, s33, v6
        v_xor_b32 v6, v3, v5
        v_lshlrev_b32 v6, 4, v6
        v_lshl_add_u32 v6, v4, 8, v6
        v_add_u32 v70, {Q}, v6
        """)
        for i in range(1, 8):
            a(f"v_xor_b32 v{70+i}, {32*i}, v70")
        a(f"""
        v_bfe_u32 v6, v0, 2, 3
        v_lshl_add_u32 v7, v5, 4, v6
        v_lshlrev_b32 v7, 10, v7
        v_lshl_add_u32 v7, v6, 5, v7
        v_and_b32 v6, 3, v0
        v_lshl_add_u32 v7, v6, 3, v7
        s_lshl_b32 s32, {sW}, 8
        v_add_u32 v78, s32, v7
        v_xor_b32 v6, v3, v2
        v_lshlrev_b32 v6, 4, v6
        v_lshl_add_u32 v124, v2, 8, v6
        v_xor_b32 v125, 64, v124
        v_xor_b32 v126, 128, v124
        v_xor_b32 v127, 192, v124
        v_lshlrev_b32 v6, 4, v3
        v_lshl_add_u32 v82, v2, 13, v6
        s_lshl_b32 s32, {sW}, 2
        s_add_u32 s32, s32, {MX}
        v_lshlrev_b32 v6, 4, v4
        v_add_u32 v8, s32, v6
        v_add_u32 v9, {MX}, v6
        s_lshl_b32 s32, {sW}, 11
        s_add_u32 s32, s32, {PB}
        v_add_u32 v10, s32, v1
        v_lshlrev_b32 v6, 4, v3
        v_lshl_add_u32 v6, v2, 9, v6
        v_add_u32 v11, {PB}, v6
        v_lshlrev_b32 v12, 10, v0
        s_lshr_b32 s60, {sID}, 6
        s_lshl2_add_u32 s60, s60, {sW}
        s_lshl_b32 s60, s60, 13
        s_add_u32 s60, s60, {H2}
        s_and_b32 s63, {sID}, 3
        s_lshl2_add_u32 s63, s63, {sW}
        s_lshl_b32 s63, s63, 18
        s_lshr_b32 s32, {sID}, 2
        s_lshl_b32 s32, s32, 8
        s_add_u32 s63, s63, s32
        s_lshl2_add_u32 s61, s61, {sW}
        s_lshl_b32 s61, s61, 7
        s_add_u32 s61, s61, {FLAG}
        s_add_u32 s2, s61, 64
        s_mov_b32 s0, {sTAG}
        s_mov_b32 s1, {sTAG}
        s_movk_i32 {sCNT}, {NPOLL}
        A_FPOLL:
        s_buffer_load_dwordx16 s[4:19], {WS}, s61 glc
        s_buffer_load_dwordx16 s[20:35], {WS}, s2 glc
        s_sub_u32 {sCNT}, {sCNT}, 1
        s_cbranch_scc1 A_FTIME
        s_waitcnt lgkmcnt(0)
        """)
        for i in range(16):
            a(f"s_cmp_lg_u64 s[{4+2*i}:{5+2*i}], s[0:1]\ns_cbranch_scc1 A_FPOLL")
        a(f"""
        A_FTIME:
        s_waitcnt lgkmcnt(0)
        s_movk_i32 {sCNT}, 2000
        A_QDMA:
        """)
        self.stamp(4)
        a(f"""
        s_lshl_b32 s32, {sW}, 13
        s_add_u32 m0, s32, {Q}
        s_add_u32 s33, s60, 4096
        """)
        for j in range(8):
            if j == 4:
                a(f"s_add_u32 m0, s32, {Q + 4096}")
            a(f"buffer_load_dwordx4 v{124+(j&3)}, {WS}, {'s60' if j < 4 else 's33'} offen offset:{(j&3)*1024} sc1 lds")
        a("s_waitcnt vmcnt(8)")
        self.stamp(5)
        for i in range(8):
            if i:
                a(f"v_xor_b32 v{79+(i&1)}, {32*i}, v69")
            for q in range(4):
                a(f"ds_read_b128 {ar((q*8+i)*4)}, v{69 if i == 0 else 79+(i&1)} offset:{q*256}")
        a("v_mov_b32 v81, 0\ns_mov_b32 s32, s63\ns_waitcnt vmcnt(0)")
        self.stamp(6)
        a("s_barrier")
        D, NS = 4, 5
        bs = lambda s: 84 + 4 * (s % NS)
        rdB = lambda s: f"ds_read_b128 {vr(bs(s))}, v{70+(s&7)} offset:{(s>>3)*8192}"
        for s in range(D):
            a(rdB(s))
        for s in range(32):
            if s < D:
                n = (D - 1 - s) + 3 * s
            else:
                n = 2 + sum(3 if t + D < 32 else 2 for t in range(s - D + 1, s))
            a(f"s_waitcnt lgkmcnt({n})")
            a(f"v_mfma_f32_32x32x16_bf16 v[108:123], {ar(4*s)}, {vr(bs(s))}, {'0' if s == 0 else 'v[108:123]'}")
            kwh, j, u = s >> 4, (s >> 1) & 7, s & 1
            a(f"v_xor_b32 v{79+u}, {j*32 + u*16 + kwh*65536}, v78")
            if s + D < 32:
                a(rdB(s + D))
            for kl in range(2):
                kw = 2 * kwh + kl
                a(f"ds_read_b64_tr_b16 {ar(128 + (kw*8+j)*4 + 2*u, 2)}, v{79+u} offset:{u*8192 + kl*32768}")
            a(f"v_max3_u32 v81, v81, v{bs(s)}, v{bs(s)+2}")
            if s < 8:
                a(f"buffer_load_dwordx4 {vr(128+4*s)}, v82, {R1}, s32 offen nt")
                a("s_add_u32 s32, s32, 32768")
            if s == 20:
                a("s_barrier")
        a(f"""
        v_cmp_eq_u32 vcc, -1, v81
        s_cbranch_vccnz A_REDO
        A_QOK:
        """)
        self.stamp(7)
        a("v_max3_f32 v4, v108, v109, v110\nv_max3_f32 v5, v111, v112, v113")
        a("v_max3_f32 v4, v4, v114, v115\nv_max3_f32 v5, v5, v116, v117")
        a("v_max3_f32 v4, v4, v118, v119\nv_max3_f32 v5, v5, v120, v121")
        a("v_max3_f32 v4, v4, v122, v123\nv_max_f32 v4, v4, v5")
        self.swapred("v_max_f32", [4], [5], 32)
        a(f"""
        ds_write_b32 v8, v4
        s_waitcnt lgkmcnt(0)
        s_barrier
        ds_read_b128 v[4:7], v9
        s_waitcnt lgkmcnt(0)
        v_max3_f32 v4, v4, v5, v6
        v_max_f32 v14, v4, v7
        """)
        for st in range(2):
            for i in range(8):
                a(f"v_sub_f32 v{108+8*st+i}, v{108+8*st+i}, v14")
            for i in range(8):
                a(f"v_exp_f32 v{108+8*st+i}, v{108+8*st+i}")
            for i in range(4):
                a(f"v_cvt_pk_bf16_f32 v{84+4*st+i}, v{108+8*st+2*i}, v{109+8*st+2*i}")
            a(f"ds_write_b128 v10, {vr(84+4*st)} offset:{st*1024}")
        a("s_waitcnt lgkmcnt(0)\ns_barrier")
        self.stamp(8)
        for ht in range(2):
            for kw in range(4):
                a(f"ds_read_b128 {vr(160+(ht*4+kw)*4)}, v11 offset:{kw*2048 + ht*256}")
        a(f"""
        s_mov_b32 s33, 0x3f803f80
        v_mov_b32 v15, 0
        v_mov_b32 v16, 0
        s_lshl_b32 s34, {sW}, 3
        s_lshl_b32 s96, 0xff, s34
        s_mov_b32 s97, 0
        s_lshl_b32 s35, {sID}, 3
        s_add_u32 s35, s35, {ML}
        s_mov_b32 s34, s62
        """)
        side = []
        for ht in range(2):
            for i in range(16):
                side.append(f"v_dot2c_f32_bf16 v{15+ht}, s33, v{160+ht*16+i}")
        side += ["s_nop 0", "v_permlane16_swap_b32 v15, v16", "v_add_f32 v15, v15, v16", "v_mov_b32 v16, v15", "s_nop 0",
                 "v_permlane32_swap_b32 v15, v16", "v_add_f32 v15, v15, v16",
                 f"s_mov_b64 exec, s[96:97]\nbuffer_store_dwordx2 v[14:15], v12, {WS}, s35 offen sc1\ns_mov_b64 exec, -1"]
        acc = lambda ht, j: 192 + ht * 32 + j * 4
        gr = lambda ht, r: 84 + ht * 16 + r * 4
        late = {}
        for ht in range(2):
            for jp in range(4):
                blk = ht * 4 + jp
                cv = [f"v_cvt_pk_bf16_f32 v{gr(ht, r)+jp}, v{acc(ht, 2*jp)+r}, v{acc(ht, 2*jp+1)+r}" for r in range(4)]
                if jp == 3:
                    nv = []
                    for r in range(4):
                        nv.append(cv[r])
                        st = f"buffer_store_dwordx4 {vr(gr(ht, r))}, v68, {WS}, s34 offen sc1"
                        if not (ht == 1 and r == 3):
                            st += f"\ns_add_u32 s34, s34, {131072 * (13 if r == 3 else 1)}"
                        nv.append(st)
                    cv = nv
                late[blk + 1] = cv
        first = True
        for blk in range(8):
            ht, jp = blk >> 2, blk & 3
            pend = list(late.get(blk, []))
            for kw in range(4):
                if blk == 0:
                    a(f"s_waitcnt lgkmcnt({7-kw})")
                for jj in range(2):
                    j = 2 * jp + jj
                    c = "0" if kw == 0 else vr(acc(ht, j))
                    a(f"v_mfma_f32_16x16x32_bf16 {vr(acc(ht, j))}, {vr(160+(ht*4+kw)*4)}, {ar(128+(kw*8+j)*4)}, {c}")
                    if blk == 0 and kw == 3 and jj == 1:
                        a("s_waitcnt lgkmcnt(0)")
                    n = 2
                    if blk >= 1 and kw >= 2:
                        for _ in range(2):
                            if pend:
                                a(pend.pop(0))
                                n -= 1
                    if blk >= 1:
                        for _ in range(n):
                            if side:
                                a(side.pop(0))
            assert not pend
        assert not side
        for x in late[8]:
            a(x)
        self.stamp(9)
        a(f"""
        s_lshl_b32 s32, {sW}, 7
        s_and_b32 s32, s32, 128
        s_lshl_b32 s33, {sW}, 13
        v_xor_b32 v4, s32, v1
        v_add_u32 v4, s33, v4
        v_xor_b32 v5, 64, v4
        s_waitcnt vmcnt(9)
        """)
        for j in range(8):
            a(f"ds_write_b128 v{4+(j>>2)}, {vr(128+4*j)} offset:{j*1024}")
        a(f"""
        s_and_b32 s32, {sW}, 1
        s_lshl_b32 s33, s32, 3
        v_xor_b32 v6, s33, v0
        v_lshlrev_b32 v6, 3, v6
        s_lshr_b32 s34, {sW}, 1
        s_lshr_b32 s35, {sID}, 2
        s_lshl1_add_u32 s35, s35, s34
        s_lshl_b32 s35, s35, 9
        s_add_u32 s35, s35, {ML}
        s_lshl3_add_u32 s34, s34, s32
        s_lshl_b32 s34, s34, 11
        s_lshl_b32 s32, {sID}, 15
        s_add_u32 s34, s34, s32
        s_add_u32 s34, s34, {H3}
        v_lshlrev_b32 v7, 4, v3
        v_lshl_add_u32 v7, v2, 12, v7
        v_bfe_u32 v8, v0, 2, 2
        v_xor_b32 v9, {sW}, v8
        v_lshlrev_b32 v9, 6, v9
        v_lshl_add_u32 v9, v8, 12, v9
        v_lshl_add_u32 v9, v2, 8, v9
        v_and_b32 v8, 3, v0
        v_lshl_add_u32 v9, v8, 4, v9
        v_mul_u32_u24 v10, 288, v8
        v_lshl_add_u32 v10, v2, 4, v10
        s_mul_i32 s32, {sW}, 288
        v_lshlrev_b32 v11, 4, v3
        v_lshl_add_u32 v11, v2, 3, v11
        v_add_u32 v11, s32, v11
        v_and_b32 v12, 1, v0
        v_lshlrev_b32 v12, 4, v12
        s_mov_b32 s32, 0xffff
        v_lshlrev_b32 v12, v12, s32
        v_lshrrev_b32 v13, 1, v3
        """)
        for i in range(4):
            a(f"v_cmp_eq_u32 vcc, {i}, v13\nv_cndmask_b32 v{20+i}, 0, v12, vcc")
        a(f"""
        v_bfe_u32 v12, v0, 1, 1
        v_lshlrev_b32 v12, 8, v12
        v_lshl_add_u32 v12, v2, 4, v12
        s_lshl_b32 s60, {sID}, 9
        s_lshl_b32 s32, {sW}, 6
        s_add_u32 s60, s60, s32
        s_add_u32 s60, s60, {H3B}
        """)
        self.premask(96, 0x0005000500050005)
        a("s_waitcnt lgkmcnt(0)\ns_barrier")
        for s in range(4):
            for t in range(2):
                for u in range(2):
                    a(f"ds_read_b64_tr_b16 {vr(128+(s*2+t)*4+2*u, 2)}, v9 offset:{u*16384 + s*1024 + t*8}")
        self.poll(f"buffer_load_dwordx2 v[16:17], v6, {WS}, s35 offen sc1", self.sent([16], 18))
        self.stamp(10)
        oloads = "\n".join(f"buffer_load_dwordx4 {vr(160+4*j)}, v7, {WS}, s34 offen offset:{j*256} sc1" for j in range(8))
        a(oloads)
        a("v_mov_b32 v18, v16")
        for c in ("quad_perm:[1,0,3,2]", "quad_perm:[2,3,0,1]", "row_half_mirror", "row_mirror"):
            self.dpp("v_max_f32", [18], c)
        self.swapred("v_max_f32", [18], [19], 16)
        self.swapred("v_max_f32", [18], [19], 32)
        a("v_sub_f32 v16, v16, v18\nv_exp_f32 v16, v16\nv_mul_f32 v18, v16, v17")
        for c in ("quad_perm:[1,0,3,2]", "quad_perm:[2,3,0,1]", "row_half_mirror", "row_mirror"):
            self.dpp("v_add_f32", [18], c)
        self.swapred("v_add_f32", [18], [19], 16)
        self.swapred("v_add_f32", [18], [19], 32)
        a("v_rcp_f32 v18, v18\nv_mul_f32 v16, v16, v18\nv_cvt_pk_bf16_f32 v16, v16, v16")
        for j in range(8):
            for i in range(4):
                a(f"v_and_b32_dpp v{192+4*j+i}, v16, v{20+i} row_newbcast:{j} row_mask:0xf bank_mask:0xf")
        chk = self.sent([160 + 4 * j for j in range(8)], 18)
        a(f"""
        s_movk_i32 {sCNT}, {NPOLL}
        A_OWAIT:
        s_waitcnt vmcnt(0)
        {chk}
        s_cbranch_vccnz A_OREDO
        A_OOK:
        """)
        self.stamp(11)
        for j in range(8):
            c = "0" if j < 2 else vr(24 + 4 * (j & 1))
            a(f"v_mfma_f32_16x16x32_bf16 {vr(24+4*(j&1))}, {vr(192+4*j)}, {vr(160+4*j)}, {c}")
        a(f"""
        s_mov_b32 exec_hi, 0
        v_pk_add_f32 v[24:25], v[24:25], v[28:29]
        v_pk_add_f32 v[26:27], v[26:27], v[30:31]
        v_cvt_pk_bf16_f32 v24, v24, v25
        v_cvt_pk_bf16_f32 v25, v26, v27
        ds_write_b64 v11, v[24:25] offset:{XU}
        s_mov_b32 exec_hi, -1
        s_waitcnt lgkmcnt(0)
        s_barrier
        """)
        for s in range(4):
            a(f"ds_read_b128 {vr(32+4*s)}, v10 offset:{XU + s*64}")
        for s in range(4):
            a(f"s_waitcnt lgkmcnt({3-s})")
            for t in range(2):
                c = "0" if s == 0 else vr(24 + 4 * t)
                a(f"v_mfma_f32_16x16x32_bf16 {vr(24+4*t)}, {vr(128+(s*2+t)*4)}, {vr(32+4*s)}, {c}")
        self.dpp("v_add_f32", range(24, 32), "quad_perm:[1,0,3,2]")
        a("s_mov_b64 exec, s[96:97]")
        for i in range(4):
            a(f"v_cvt_pk_bf16_f32 v{32+i}, v{24+2*i}, v{25+2*i}")
        a(f"buffer_store_dwordx4 v[32:35], v12, {WS}, s60 offen sc1")
        self.stamp(12)
        a(f"""
        s_branch FIN
        A_REDO:
        s_sub_u32 {sCNT}, {sCNT}, 1
        s_cbranch_scc1 A_QOK
        s_waitcnt lgkmcnt(0)
        s_barrier
        s_branch A_QDMA
        A_OREDO:
        s_sub_u32 {sCNT}, {sCNT}, 1
        s_cbranch_scc1 A_OOK
        {oloads}
        s_branch A_OWAIT
        """)

    def tagpoll(self, voff, soff):
        self.poll(f"buffer_load_dwordx3 v[80:82], {voff}, {WS}, {soff} offen sc1\n"
                  f"buffer_load_dwordx3 v[84:86], {voff}, {WS}, {soff} offen offset:1024 sc1",
                  f"v_cmp_ne_u32 s[32:33], {sTAG}, v82\nv_cmp_ne_u32 vcc, {sTAG}, v86\ns_or_b64 vcc, vcc, s[32:33]")

    def smallgemm(self, xb, wbase):
        a = self.a
        for s in range(4):
            a(f"ds_read_b128 {vr(88+4*s)}, v9 offset:{xb - X1 + s*1024}")
        for s in range(4):
            a(f"s_waitcnt lgkmcnt({3-s})")
            for t in range(2):
                c = "0" if s == 0 else vr(104 + 4 * t)
                a(f"v_mfma_f32_16x16x32_bf16 {vr(104+4*t)}, {vr(wbase+(s*2+t)*4)}, {vr(88+4*s)}, {c}")
        for t in range(2):
            for r in range(4):
                a(f"v_add_f32_dpp v{112+r}, v{104+4*t+r}, v{104+4*t+r} row_ror:8 row_mask:0xf bank_mask:{'0x3' if t == 0 else '0xc'}")
        self.dpp("v_add_f32", range(112, 116), "quad_perm:[2,3,0,1]")

    def wrole(self):
        a = self.a
        a(f"""
        WROLE:
        s_lshr_b32 s60, {sID}, 2
        s_and_b32 s61, {sID}, 3
        s_lshl2_add_u32 s62, s61, {sW}
        s_lshl_b32 s32, s62, 18
        s_lshl_b32 s33, s60, 8
        s_add_u32 s32, s32, s33
        s_lshl_b32 s33, {sW}, 13
        s_mov_b32 m0, s33
        v_lshlrev_b32 v4, 2, v2
        v_xor_b32 v4, v4, v3
        v_lshlrev_b32 v4, 4, v4
        v_lshl_add_u32 v4, v2, 13, v4
        v_xor_b32 v5, v2, v3
        v_lshlrev_b32 v5, 4, v5
        v_lshl_add_u32 v5, v2, 13, v5
        v_xor_b32 v6, 64, v5
        v_xor_b32 v7, 128, v5
        v_xor_b32 v8, 192, v5
        s_mov_b32 s34, s32
        s_waitcnt lgkmcnt(0)
        """)
        self.srd(R1, 8, 1 << 22)
        self.srd(R2, 10, 1 << 22)
        for m, (R, so) in enumerate(((R1, "s32"), (R2, "s34"))):
            for j in range(8):
                if j == 4 or (m == 1 and j == 0):
                    a(f"s_add_u32 m0, s33, {m*WK + (j>>2)*4096}")
                v = 4 if m == 0 else 5 + (j >> 1)
                a(f"buffer_load_dwordx4 v{v}, {R}, {so} offen offset:{(j&3)*1024} nt lds")
                if j < 7:
                    a(f"s_add_u32 {so}, {so}, {32768 - 1024 + (4096 if j == 3 else 0)}")
        a(f"s_load_dword {sTAG}, s[30:31], 0")
        self.srd(WS, 30, 0x10000000)
        self.stamp(1)
        a(f"""
        v_bfe_u32 v4, v0, 2, 2
        v_xor_b32 v5, {sW}, v4
        v_lshlrev_b32 v5, 6, v5
        v_lshrrev_b32 v6, 2, v0
        v_lshl_add_u32 v5, v6, 8, v5
        v_and_b32 v6, 3, v0
        v_lshl_add_u32 v10, v6, 4, v5
        v_lshl_add_u32 v5, v4, 3, v6
        v_lshlrev_b32 v5, 8, v5
        v_xor_b32 v7, v2, v3
        v_lshl_add_u32 v5, v7, 4, v5
        s_add_u32 s32, s33, {WK}
        v_add_u32 v11, s32, v5
        v_add_u32 v9, {X1}, v1
        s_lshl_b32 s32, {sW}, 10
        s_add_u32 s32, s32, {X1}
        v_bfe_u32 v4, v0, 1, 2
        v_lshlrev_b32 v4, 8, v4
        v_and_b32 v5, 1, v0
        v_lshl_add_u32 v4, v5, 6, v4
        v_lshl_add_u32 v4, v2, 4, v4
        v_and_b32 v6, 8, v0
        v_add3_u32 v12, v4, v6, s32
        v_bfe_u32 v4, v0, 3, 2
        v_lshlrev_b32 v4, 8, v4
        v_lshl_add_u32 v4, v5, 4, v4
        v_bfe_u32 v6, v0, 1, 1
        v_lshl_add_u32 v4, v6, 6, v4
        v_and_b32 v6, 32, v0
        v_add_u32 v4, v4, v6
        v_bfe_u32 v6, v0, 2, 1
        v_lshl_add_u32 v4, v6, 3, v4
        v_add_u32 v13, s32, v4
        v_lshrrev_b32 v4, 2, v0
        v_lshl_add_u32 v4, v4, 1, v5
        v_lshlrev_b32 v14, 4, v4
        v_lshlrev_b32 v4, 15, v6
        v_lshl_add_u32 v4, v2, 4, v4
        v_and_b32 v6, 8, v0
        v_add_u32 v15, v4, v6
        v_lshlrev_b32 v120, 9, v0
        s_lshl_b32 s62, s62, 11
        s_add_u32 s62, s62, {H1}
        s_lshl2_add_u32 s63, s60, {sW}
        s_lshl_b32 s63, s63, 11
        s_add_u32 s63, s63, {HQ}
        s_lshl_b32 s34, s61, 9
        s_add_u32 s34, s34, s63
        s_lshl_b32 s35, s61, 5
        s_add_u32 s35, s35, s60
        s_lshl_b32 s2, s35, 2
        s_add_u32 s2, s2, {FLAG}
        s_lshl2_add_u32 s35, s35, {sW}
        s_lshl_b32 s35, s35, 6
        s_add_u32 s35, s35, {H2}
        s_lshl_b32 s0, {sW}, 1
        s_lshl_b32 s0, 3, s0
        s_mov_b32 s1, 0
        """)
        self.premask(96, 0x3333333333333333)
        self.premask(98, 0x1111111111111111)
        a(f"""
        s_waitcnt vmcnt(8) lgkmcnt(0)
        s_add_u32 {sTAG}, {sTAG}, 0x{TAGC:x}
        """)
        self.stamp(2)
        a(f"""
        s_barrier
        v_mov_b32 v118, {sTAG}
        v_mov_b32 v119, {sTAG}
        """)
        for s in range(4):
            for t in range(2):
                for u in range(2):
                    a(f"ds_read_b64_tr_b16 {vr(16+(s*2+t)*4+2*u, 2)}, v10 offset:{s*8192 + u*4096 + t*8}")
        self.tagpoll("v1", "s62")
        self.stamp(3)
        a(f"""
        ds_write_b64 v12, v[80:81]
        ds_write_b64 v12, v[84:85] offset:128
        s_waitcnt lgkmcnt(0)
        s_barrier
        """)
        self.smallgemm(X1, 16)
        a(f"""
        s_mov_b64 exec, s[96:97]
        v_cvt_pk_bf16_f32 v116, v112, v113
        v_cvt_pk_bf16_f32 v117, v114, v115
        buffer_store_dwordx4 v[116:119], v14, {WS}, s34 offen sc1
        s_mov_b64 exec, -1
        """)
        self.stamp(4)
        for s in range(4):
            if s:
                a(f"v_xor_b32 v4, {64*s}, v11")
            for t in range(2):
                a(f"ds_read_b128 {vr(48+(s*2+t)*4)}, v{4 if s else 11} offset:{t*1024}")
        self.tagpoll("v1", "s63")
        self.stamp(5)
        flag = f"s_mov_b64 exec, s[0:1]\nbuffer_store_dword v118, v120, {WS}, s2 offen sc1\ns_mov_b64 exec, -1"
        a(f"""
        ds_write_b64 v13, v[80:81] offset:{X2 - X1}
        ds_write_b64 v13, v[84:85] offset:{X2 - X1 + 128}
        s_waitcnt lgkmcnt(0)
        s_barrier
        """)
        if self.opt.get("earlyflag"):
            a(flag)
        self.smallgemm(X2, 48)
        self.dpp("v_add_f32", range(112, 116), "quad_perm:[1,0,3,2]")
        a("s_mov_b64 exec, s[98:99]")
        for r in range(4):
            a(f"v_mul_f32 v{112+r}, 0x{QSCALE:x}, v{112+r}")
        a(f"""
        v_cvt_pk_bf16_f32 v116, v112, v113
        v_cvt_pk_bf16_f32 v117, v114, v115
        buffer_store_dwordx2 v[116:117], v15, {WS}, s35 offen sc1
        """)
        if not self.opt.get("earlyflag"):
            a(flag)
        else:
            a("s_mov_b64 exec, -1")
        self.stamp(6)
        a(f"""
        s_and_b32 s60, {sID}, 15
        s_and_b32 s61, {sID}, 3
        s_lshl2_add_u32 s61, {sXCD}, s61
        s_cmp_lt_u32 s60, 8
        s_cbranch_scc1 W_SETO
        s_cmp_lt_u32 s60, 12
        s_cbranch_scc1 W_SETM
        s_cmp_ge_u32 s61, 28
        s_cbranch_scc1 FIN
        """)
        self.srd(R1, 18, 512 * 3584)
        a(f"""
        s_movk_i32 s62, 3584
        s_lshl_b32 s32, s61, 7
        s_branch W_LOAD
        W_SETM:
        """)
        self.srd(R1, 24, 512 * 6144)
        a(f"""
        s_movk_i32 s62, 6144
        s_lshl_b32 s32, s61, 7
        s_add_u32 s32, s32, 2048
        s_branch W_LOAD
        W_SETO:
        """)
        self.srd(R1, 14, 1 << 22)
        a(f"""
        s_movk_i32 s62, 1024
        s_lshl_b32 s32, {sXCD}, 19
        s_lshl_b32 s33, s60, 7
        s_add_u32 s32, s32, s33
        W_LOAD:
        s_lshl_b32 s33, {sW}, 7
        s_mul_i32 s33, s33, s62
        s_add_u32 s32, s32, s33
        s_lshl_b32 s33, s62, 3
        s_sub_u32 s33, s33, 1024
        s_add_u32 s63, s33, 4096
        s_lshl_b32 s34, {sW}, 14
        v_lshrrev_b32 v4, 3, v0
        v_mul_lo_u32 v4, v4, s62
        v_and_b32 v5, 1, v2
        v_lshlrev_b32 v5, 1, v5
        v_and_b32 v6, 7, v0
        v_xor_b32 v5, v5, v6
        v_lshl_add_u32 v6, v5, 4, v4
        v_xor_b32 v5, 4, v5
        v_lshl_add_u32 v7, v5, 4, v4
        """)
        for j in range(16):
            if j % 4 == 0:
                a(f"s_add_u32 m0, s34, {W2R + j*1024}")
            a(f"buffer_load_dwordx4 v{6+(j&1)}, {R1}, s32 offen offset:{(j&3)*1024} nt lds")
            if j < 15:
                a(f"s_add_u32 s32, s32, {'s63' if j % 4 == 3 else 's33'}")
        a(f"""
        v_bfe_u32 v4, v0, 2, 2
        v_lshl_add_u32 v5, v2, 3, v4
        v_lshlrev_b32 v5, 7, v5
        v_bfe_u32 v6, v0, 3, 2
        v_xor_b32 v6, {sW}, v6
        v_lshl_add_u32 v5, v6, 5, v5
        v_and_b32 v6, 3, v0
        v_lshl_add_u32 v5, v6, 3, v5
        v_add_u32 v10, {W2R}, v5
        s_cmp_lt_u32 s60, 8
        s_cbranch_scc1 W_WAIT
        s_cmp_lt_u32 s60, 12
        s_cbranch_scc1 W_PREM
        """)
        self.srd(R2, 20, 1792 * 1024)
        a(f"""
        s_lshl_b32 s32, s61, 16
        s_add_u32 s32, s32, s34
        v_xor_b32 v5, 16, v1
        v_xor_b32 v6, 32, v1
        v_xor_b32 v7, 48, v1
        """)
        for j in range(16):
            if j % 4 == 0:
                a(f"s_add_u32 m0, s34, {j*1024}")
                if j:
                    a("s_add_u32 s32, s32, 4096")
            a(f"buffer_load_dwordx4 v{[1, 5, 6, 7][j&3]}, {R2}, s32 offen offset:{(j&3)*1024} nt lds")
        a(f"""
        s_branch W_WAIT
        W_PREM:
        """)
        self.srd(R3, 22, 2048)
        a(f"""
        s_lshl_b32 s32, {sW}, 9
        v_lshlrev_b32 v4, 3, v0
        buffer_load_dwordx2 v[16:17], v4, {R3}, s32 offen
        s_lshr_b32 s33, {sW}, 1
        s_lshl_b32 s33, s33, 5
        s_add_u32 s32, s32, s33
        s_add_u32 s32, s32, {SL}
        v_add_u32 v4, s32, v4
        s_waitcnt vmcnt(0)
        """)
        self.silu([16, 17], 20)
        a(f"""
        ds_write_b64 v4, v[16:17]
        W_WAIT:
        s_waitcnt vmcnt(0) lgkmcnt(0)
        """)
        self.stamp(7)
        a("s_barrier")
        for s in range(16):
            for u in range(2):
                a(f"ds_read_b64_tr_b16 {ar(4*s+2*u, 2)}, v10 offset:{s*4096 + u*512}")
        a(f"""
        s_cmp_lt_u32 s60, 8
        s_cbranch_scc0 W_NOTO
        """)
        self.orole()
        a(f"""
        W_NOTO:
        v_and_b32 v4, 3, v0
        v_mul_u32_u24 v4, 2112, v4
        v_bfe_u32 v5, v0, 2, 1
        v_mul_u32_u24 v5, 1056, v5
        v_lshl_add_u32 v5, v2, 4, v5
        s_cmp_lt_u32 s60, 12
        s_cbranch_scc1 W_M2
        """)
        self.ffn()
        a("W_M2:")
        self.m2()

    def actgemm(self, addr, fill=None):
        a = self.a
        fill = list(fill or [])
        for s in range(12):
            a(f"ds_read_b128 {vr(128+4*s)}, v{addr} offset:{s*64}")
        for s in range(16):
            a(f"s_waitcnt lgkmcnt({min(11, 15-s)})")
            c = "0" if s < 2 else vr(104 + 4 * (s & 1))
            a(f"v_mfma_f32_16x16x32_bf16 {vr(104+4*(s&1))}, {vr(128+4*s)}, {ar(4*s)}, {c}")
            if s < 4:
                a(f"ds_read_b128 {vr(128+4*(s+12))}, v{addr} offset:{(s+12)*64}")
            for _ in range(3):
                if fill:
                    a(fill.pop(0))
        assert not fill

    def orole(self):
        a = self.a
        a(f"""
        s_lshl2_add_u32 s34, {sXCD}, {sW}
        s_lshl_b32 s34, s34, 11
        s_add_u32 s34, s34, {H3B}
        v_and_b32 v4, 1, v2
        v_lshlrev_b32 v4, 3, v4
        v_lshrrev_b32 v5, 1, v2
        v_or_b32 v4, v4, v5
        v_lshlrev_b32 v4, 4, v4
        v_xor_b32 v4, v4, v1
        s_lshl_b32 s32, {sW}, 11
        s_add_u32 s32, s32, {XO}
        v_add_u32 v11, s32, v4
        v_xor_b32 v12, 32, v11
        v_and_b32 v4, 3, v0
        v_bfe_u32 v5, v0, 2, 1
        v_lshl_add_u32 v6, v4, 1, v5
        v_lshlrev_b32 v6, 8, v6
        v_xor_b32 v4, v4, v2
        v_lshl_add_u32 v6, v4, 4, v6
        v_lshl_add_u32 v6, v5, 7, v6
        v_bfe_u32 v4, v0, 3, 1
        v_lshl_add_u32 v6, v4, 6, v6
        v_add_u32 v13, {XO}, v6
        v_xor_b32 v14, 128, v13
        v_lshlrev_b32 v5, 10, v5
        v_lshl_add_u32 v15, v2, 3, v5
        s_lshl_b32 s35, {sXCD}, 11
        s_lshl2_add_u32 s32, s60, {sW}
        s_lshl_b32 s32, s32, 5
        s_add_u32 s35, s35, s32
        s_add_u32 s35, s35, {H4}
        """)
        self.premask(96, 0x0011001100110011)
        self.poll(f"buffer_load_dwordx4 v[80:83], v1, {WS}, s34 offen sc1\n"
                  f"buffer_load_dwordx4 v[84:87], v1, {WS}, s34 offen offset:1024 sc1", self.sent([80, 84], 4))
        self.stamp(8)
        a(f"""
        ds_write_b128 v11, v[80:83]
        ds_write_b128 v12, v[84:87] offset:1024
        s_waitcnt lgkmcnt(0)
        s_barrier
        """)
        for sp in range(8):
            a(f"ds_read_b128 {vr(128+4*sp)}, v{13+(sp&1)} offset:{(sp>>1)*2048}")
        for sp in range(8):
            a(f"s_waitcnt lgkmcnt({7-sp})")
            for k in range(2):
                c = "0" if sp == 0 else vr(104 + 4 * k)
                a(f"v_mfma_f32_16x16x32_bf16 {vr(104+4*k)}, {ar(4*(2*sp+k))}, {vr(128+4*sp)}, {c}")
        for r in range(4):
            a(f"v_add_f32_dpp v{112+r}, v{108+r}, v{104+r} row_ror:8 row_mask:0xf bank_mask:0xf")
        self.dpp("v_add_f32", range(112, 116), "quad_perm:[1,0,3,2]")
        self.dpp("v_add_f32", range(112, 116), "quad_perm:[2,3,0,1]")
        a(f"""
        s_mov_b64 exec, s[96:97]
        v_cvt_pk_bf16_f32 v116, v112, v113
        v_cvt_pk_bf16_f32 v117, v114, v115
        buffer_store_dwordx2 v[116:117], v15, {WS}, s35 offen sc1
        """)
        self.stamp(9)
        a("s_branch FIN")

    def selmat(self, esel, on):
        a = self.a
        a(f"""
        v_and_b32 v24, 1, v{esel}
        v_lshlrev_b32 v24, 4, v24
        s_movk_i32 s32, 0x3f80
        v_lshlrev_b32 v24, v24, s32
        v_lshrrev_b32 v25, 1, v{esel}
        v_lshl_or_b32 v25, v{on}, 2, v25
        """)
        for i in range(4):
            a(f"v_cmp_eq_u32 vcc, {i}, v25\nv_cndmask_b32 v{20+i}, 0, v24, vcc")

    def ffn(self):
        a = self.a
        a(f"""
        s_mov_b32 s32, {YB}
        v_add3_u32 v11, v4, v5, s32
        v_bfe_u32 v4, v0, 2, 2
        v_lshl_add_u32 v5, v2, 3, v4
        v_lshlrev_b32 v5, 10, v5
        v_lshl_add_u32 v5, v4, 4, v5
        v_and_b32 v4, 3, v0
        v_lshl_add_u32 v5, v4, 6, v5
        s_lshl_b32 s33, {sW}, 8
        v_add_u32 v4, s33, v5
        """)
        for tp in range(4):
            if tp:
                a(f"v_xor_b32 v{4+tp}, {16*tp}, v4")
            for th in range(2):
                for s in range(2):
                    for u in range(2):
                        t = 2 * tp + th
                        a(f"ds_read_b64_tr_b16 {ar(64+(t*2+s)*4+2*u, 2)}, v{4+tp} offset:{s*32768 + u*4096 + th*8}")
        self.srd(R2, 4, 2048)
        a(f"""
        v_lshrrev_b32 v4, 5, v0
        v_and_b32 v5, 1, v2
        v_lshl_add_u32 v6, v3, 1, v5
        v_lshlrev_b32 v7, 3, v6
        v_lshl_add_u32 v8, v4, 10, v7
        buffer_load_dwordx2 v[16:17], v8, {R2}, s33 offen
        v_mul_u32_u24 v8, 1056, v4
        s_add_u32 s32, s33, {YB}
        v_add3_u32 v12, v8, v7, s32
        v_lshlrev_b32 v7, 4, v6
        v_lshl_add_u32 v13, v4, 13, v7
        s_lshl_b32 s34, {sW}, 9
        s_add_u32 s34, s34, {M2O}
        s_add_u32 s35, s34, 4096
        v_and_b32 v6, 31, v0
        v_lshlrev_b32 v6, 3, v6
        v_lshl_add_u32 v6, v4, 10, v6
        s_add_u32 s32, s33, {ST}
        v_add_u32 v14, s32, v6
        v_lshlrev_b32 v6, 4, v3
        v_lshl_add_u32 v6, v4, 8, v6
        v_lshl_add_u32 v6, v5, 10, v6
        v_add_u32 v15, {ST}, v6
        v_lshlrev_b32 v6, 4, v3
        v_lshl_add_u32 v26, v2, 10, v6
        s_add_u32 s62, s33, {H4}
        s_add_u32 s63, s62, 4096
        s_add_u32 s0, s62, 8192
        s_add_u32 s1, s62, 12288
        v_mul_u32_u24 v6, 160, v5
        v_lshl_add_u32 v6, v3, 1, v6
        s_lshl_b32 s32, {sW}, 5
        s_add_u32 s32, s32, {AB}
        v_add_u32 v27, s32, v6
        v_bfe_u32 v6, v0, 2, 1
        v_mul_u32_u24 v6, 160, v6
        v_lshl_add_u32 v6, v2, 4, v6
        v_add_u32 v28, {AB}, v6
        v_bfe_u32 v6, v0, 3, 1
        v_mul_u32_u24 v7, 7168, v6
        v_lshl_add_u32 v7, v5, 7, v7
        v_and_b32 v8, 7, v0
        v_lshl_add_u32 v29, v8, 4, v7
        v_xor_b32 v6, v6, v5
        s_mul_i32 s2, {sW}, 14336
        s_lshl_b32 s32, s61, 8
        s_add_u32 s2, s2, s32
        s_add_u32 s2, s2, {H5}
        """)
        self.selmat(8, 6)
        self.poll(f"buffer_load_dwordx4 v[32:35], v13, {WS}, s34 offen sc1\n"
                  f"buffer_load_dwordx4 v[36:39], v13, {WS}, s34 offen offset:2048 sc1\n"
                  f"buffer_load_dwordx4 v[40:43], v13, {WS}, s35 offen sc1", self.sent(range(32, 44), 4))
        self.stamp(8)
        for r in range(4):
            a(f"v_add_f32 v{40+r}, 1.0, v{40+r}")
        a(f"""
        v_cvt_pk_bf16_f32 v4, v40, v41
        v_cvt_pk_bf16_f32 v5, v42, v43
        v_cvt_pk_bf16_f32 v6, v36, v37
        v_cvt_pk_bf16_f32 v7, v38, v39
        ds_write_b64 v12, v[4:5] offset:2112
        ds_write_b64 v12, v[6:7] offset:4224
        v_lshlrev_b32 v40, 16, v4
        v_and_b32 v41, 0xffff0000, v4
        v_lshlrev_b32 v42, 16, v5
        v_and_b32 v43, 0xffff0000, v5
        v_lshlrev_b32 v36, 16, v16
        v_and_b32 v37, 0xffff0000, v16
        v_lshlrev_b32 v38, 16, v17
        v_and_b32 v39, 0xffff0000, v17
        """)
        so = ["s62", "s63", "s0", "s1"]
        self.poll("\n".join(f"buffer_load_dwordx4 {vr(48+4*j)}, v26, {WS}, {so[j]} offen sc1" for j in range(4)),
                  self.sent(range(48, 64, 2), 4))
        self.stamp(9)
        for j in range(4):
            c = "0" if j == 0 else "v[44:47]"
            a(f"v_mfma_f32_16x16x32_bf16 v[44:47], v[20:23], {vr(48+4*j)}, {c}")
        a(f"""
        v_pk_fma_f32 v[36:37], v[32:33], v[44:45], v[36:37]
        v_pk_fma_f32 v[38:39], v[34:35], v[46:47], v[38:39]
        v_pk_mul_f32 v[40:41], v[40:41], v[36:37]
        v_pk_mul_f32 v[42:43], v[42:43], v[38:39]
        v_cvt_pk_bf16_f32 v4, v40, v41
        v_cvt_pk_bf16_f32 v5, v42, v43
        ds_write_b64 v12, v[4:5]
        v_pk_add_f32 v[6:7], v[36:37], v[38:39]
        v_pk_mul_f32 v[8:9], v[36:37], v[36:37]
        v_pk_fma_f32 v[8:9], v[38:39], v[38:39], v[8:9]
        v_add_f32 v6, v6, v7
        v_add_f32 v7, v8, v9
        ds_write_b64 v14, v[6:7]
        s_waitcnt lgkmcnt(0)
        s_barrier
        ds_read_b128 v[32:35], v15
        ds_read_b128 v[36:39], v15 offset:512
        """)
        d = lambda c: [f"v_add_f32_dpp v{r}, v{r}, v{r} {c} row_mask:0xf bank_mask:0xf" for r in (32, 33)] + ["s_nop 0"]
        fill = ["v_pk_add_f32 v[32:33], v[32:33], v[34:35]", "v_pk_add_f32 v[36:37], v[36:37], v[38:39]",
                "v_pk_add_f32 v[32:33], v[32:33], v[36:37]"]
        for c in ("quad_perm:[1,0,3,2]", "quad_perm:[2,3,0,1]", "row_half_mirror", "row_mirror"):
            fill += d(c)
        fill += ["v_mov_b32 v34, v32", "v_mov_b32 v35, v33", "s_nop 0",
                 "v_permlane32_swap_b32 v32, v34", "v_permlane32_swap_b32 v33, v35", "s_nop 0",
                 "v_pk_add_f32 v[32:33], v[32:33], v[34:35]", "v_mov_b32 v34, 0x3727c5ac",
                 "v_mul_f32 v32, 0x3b000000, v32", "v_fmac_f32 v34, 0x3b000000, v33",
                 "v_fma_f32 v34, -v32, v32, v34", "v_rsq_f32 v34, v34"]
        self.actgemm(11, fill)
        a(f"""
        s_mov_b32 exec_hi, 0
        v_pk_add_f32 v[104:105], v[104:105], v[108:109]
        v_add_f32 v106, v106, v110
        v_fma_f32 v104, -v32, v105, v104
        v_fma_f32 v104, v34, v104, v106
        v_max_f32 v104, 0, v104
        v_cvt_pk_bf16_f32 v104, v104, v104
        ds_write_b16 v27, v104
        s_mov_b32 exec_hi, -1
        s_waitcnt lgkmcnt(0)
        s_barrier
        ds_read_b128 v[32:35], v28
        ds_read_b128 v[36:39], v28 offset:64
        """)
        self.stamp(10)
        for s in range(2):
            a(f"s_waitcnt lgkmcnt({1-s})")
            for t in range(8):
                c = "0" if s == 0 else vr(128 + 4 * t)
                a(f"v_mfma_f32_16x16x32_bf16 {vr(128+4*t)}, {vr(32+4*s)}, {ar(64+(t*2+s)*4)}, {c}")
        a("s_mov_b32 exec_hi, 0")
        for i in range(4):
            a(f"v_cvt_pk_bf16_f32 v{40+i}, v{128+8*i}, v{132+8*i}")
        a(f"buffer_store_dwordx4 v[40:43], v29, {WS}, s2 offen sc1")
        self.stamp(11)
        a("s_branch FIN")

    def m2(self):
        a = self.a
        a(f"""
        v_add_u32 v11, {SL}, v5
        v_lshlrev_b32 v4, 2, v3
        v_lshl_add_u32 v12, v2, 13, v4
        s_lshl2_add_u32 s34, s61, {sW}
        s_lshl_b32 s34, s34, 6
        s_add_u32 s34, s34, {M2O}
        s_waitcnt lgkmcnt(0)
        """)
        self.actgemm(11)
        a(f"""
        s_mov_b32 exec_hi, 0
        v_add_f32 v104, v104, v108
        v_cvt_pk_bf16_f32 v104, v104, v104
        v_lshlrev_b32 v104, 16, v104
        buffer_store_dword v104, v12, {WS}, s34 offen sc1
        s_mov_b32 exec_hi, -1
        """)
        self.stamp(8)
        a(f"""
        s_cmp_lt_u32 s61, 24
        s_cbranch_scc1 FIN
        s_cmp_lg_u32 {sW}, 0
        s_cbranch_scc1 FIN
        s_sub_u32 s61, s61, 24
        """)
        self.srd(R2, 4, 2048)
        self.srd(R3, 26, 2048)
        a(f"""
        v_bfe_u32 v4, v0, 3, 1
        v_and_b32 v5, 7, v0
        v_lshl_add_u32 v6, v5, 2, v2
        v_lshlrev_b32 v7, 2, v6
        v_lshl_add_u32 v7, v4, 10, v7
        s_lshl_b32 s33, s61, 7
        buffer_load_dword v16, v7, {R2}, s33 offen
        v_lshlrev_b32 v7, 3, v6
        v_lshl_add_u32 v11, v4, 13, v7
        v_lshl_add_u32 v7, v4, 8, v7
        v_add_u32 v12, {XF}, v7
        v_bfe_u32 v6, v0, 2, 1
        v_lshl_add_u32 v6, v6, 2, v2
        v_and_b32 v7, 3, v0
        v_lshl_add_u32 v6, v6, 3, v7
        v_lshlrev_b32 v8, 2, v6
        v_lshl_add_u32 v13, v4, 13, v8
        v_lshl_add_u32 v8, v4, 8, v8
        v_add_u32 v14, {XF}, v8
        v_lshlrev_b32 v8, 1, v6
        v_lshl_add_u32 v15, v4, 10, v8
        v_lshrrev_b32 v8, 3, v0
        v_lshlrev_b32 v8, 10, v8
        v_lshl_add_u32 v26, v5, 4, v8
        s_lshl_b32 s34, s61, 8
        s_add_u32 s34, s34, {M2O}
        s_add_u32 s35, s34, 6144
        s_add_u32 s62, s33, {H4}
        s_add_u32 s63, s62, 8192
        s_mul_i32 s0, s61, 7168
        s_add_u32 s0, s0, {H5}
        s_add_u32 s1, s0, 4096
        v_bfe_u32 v8, v0, 2, 2
        v_and_b32 v6, 1, v0
        v_lshl_add_u32 v8, v8, 1, v6
        v_bfe_u32 v6, v0, 1, 1
        """)
        self.selmat(8, 6)
        self.poll(f"buffer_load_dwordx2 v[32:33], v11, {WS}, s34 offen sc1\n"
                  f"buffer_load_dword v34, v13, {WS}, s35 offen sc1\n"
                  f"buffer_load_dword v35, v13, {WS}, s35 offen offset:16 sc1", self.sent(range(32, 36), 4))
        a("v_lshlrev_b32 v36, 16, v16\nv_and_b32 v37, 0xffff0000, v16")
        self.poll(f"buffer_load_dwordx4 v[48:51], v26, {WS}, s62 offen sc1\n"
                  f"buffer_load_dwordx4 v[52:55], v26, {WS}, s63 offen sc1", self.sent(range(48, 56, 2), 4))
        self.stamp(9)
        a(f"""
        v_mfma_f32_16x16x32_bf16 v[44:47], v[20:23], v[48:51], 0
        v_mfma_f32_16x16x32_bf16 v[44:47], v[20:23], v[52:55], v[44:47]
        v_pk_fma_f32 v[36:37], v[32:33], v[44:45], v[36:37]
        ds_write_b64 v12, v[36:37]
        s_waitcnt lgkmcnt(0)
        ds_read_b32 v36, v14
        ds_read_b32 v37, v14 offset:16
        s_cmp_lg_u32 s61, 0
        s_cbranch_scc1 W_NOGEN
        s_mov_b64 exec, 1
        buffer_store_dword v118, v0, {WS}, 0 offen sc1
        s_mov_b64 exec, -1
        W_NOGEN:
        """)
        self.poll("\n".join(f"buffer_load_dwordx4 {vr(48+4*j)}, v1, {WS}, {'s0' if j < 4 else 's1'} offen offset:{(j&3)*1024} sc1" for j in range(7)),
                  self.sent(range(48, 76, 4), 4))
        self.stamp(10)
        for j in range(7):
            c = "0" if j < 2 else vr(40 + 4 * (j & 1))
            a(f"v_mfma_f32_16x16x32_bf16 {vr(40+4*(j&1))}, v[20:23], {vr(48+4*j)}, {c}")
        a(f"""
        s_waitcnt lgkmcnt(0)
        v_pk_add_f32 v[40:41], v[40:41], v[44:45]
        v_pk_fma_f32 v[36:37], v[34:35], v[40:41], v[36:37]
        v_cvt_pk_bf16_f32 v36, v36, v37
        buffer_store_short v36, v15, {R3}, s33 offen
        buffer_store_short_d16_hi v36, v15, {R3}, s33 offen offset:8
        """)
        self.stamp(11)

    def fin(self):
        a = self.a
        a("FIN:")
        if self.diag:
            a("s_mov_b64 exec, -1\ns_waitcnt vmcnt(0)")
            self.stamp(15)
            a(f"""
            s_waitcnt lgkmcnt(0)
            s_lshl2_add_u32 s32, s101, {sW}
            s_lshl_b32 s32, s32, 6
            s_add_u32 s32, s32, {STAMP}
            """)
            for i in range(16):
                a(f"v_mov_b32 v{16+i}, s{64+2*i}")
            a("s_mov_b64 exec, 1")
            for i in range(4):
                a(f"buffer_store_dwordx4 {vr(16+4*i)}, v0, {WS}, s32 offen offset:{16*i}")
        a("EXIT:")

    def build(self):
        if self.diag:
            self.a("s_mov_b32 s101, s2")
        self.entry()
        self.arole()
        self.wrole()
        self.fin()
        return wrap(pad(self.a.text()), 256, 256, 163840)


if __name__ == "__main__":
    out = sys.argv[1]
    opts = dict(kv.split("=") for kv in sys.argv[2:])
    opts = {k: int(v) for k, v in opts.items()}
    open(out, "w").write(G(**opts).build())
```

```python
import sys
from asmlib import Asm, wrap, KNAME
from hazard import pad

FLAG, H1, HQ = 0x1000, 0x10000, 0x20000
SB = 0x80000
H2, H3B, H4, M2O, ML, H5 = SB, SB + 0x10000, SB + 0x20000, SB + 0x24000, SB + 0x28000, SB + 0x30000
H3 = 0x100000
STAMP = 200 << 20
TAGC = 0x9E3779B9
NPOLL = 20000

Q = 131072
SIL = Q + 8192
PB = Q
MX = Q + 8192
XU = 32768
WQ, WK, W2R = 0, 32768, 65536
X1, X2 = 131072, 135168
XO = 139264
YB = 139264
ST = 149504
AB = 151552
SL = 139264
XF = 152064

WS = "s[36:39]"
R1, R2, R3, R4 = "s[40:43]", "s[44:47]", "s[48:51]", "s[52:55]"
sW, sXCD, sID, sTAG, sCNT = "s3", "s56", "s58", "s59", "s57"
LOG2E = 0x3FB8AA3B
QSCALE = 0x3E0293EE


def vr(b, n=4):
    return f"v[{b}:{b+n-1}]"


def ar(b, n=4):
    return f"a[{b}:{b+n-1}]"


class G:
    def __init__(self, diag=False, **opt):
        self.a = Asm()
        self.diag = diag
        self.opt = opt
        self.sect = "E"
        p = opt.get("probe")
        self.probe = (p[0], int(p[1:])) if p else None

    def stamp(self, i):
        if self.diag:
            self.a(f"s_memrealtime s[{64+2*i}:{65+2*i}]")
        elif self.probe == (self.sect, i):
            self.a("s_memrealtime s[64:65]")

    def srd(self, r, ptr, size):
        b = int(r[2:4])
        self.a(f"s_mov_b64 s[{b}:{b+1}], s[{ptr}:{ptr+1}]\ns_mov_b32 s{b+2}, {size}")

    def execmask(self, m):
        lo, hi = m & 0xFFFFFFFF, m >> 32
        self.a(f"s_mov_b32 exec_lo, 0x{lo:x}\ns_mov_b32 exec_hi, 0x{hi:x}")

    def premask(self, s, m):
        lo, hi = m & 0xFFFFFFFF, m >> 32
        self.a(f"s_mov_b32 s{s}, 0x{lo:x}\ns_mov_b32 s{s+1}, 0x{hi:x}")

    def poll(self, loads, check):
        a = self.a
        lp, ok = a.label("POLL"), a.label("POK")
        a(f"s_movk_i32 {sCNT}, {NPOLL}\n{lp}:")
        a(loads)
        a("s_waitcnt vmcnt(0)")
        a(check)
        a(f"""
        s_cbranch_vccz {ok}
        s_sub_u32 {sCNT}, {sCNT}, 1
        s_cbranch_scc0 {lp}
        {ok}:
        """)

    @staticmethod
    def sent(regs, t):
        regs = list(regs)
        if len(regs) == 1:
            return f"v_cmp_eq_u32 vcc, -1, v{regs[0]}"
        s = []
        if len(regs) % 2 == 0:
            s.append(f"v_max_u32 v{t}, v{regs[0]}, v{regs[1]}")
            regs = regs[2:]
        else:
            s.append(f"v_max3_u32 v{t}, v{regs[0]}, v{regs[1]}, v{regs[2]}")
            regs = regs[3:]
        while regs:
            s.append(f"v_max3_u32 v{t}, v{t}, v{regs[0]}, v{regs[1]}")
            regs = regs[2:]
        s.append(f"v_cmp_eq_u32 vcc, -1, v{t}")
        return "\n".join(s)

    def dpp(self, op, regs, ctrl):
        for r in regs:
            self.a(f"{op}_dpp v{r}, v{r}, v{r} {ctrl} row_mask:0xf bank_mask:0xf")

    def swapred(self, op, regs, tmps, which):
        a = self.a
        for r, t in zip(regs, tmps):
            a(f"v_mov_b32 v{t}, v{r}")
        for r, t in zip(regs, tmps):
            a(f"v_permlane{which}_swap_b32 v{r}, v{t}")
        for r, t in zip(regs, tmps):
            a(f"{op} v{r}, v{r}, v{t}")

    def silu(self, pairs, t):
        a = self.a
        n = len(pairs)
        x = [t + i for i in range(2 * n)]
        e = [t + 2 * n + i for i in range(2 * n)]
        for i, p in enumerate(pairs):
            a(f"v_lshlrev_b32 v{x[2*i]}, 16, v{p}\nv_and_b32 v{x[2*i+1]}, 0xffff0000, v{p}")
        for i in range(2 * n):
            a(f"v_mul_f32 v{e[i]}, 0x{LOG2E | 0x80000000:x}, v{x[i]}")
        for i in range(2 * n):
            a(f"v_exp_f32 v{e[i]}, v{e[i]}")
        for i in range(2 * n):
            a(f"v_add_f32 v{e[i]}, 1.0, v{e[i]}")
        for i in range(2 * n):
            a(f"v_rcp_f32 v{e[i]}, v{e[i]}")
        for i in range(2 * n):
            a(f"v_mul_f32 v{x[i]}, v{x[i]}, v{e[i]}")
        for i, p in enumerate(pairs):
            a(f"v_cvt_pk_bf16_f32 v{p}, v{x[2*i]}, v{x[2*i+1]}")

    def entry(self):
        a = self.a
        if self.diag:
            for i in range(1, 16):
                a(f"s_mov_b64 s[{64+2*i}:{65+2*i}], 0")
        if self.probe:
            a("s_mov_b64 s[64:65], 0\ns_mov_b32 s101, s2")
        self.stamp(0)
        a(f"""
        s_cmp_ge_u32 s2, 256
        s_cbranch_scc1 EXIT
        s_load_dwordx16 s[4:19], s[0:1], 0
        s_load_dwordx8 s[20:27], s[0:1], 64
        s_load_dwordx4 s[28:31], s[0:1], 96
        v_lshrrev_b32 v1, 6, v0
        v_and_b32 v0, 63, v0
        v_readfirstlane_b32 {sW}, v1
        s_and_b32 {sXCD}, s2, 7
        s_lshr_b32 s57, s2, 4
        s_lshl4_add_u32 {sID}, {sXCD}, s57
        v_lshlrev_b32 v1, 4, v0
        v_lshrrev_b32 v2, 4, v0
        v_and_b32 v3, 15, v0
        s_mov_b32 s39, 0x20000
        s_mov_b32 s43, 0x20000
        s_mov_b32 s47, 0x20000
        s_mov_b32 s51, 0x20000
        s_mov_b32 s55, 0x20000
        s_bitcmp1_b32 s2, 3
        s_cbranch_scc1 WROLE
        """)

    def h3clear(self):
        a = self.a
        a("s_mov_b32 s34, s62")
        for i in range(8):
            a(f"buffer_store_dwordx4 v[64:67], v68, {WS}, s34 offen sc1")
            if i < 7:
                a(f"s_add_u32 s34, s34, {131072 * (13 if i == 3 else 1)}")

    def arole(self):
        a = self.a
        self.sect = "A"
        a(f"""
        s_and_b32 s60, {sID}, 15
        s_lshr_b32 s61, {sID}, 4
        v_lshlrev_b32 v4, 4, v3
        v_lshl_or_b32 v68, v2, 19, v4
        v_mov_b32 v64, -1
        v_mov_b32 v65, -1
        v_mov_b32 v66, -1
        v_mov_b32 v67, -1
        s_lshl_b32 s62, {sW}, 15
        s_lshl_b32 s63, {sID}, 8
        s_add_u32 s62, s62, s63
        s_add_u32 s62, s62, {H3}
        s_cmp_ge_u32 {sW}, 2
        s_cbranch_scc1 A_W23
        v_lshrrev_b32 v5, 3, v0
        v_and_b32 v6, 7, v0
        v_lshlrev_b32 v7, 1, v2
        v_xor_b32 v7, v6, v7
        v_mul_u32_u24 v8, 6144, v5
        v_lshrrev_b32 v9, 2, v7
        v_lshl_add_u32 v8, v9, 10, v8
        v_and_b32 v9, 3, v7
        v_lshl_add_u32 v8, v9, 4, v8
        v_and_b32 v10, 1, v5
        v_lshlrev_b32 v10, 10, v10
        v_lshl_add_u32 v11, v2, 3, v6
        v_lshl_add_u32 v11, v11, 5, v10
        v_lshl_add_u32 v12, v2, 3, v10
        s_lshl1_add_u32 s32, s61, {sW}
        s_mul_i32 s32, s32, {32 * 6144}
        s_lshl_b32 s33, s60, 6
        s_add_u32 s32, s32, s33
        s_lshl_b32 s34, {sW}, 5
        s_add_u32 s33, s33, s34
        s_lshl_b32 s34, {sW}, 12
        s_add_u32 m0, s34, {Q}
        s_waitcnt lgkmcnt(0)
        """)
        self.srd(R2, 4, 2048)
        self.srd(R1, 24, 512 * 6144)
        a(f"""
        buffer_load_dwordx4 v[16:19], v11, {R2}, 0 offen
        buffer_load_dwordx4 v[20:23], v11, {R2}, 0 offen offset:16
        buffer_load_dwordx2 v[24:25], v12, {R2}, s33 offen
        """)
        for j in range(4):
            a(f"buffer_load_dwordx4 v8, {R1}, s32 offen offset:{1024*j} nt lds")
            if j < 3:
                a(f"s_add_u32 s32, s32, {8 * 6144 - 1024}")
        a(f"s_load_dword {sTAG}, s[30:31], 0")
        self.srd(WS, 30, 0x10000000)
        self.h3clear()
        a(f"""
        v_lshrrev_b32 v13, 2, v0
        v_lshlrev_b32 v13, 7, v13
        v_and_b32 v14, 3, v5
        v_xor_b32 v14, {sW}, v14
        v_lshl_add_u32 v13, v14, 5, v13
        v_and_b32 v14, 3, v0
        v_lshl_add_u32 v13, v14, 3, v13
        v_add_u32 v13, {Q}, v13
        v_xor_b32 v14, 64, v13
        v_lshrrev_b32 v15, 3, v10
        v_lshl_add_u32 v15, v2, 4, v15
        v_add_u32 v15, {SIL}, v15
        s_cmp_eq_u32 s61, 0
        s_cselect_b32 s32, 1.0, 0
        v_mov_b32 v56, s32
        v_mov_b32 v57, s32
        v_mov_b32 v58, s32
        v_mov_b32 v59, s32
        v_lshlrev_b32 v5, 4, v5
        s_lshl_b32 s32, s60, 11
        s_lshl_b32 s33, s61, 8
        s_add_u32 s32, s32, s33
        s_lshl_b32 s33, {sW}, 7
        s_add_u32 s32, s32, s33
        s_add_u32 s32, s32, {H1}
        s_mov_b32 s33, 0x3f803f80
        v_mov_b32 v26, 0
        v_mov_b32 v27, 0
        """)
        self.premask(96, 0x0101010101010101)
        a("s_waitcnt vmcnt(13)")
        for i in range(8):
            a(f"v_dot2c_f32_bf16 v26, s33, v{16+i}\nv_dot2c_f32_bf16 v27, v{16+i}, v{16+i}")
        self.dpp("v_add_f32", [26, 27], "quad_perm:[1,0,3,2]")
        self.dpp("v_add_f32", [26, 27], "quad_perm:[2,3,0,1]")
        self.dpp("v_add_f32", [26, 27], "row_half_mirror")
        self.swapred("v_add_f32", [26, 27], [16, 17], 16)
        self.swapred("v_add_f32", [26, 27], [16, 17], 32)
        a(f"""
        v_mul_f32 v26, 0x3b000000, v26
        v_mov_b32 v16, 0x3727c5ac
        v_fmac_f32 v16, 0x3b000000, v27
        v_fma_f32 v16, -v26, v26, v16
        v_rsq_f32 v16, v16
        s_waitcnt vmcnt(12)
        v_lshlrev_b32 v20, 16, v24
        v_and_b32 v21, 0xffff0000, v24
        v_lshlrev_b32 v22, 16, v25
        v_and_b32 v23, 0xffff0000, v25
        """)
        for i in range(4):
            a(f"v_sub_f32 v{20+i}, v{20+i}, v26")
        for i in range(4):
            a(f"v_mul_f32 v{20+i}, v{20+i}, v16")
        a("s_waitcnt vmcnt(8) lgkmcnt(0)")
        self.stamp(1)
        a(f"""
        s_barrier
        ds_read_b128 v[44:47], v15
        """)
        for s in range(2):
            for blk in range(2):
                for u in range(2):
                    a(f"ds_read_b64_tr_b16 {vr(28 + (s*2+blk)*4 + 2*u, 2)}, v{13+blk} offset:{s*4096 + u*2048}")
            if s == 0:
                a("ds_read_b128 v[48:51], v15 offset:64")
        a(f"""
        s_add_u32 {sTAG}, {sTAG}, 0x{TAGC:x}
        v_mov_b32 v62, {sTAG}
        v_mov_b32 v63, {sTAG}
        s_waitcnt lgkmcnt(7)
        v_mfma_f32_16x16x32_bf16 v[52:55], v[28:31], v[44:47], 0
        s_waitcnt lgkmcnt(5)
        v_mfma_f32_16x16x32_bf16 v[56:59], v[32:35], v[44:47], v[56:59]
        s_waitcnt lgkmcnt(2)
        v_mfma_f32_16x16x32_bf16 v[52:55], v[36:39], v[48:51], v[52:55]
        s_waitcnt lgkmcnt(0)
        v_mfma_f32_16x16x32_bf16 v[56:59], v[40:43], v[48:51], v[56:59]
        s_mov_b64 exec, s[96:97]
        v_pk_fma_f32 v[52:53], v[20:21], v[56:57], v[52:53]
        v_pk_fma_f32 v[54:55], v[22:23], v[58:59], v[54:55]
        v_cvt_pk_bf16_f32 v60, v52, v53
        v_cvt_pk_bf16_f32 v61, v54, v55
        buffer_store_dwordx4 v[60:63], v5, {WS}, s32 offen sc1
        s_mov_b64 exec, -1
        """)
        self.stamp(2)
        a(f"""
        s_branch A_STREAM
        A_W23:
        s_cmp_eq_u32 {sW}, 3
        s_cbranch_scc1 A_W3
        v_lshrrev_b32 v5, 5, v0
        v_and_b32 v6, 31, v0
        v_lshlrev_b32 v7, 2, v6
        v_lshl_add_u32 v7, v5, 10, v7
        s_lshl_b32 s32, s61, 7
        s_waitcnt lgkmcnt(0)
        """)
        self.srd(R3, 22, 2048)
        a(f"""
        buffer_load_dword v16, v7, {R3}, s32 offen
        s_load_dword {sTAG}, s[30:31], 0
        """)
        self.srd(WS, 30, 0x10000000)
        self.h3clear()
        a(f"""
        v_lshlrev_b32 v8, 6, v2
        v_bfe_u32 v9, v0, 1, 2
        v_lshl_add_u32 v8, v9, 4, v8
        v_and_b32 v9, 8, v0
        v_add_u32 v8, v8, v9
        v_and_b32 v9, 1, v0
        v_lshl_add_u32 v8, v9, 2, v8
        v_add_u32 v8, {SIL}, v8
        s_waitcnt vmcnt(8)
        """)
        self.silu([16], 20)
        a(f"""
        ds_write_b32 v8, v16
        s_branch A_W23B
        A_W3:
        s_lshl_b32 s32, {sID}, 11
        s_add_u32 s32, s32, {SB}
        s_waitcnt lgkmcnt(0)
        """)
        self.srd(WS, 30, 0x10000000)
        a(f"""
        buffer_store_dwordx4 v[64:67], v1, {WS}, s32 offen sc1
        buffer_store_dwordx4 v[64:67], v1, {WS}, s32 offen offset:1024 sc1
        s_load_dword {sTAG}, s[30:31], 0
        """)
        self.h3clear()
        a(f"""
        s_waitcnt vmcnt(8)
        A_W23B:
        s_waitcnt lgkmcnt(0)
        """)
        self.stamp(1)
        a(f"""
        s_barrier
        s_add_u32 {sTAG}, {sTAG}, 0x{TAGC:x}
        A_STREAM:
        """)
        self.srd(R4, 6, 1 << 24)
        a(f"""
        s_lshl_b32 s32, {sID}, 17
        s_lshl_b32 s33, {sW}, 15
        s_add_u32 s32, s32, s33
        """)
        fk = lambda k: ((k & 7) << 1) | ((k >> 3) & 1)
        for k in range(32):
            if k % 4 == 0:
                a(f"s_add_u32 m0, s33, {k*1024}")
            if k == 16:
                a("s_add_u32 s32, s32, 16384")
            if k < 16:
                a(f"v_xor_b32 v{70+k}, {fk(k)*16 + (k & ~3)*1024}, v1")
            a(f"buffer_load_dwordx4 v{70+(k&15)}, {R4}, s32 offen offset:{(k&3)*1024} nt lds")
        self.stamp(3)
        self.srd(R1, 12, 1 << 22)
        a(f"""
        v_and_b32 v4, 31, v0
        v_lshrrev_b32 v5, 5, v0
        v_and_b32 v6, 7, v0
        v_bfe_u32 v7, v0, 3, 1
        v_lshl_or_b32 v6, v6, 1, v7
        v_xor_b32 v6, v6, v5
        v_lshlrev_b32 v6, 4, v6
        v_lshl_add_u32 v6, v4, 10, v6
        v_add_u32 v69, s33, v6
        v_xor_b32 v6, v3, v5
        v_lshlrev_b32 v6, 4, v6
        v_lshl_add_u32 v6, v4, 8, v6
        v_add_u32 v70, {Q}, v6
        """)
        for i in range(1, 8):
            a(f"v_xor_b32 v{70+i}, {32*i}, v70")
        a(f"""
        v_bfe_u32 v6, v0, 2, 3
        v_lshl_add_u32 v7, v5, 4, v6
        v_lshlrev_b32 v7, 10, v7
        v_lshl_add_u32 v7, v6, 5, v7
        v_and_b32 v6, 3, v0
        v_lshl_add_u32 v7, v6, 3, v7
        s_lshl_b32 s32, {sW}, 8
        v_add_u32 v78, s32, v7
        v_xor_b32 v6, v3, v2
        v_lshlrev_b32 v6, 4, v6
        v_lshl_add_u32 v124, v2, 8, v6
        v_xor_b32 v125, 64, v124
        v_xor_b32 v126, 128, v124
        v_xor_b32 v127, 192, v124
        v_lshlrev_b32 v6, 4, v3
        v_lshl_add_u32 v82, v2, 13, v6
        s_lshl_b32 s32, {sW}, 2
        s_add_u32 s32, s32, {MX}
        v_lshlrev_b32 v6, 4, v4
        v_add_u32 v8, s32, v6
        v_add_u32 v9, {MX}, v6
        s_lshl_b32 s32, {sW}, 11
        s_add_u32 s32, s32, {PB}
        v_add_u32 v10, s32, v1
        v_lshlrev_b32 v6, 4, v3
        v_lshl_add_u32 v6, v2, 9, v6
        v_add_u32 v11, {PB}, v6
        v_lshlrev_b32 v12, 10, v0
        s_lshr_b32 s60, {sID}, 6
        s_lshl2_add_u32 s60, s60, {sW}
        s_lshl_b32 s60, s60, 13
        s_add_u32 s60, s60, {H2}
        s_and_b32 s63, {sID}, 3
        s_lshl2_add_u32 s63, s63, {sW}
        s_lshl_b32 s63, s63, 18
        s_lshr_b32 s32, {sID}, 2
        s_lshl_b32 s32, s32, 8
        s_add_u32 s63, s63, s32
        s_lshl2_add_u32 s61, s61, {sW}
        s_lshl_b32 s61, s61, 7
        s_add_u32 s61, s61, {FLAG}
        s_add_u32 s2, s61, 64
        s_mov_b32 s0, {sTAG}
        s_mov_b32 s1, {sTAG}
        s_movk_i32 {sCNT}, {NPOLL}
        A_FPOLL:
        s_buffer_load_dwordx16 s[4:19], {WS}, s61 glc
        s_buffer_load_dwordx16 s[20:35], {WS}, s2 glc
        s_sub_u32 {sCNT}, {sCNT}, 1
        s_cbranch_scc1 A_FTIME
        s_waitcnt lgkmcnt(0)
        """)
        for i in range(16):
            a(f"s_cmp_lg_u64 s[{4+2*i}:{5+2*i}], s[0:1]\ns_cbranch_scc1 A_FPOLL")
        a(f"""
        A_FTIME:
        s_waitcnt lgkmcnt(0)
        s_movk_i32 {sCNT}, 2000
        A_QDMA:
        """)
        self.stamp(4)
        a(f"""
        s_lshl_b32 s32, {sW}, 13
        s_add_u32 m0, s32, {Q}
        s_add_u32 s33, s60, 4096
        """)
        for j in range(8):
            if j == 4:
                a(f"s_add_u32 m0, s32, {Q + 4096}")
            a(f"buffer_load_dwordx4 v{124+(j&3)}, {WS}, {'s60' if j < 4 else 's33'} offen offset:{(j&3)*1024} sc1 lds")
        a("s_waitcnt vmcnt(8)")
        self.stamp(5)
        for i in range(8):
            if i:
                a(f"v_xor_b32 v{79+(i&1)}, {32*i}, v69")
            for q in range(4):
                a(f"ds_read_b128 {ar((q*8+i)*4)}, v{69 if i == 0 else 79+(i&1)} offset:{q*256}")
        a("v_mov_b32 v81, 0\ns_mov_b32 s32, s63\ns_waitcnt vmcnt(0)")
        self.stamp(6)
        a("s_barrier")
        D, NS = 4, 5
        bs = lambda s: 84 + 4 * (s % NS)
        rdB = lambda s: f"ds_read_b128 {vr(bs(s))}, v{70+(s&7)} offset:{(s>>3)*8192}"
        for s in range(D):
            a(rdB(s))
        for s in range(32):
            if s < D:
                n = (D - 1 - s) + 3 * s
            else:
                n = 2 + sum(3 if t + D < 32 else 2 for t in range(s - D + 1, s))
            a(f"s_waitcnt lgkmcnt({n})")
            a(f"v_mfma_f32_32x32x16_bf16 v[108:123], {ar(4*s)}, {vr(bs(s))}, {'0' if s == 0 else 'v[108:123]'}")
            kwh, j, u = s >> 4, (s >> 1) & 7, s & 1
            a(f"v_xor_b32 v{79+u}, {j*32 + u*16 + kwh*65536}, v78")
            if s + D < 32:
                a(rdB(s + D))
            for kl in range(2):
                kw = 2 * kwh + kl
                a(f"ds_read_b64_tr_b16 {ar(128 + (kw*8+j)*4 + 2*u, 2)}, v{79+u} offset:{u*8192 + kl*32768}")
            a(f"v_max3_u32 v81, v81, v{bs(s)}, v{bs(s)+2}")
            if s < 8:
                a(f"buffer_load_dwordx4 {vr(128+4*s)}, v82, {R1}, s32 offen nt")
                a("s_add_u32 s32, s32, 32768")
            if s == 20:
                a("s_barrier")
        a(f"""
        v_cmp_eq_u32 vcc, -1, v81
        s_cbranch_vccnz A_REDO
        A_QOK:
        """)
        self.stamp(7)
        a("v_max3_f32 v4, v108, v109, v110\nv_max3_f32 v5, v111, v112, v113")
        a("v_max3_f32 v4, v4, v114, v115\nv_max3_f32 v5, v5, v116, v117")
        a("v_max3_f32 v4, v4, v118, v119\nv_max3_f32 v5, v5, v120, v121")
        a("v_max3_f32 v4, v4, v122, v123\nv_max_f32 v4, v4, v5")
        self.swapred("v_max_f32", [4], [5], 32)
        a(f"""
        ds_write_b32 v8, v4
        s_waitcnt lgkmcnt(0)
        s_barrier
        ds_read_b128 v[4:7], v9
        s_waitcnt lgkmcnt(0)
        v_max3_f32 v4, v4, v5, v6
        v_max_f32 v14, v4, v7
        """)
        for st in range(2):
            for i in range(8):
                a(f"v_sub_f32 v{108+8*st+i}, v{108+8*st+i}, v14")
            for i in range(8):
                a(f"v_exp_f32 v{108+8*st+i}, v{108+8*st+i}")
            for i in range(4):
                a(f"v_cvt_pk_bf16_f32 v{84+4*st+i}, v{108+8*st+2*i}, v{109+8*st+2*i}")
            a(f"ds_write_b128 v10, {vr(84+4*st)} offset:{st*1024}")
        a("s_waitcnt lgkmcnt(0)\ns_barrier")
        self.stamp(8)
        for ht in range(2):
            for kw in range(4):
                a(f"ds_read_b128 {vr(160+(ht*4+kw)*4)}, v11 offset:{kw*2048 + ht*256}")
        a(f"""
        s_mov_b32 s33, 0x3f803f80
        v_mov_b32 v15, 0
        v_mov_b32 v16, 0
        s_lshl_b32 s34, {sW}, 3
        s_lshl_b32 s96, 0xff, s34
        s_mov_b32 s97, 0
        s_lshl_b32 s35, {sID}, 3
        s_add_u32 s35, s35, {ML}
        s_mov_b32 s34, s62
        """)
        side = []
        for ht in range(2):
            for i in range(16):
                side.append(f"v_dot2c_f32_bf16 v{15+ht}, s33, v{160+ht*16+i}")
        side += ["s_nop 0", "v_permlane16_swap_b32 v15, v16", "v_add_f32 v15, v15, v16", "v_mov_b32 v16, v15", "s_nop 0",
                 "v_permlane32_swap_b32 v15, v16", "v_add_f32 v15, v15, v16",
                 f"s_mov_b64 exec, s[96:97]\nbuffer_store_dwordx2 v[14:15], v12, {WS}, s35 offen sc1\ns_mov_b64 exec, -1"]
        acc = lambda ht, j: 192 + ht * 32 + j * 4
        gr = lambda ht, r: 84 + ht * 16 + r * 4
        late = {}
        for ht in range(2):
            for jp in range(4):
                blk = ht * 4 + jp
                cv = [f"v_cvt_pk_bf16_f32 v{gr(ht, r)+jp}, v{acc(ht, 2*jp)+r}, v{acc(ht, 2*jp+1)+r}" for r in range(4)]
                if jp == 3:
                    nv = []
                    for r in range(4):
                        nv.append(cv[r])
                        st = f"buffer_store_dwordx4 {vr(gr(ht, r))}, v68, {WS}, s34 offen sc1"
                        if not (ht == 1 and r == 3):
                            st += f"\ns_add_u32 s34, s34, {131072 * (13 if r == 3 else 1)}"
                        nv.append(st)
                    cv = nv
                late[blk + 1] = cv
        first = True
        for blk in range(8):
            ht, jp = blk >> 2, blk & 3
            pend = list(late.get(blk, []))
            for kw in range(4):
                if blk == 0:
                    a(f"s_waitcnt lgkmcnt({7-kw})")
                for jj in range(2):
                    j = 2 * jp + jj
                    c = "0" if kw == 0 else vr(acc(ht, j))
                    a(f"v_mfma_f32_16x16x32_bf16 {vr(acc(ht, j))}, {vr(160+(ht*4+kw)*4)}, {ar(128+(kw*8+j)*4)}, {c}")
                    if blk == 0 and kw == 3 and jj == 1:
                        a("s_waitcnt lgkmcnt(0)")
                    n = 2
                    if blk >= 1 and kw >= 2:
                        for _ in range(2):
                            if pend:
                                a(pend.pop(0))
                                n -= 1
                    if blk >= 1:
                        for _ in range(n):
                            if side:
                                a(side.pop(0))
            assert not pend
        assert not side
        for x in late[8]:
            a(x)
        self.stamp(9)
        a(f"""
        s_lshl_b32 s32, {sW}, 7
        s_and_b32 s32, s32, 128
        s_lshl_b32 s33, {sW}, 13
        v_xor_b32 v4, s32, v1
        v_add_u32 v4, s33, v4
        v_xor_b32 v5, 64, v4
        s_waitcnt vmcnt(9)
        """)
        for j in range(8):
            a(f"ds_write_b128 v{4+(j>>2)}, {vr(128+4*j)} offset:{j*1024}")
        a(f"""
        s_and_b32 s32, {sW}, 1
        s_lshl_b32 s33, s32, 3
        v_xor_b32 v6, s33, v0
        v_lshlrev_b32 v6, 3, v6
        s_lshr_b32 s34, {sW}, 1
        s_lshr_b32 s35, {sID}, 2
        s_lshl1_add_u32 s35, s35, s34
        s_lshl_b32 s35, s35, 9
        s_add_u32 s35, s35, {ML}
        s_lshl3_add_u32 s34, s34, s32
        s_lshl_b32 s34, s34, 11
        s_lshl_b32 s32, {sID}, 15
        s_add_u32 s34, s34, s32
        s_add_u32 s34, s34, {H3}
        v_lshlrev_b32 v7, 4, v3
        v_lshl_add_u32 v7, v2, 12, v7
        v_bfe_u32 v8, v0, 2, 2
        v_xor_b32 v9, {sW}, v8
        v_lshlrev_b32 v9, 6, v9
        v_lshl_add_u32 v9, v8, 12, v9
        v_lshl_add_u32 v9, v2, 8, v9
        v_and_b32 v8, 3, v0
        v_lshl_add_u32 v9, v8, 4, v9
        v_mul_u32_u24 v10, 288, v8
        v_lshl_add_u32 v10, v2, 4, v10
        s_mul_i32 s32, {sW}, 288
        v_lshlrev_b32 v11, 4, v3
        v_lshl_add_u32 v11, v2, 3, v11
        v_add_u32 v11, s32, v11
        v_and_b32 v12, 1, v0
        v_lshlrev_b32 v12, 4, v12
        s_mov_b32 s32, 0xffff
        v_lshlrev_b32 v12, v12, s32
        v_lshrrev_b32 v13, 1, v3
        """)
        for i in range(4):
            a(f"v_cmp_eq_u32 vcc, {i}, v13\nv_cndmask_b32 v{20+i}, 0, v12, vcc")
        a(f"""
        v_bfe_u32 v12, v0, 1, 1
        v_lshlrev_b32 v12, 8, v12
        v_lshl_add_u32 v12, v2, 4, v12
        s_lshl_b32 s60, {sID}, 9
        s_lshl_b32 s32, {sW}, 6
        s_add_u32 s60, s60, s32
        s_add_u32 s60, s60, {H3B}
        """)
        self.premask(96, 0x0005000500050005)
        a("s_waitcnt lgkmcnt(0)\ns_barrier")
        for s in range(4):
            for t in range(2):
                for u in range(2):
                    a(f"ds_read_b64_tr_b16 {vr(128+(s*2+t)*4+2*u, 2)}, v9 offset:{u*16384 + s*1024 + t*8}")
        self.poll(f"buffer_load_dwordx2 v[16:17], v6, {WS}, s35 offen sc1", self.sent([16], 18))
        self.stamp(10)
        oloads = "\n".join(f"buffer_load_dwordx4 {vr(160+4*j)}, v7, {WS}, s34 offen offset:{j*256} sc1" for j in range(8))
        a(oloads)
        a("v_mov_b32 v18, v16")
        for c in ("quad_perm:[1,0,3,2]", "quad_perm:[2,3,0,1]", "row_half_mirror", "row_mirror"):
            self.dpp("v_max_f32", [18], c)
        self.swapred("v_max_f32", [18], [19], 16)
        self.swapred("v_max_f32", [18], [19], 32)
        a("v_sub_f32 v16, v16, v18\nv_exp_f32 v16, v16\nv_mul_f32 v18, v16, v17")
        for c in ("quad_perm:[1,0,3,2]", "quad_perm:[2,3,0,1]", "row_half_mirror", "row_mirror"):
            self.dpp("v_add_f32", [18], c)
        self.swapred("v_add_f32", [18], [19], 16)
        self.swapred("v_add_f32", [18], [19], 32)
        a("v_rcp_f32 v18, v18\nv_mul_f32 v16, v16, v18\nv_cvt_pk_bf16_f32 v16, v16, v16")
        for j in range(8):
            for i in range(4):
                a(f"v_and_b32_dpp v{192+4*j+i}, v16, v{20+i} row_newbcast:{j} row_mask:0xf bank_mask:0xf")
        chk = self.sent([160 + 4 * j for j in range(8)], 18)
        a(f"""
        s_movk_i32 {sCNT}, {NPOLL}
        A_OWAIT:
        s_waitcnt vmcnt(0)
        {chk}
        s_cbranch_vccnz A_OREDO
        A_OOK:
        """)
        self.stamp(11)
        for j in range(8):
            c = "0" if j < 2 else vr(24 + 4 * (j & 1))
            a(f"v_mfma_f32_16x16x32_bf16 {vr(24+4*(j&1))}, {vr(192+4*j)}, {vr(160+4*j)}, {c}")
        a(f"""
        s_mov_b32 exec_hi, 0
        v_pk_add_f32 v[24:25], v[24:25], v[28:29]
        v_pk_add_f32 v[26:27], v[26:27], v[30:31]
        v_cvt_pk_bf16_f32 v24, v24, v25
        v_cvt_pk_bf16_f32 v25, v26, v27
        ds_write_b64 v11, v[24:25] offset:{XU}
        s_mov_b32 exec_hi, -1
        s_waitcnt lgkmcnt(0)
        s_barrier
        """)
        for s in range(4):
            a(f"ds_read_b128 {vr(32+4*s)}, v10 offset:{XU + s*64}")
        for s in range(4):
            a(f"s_waitcnt lgkmcnt({3-s})")
            for t in range(2):
                c = "0" if s == 0 else vr(24 + 4 * t)
                a(f"v_mfma_f32_16x16x32_bf16 {vr(24+4*t)}, {vr(128+(s*2+t)*4)}, {vr(32+4*s)}, {c}")
        self.dpp("v_add_f32", range(24, 32), "quad_perm:[1,0,3,2]")
        a("s_mov_b64 exec, s[96:97]")
        for i in range(4):
            a(f"v_cvt_pk_bf16_f32 v{32+i}, v{24+2*i}, v{25+2*i}")
        a(f"buffer_store_dwordx4 v[32:35], v12, {WS}, s60 offen sc1")
        self.stamp(12)
        a(f"""
        s_branch FIN
        A_REDO:
        s_sub_u32 {sCNT}, {sCNT}, 1
        s_cbranch_scc1 A_QOK
        s_waitcnt lgkmcnt(0)
        s_barrier
        s_branch A_QDMA
        A_OREDO:
        s_sub_u32 {sCNT}, {sCNT}, 1
        s_cbranch_scc1 A_OOK
        {oloads}
        s_branch A_OWAIT
        """)

    def tagpoll(self, voff, soff):
        self.poll(f"buffer_load_dwordx3 v[80:82], {voff}, {WS}, {soff} offen sc1\n"
                  f"buffer_load_dwordx3 v[84:86], {voff}, {WS}, {soff} offen offset:1024 sc1",
                  f"v_cmp_ne_u32 s[32:33], {sTAG}, v82\nv_cmp_ne_u32 vcc, {sTAG}, v86\ns_or_b64 vcc, vcc, s[32:33]")

    def smallgemm(self, xb, wbase):
        a = self.a
        for s in range(4):
            a(f"ds_read_b128 {vr(88+4*s)}, v9 offset:{xb - X1 + s*1024}")
        for s in range(4):
            a(f"s_waitcnt lgkmcnt({3-s})")
            for t in range(2):
                c = "0" if s == 0 else vr(104 + 4 * t)
                a(f"v_mfma_f32_16x16x32_bf16 {vr(104+4*t)}, {vr(wbase+(s*2+t)*4)}, {vr(88+4*s)}, {c}")
        for t in range(2):
            for r in range(4):
                a(f"v_add_f32_dpp v{112+r}, v{104+4*t+r}, v{104+4*t+r} row_ror:8 row_mask:0xf bank_mask:{'0x3' if t == 0 else '0xc'}")
        self.dpp("v_add_f32", range(112, 116), "quad_perm:[2,3,0,1]")

    def wrole(self):
        a = self.a
        self.sect = "W"
        a(f"""
        WROLE:
        s_lshr_b32 s60, {sID}, 2
        s_and_b32 s61, {sID}, 3
        s_lshl2_add_u32 s62, s61, {sW}
        s_lshl_b32 s32, s62, 18
        s_lshl_b32 s33, s60, 8
        s_add_u32 s32, s32, s33
        s_lshl_b32 s33, {sW}, 13
        s_mov_b32 m0, s33
        v_lshlrev_b32 v4, 2, v2
        v_xor_b32 v4, v4, v3
        v_lshlrev_b32 v4, 4, v4
        v_lshl_add_u32 v4, v2, 13, v4
        v_xor_b32 v5, v2, v3
        v_lshlrev_b32 v5, 4, v5
        v_lshl_add_u32 v5, v2, 13, v5
        v_xor_b32 v6, 64, v5
        v_xor_b32 v7, 128, v5
        v_xor_b32 v8, 192, v5
        s_mov_b32 s34, s32
        s_waitcnt lgkmcnt(0)
        """)
        self.srd(R1, 8, 1 << 22)
        self.srd(R2, 10, 1 << 22)
        for m, (R, so) in enumerate(((R1, "s32"), (R2, "s34"))):
            for j in range(8):
                if j == 4 or (m == 1 and j == 0):
                    a(f"s_add_u32 m0, s33, {m*WK + (j>>2)*4096}")
                v = 4 if m == 0 else 5 + (j >> 1)
                a(f"buffer_load_dwordx4 v{v}, {R}, {so} offen offset:{(j&3)*1024} nt lds")
                if j < 7:
                    a(f"s_add_u32 {so}, {so}, {32768 - 1024 + (4096 if j == 3 else 0)}")
        a(f"s_load_dword {sTAG}, s[30:31], 0")
        self.srd(WS, 30, 0x10000000)
        self.stamp(1)
        a(f"""
        v_bfe_u32 v4, v0, 2, 2
        v_xor_b32 v5, {sW}, v4
        v_lshlrev_b32 v5, 6, v5
        v_lshrrev_b32 v6, 2, v0
        v_lshl_add_u32 v5, v6, 8, v5
        v_and_b32 v6, 3, v0
        v_lshl_add_u32 v10, v6, 4, v5
        v_lshl_add_u32 v5, v4, 3, v6
        v_lshlrev_b32 v5, 8, v5
        v_xor_b32 v7, v2, v3
        v_lshl_add_u32 v5, v7, 4, v5
        s_add_u32 s32, s33, {WK}
        v_add_u32 v11, s32, v5
        v_add_u32 v9, {X1}, v1
        s_lshl_b32 s32, {sW}, 10
        s_add_u32 s32, s32, {X1}
        v_bfe_u32 v4, v0, 1, 2
        v_lshlrev_b32 v4, 8, v4
        v_and_b32 v5, 1, v0
        v_lshl_add_u32 v4, v5, 6, v4
        v_lshl_add_u32 v4, v2, 4, v4
        v_and_b32 v6, 8, v0
        v_add3_u32 v12, v4, v6, s32
        v_bfe_u32 v4, v0, 3, 2
        v_lshlrev_b32 v4, 8, v4
        v_lshl_add_u32 v4, v5, 4, v4
        v_bfe_u32 v6, v0, 1, 1
        v_lshl_add_u32 v4, v6, 6, v4
        v_and_b32 v6, 32, v0
        v_add_u32 v4, v4, v6
        v_bfe_u32 v6, v0, 2, 1
        v_lshl_add_u32 v4, v6, 3, v4
        v_add_u32 v13, s32, v4
        v_lshrrev_b32 v4, 2, v0
        v_lshl_add_u32 v4, v4, 1, v5
        v_lshlrev_b32 v14, 4, v4
        v_lshlrev_b32 v4, 15, v6
        v_lshl_add_u32 v4, v2, 4, v4
        v_and_b32 v6, 8, v0
        v_add_u32 v15, v4, v6
        v_lshlrev_b32 v120, 9, v0
        s_lshl_b32 s62, s62, 11
        s_add_u32 s62, s62, {H1}
        s_lshl2_add_u32 s63, s60, {sW}
        s_lshl_b32 s63, s63, 11
        s_add_u32 s63, s63, {HQ}
        s_lshl_b32 s34, s61, 9
        s_add_u32 s34, s34, s63
        s_lshl_b32 s35, s61, 5
        s_add_u32 s35, s35, s60
        s_lshl_b32 s2, s35, 2
        s_add_u32 s2, s2, {FLAG}
        s_lshl2_add_u32 s35, s35, {sW}
        s_lshl_b32 s35, s35, 6
        s_add_u32 s35, s35, {H2}
        s_lshl_b32 s0, {sW}, 1
        s_lshl_b32 s0, 3, s0
        s_mov_b32 s1, 0
        """)
        self.premask(96, 0x3333333333333333)
        self.premask(98, 0x1111111111111111)
        a(f"""
        s_waitcnt vmcnt(8) lgkmcnt(0)
        s_add_u32 {sTAG}, {sTAG}, 0x{TAGC:x}
        """)
        self.stamp(2)
        a(f"""
        s_barrier
        v_mov_b32 v118, {sTAG}
        v_mov_b32 v119, {sTAG}
        """)
        for s in range(4):
            for t in range(2):
                for u in range(2):
                    a(f"ds_read_b64_tr_b16 {vr(16+(s*2+t)*4+2*u, 2)}, v10 offset:{s*8192 + u*4096 + t*8}")
        self.tagpoll("v1", "s62")
        self.stamp(3)
        a(f"""
        ds_write_b64 v12, v[80:81]
        ds_write_b64 v12, v[84:85] offset:128
        s_waitcnt lgkmcnt(0)
        s_barrier
        """)
        self.smallgemm(X1, 16)
        a(f"""
        s_mov_b64 exec, s[96:97]
        v_cvt_pk_bf16_f32 v116, v112, v113
        v_cvt_pk_bf16_f32 v117, v114, v115
        buffer_store_dwordx4 v[116:119], v14, {WS}, s34 offen sc1
        s_mov_b64 exec, -1
        """)
        self.stamp(4)
        for s in range(4):
            if s:
                a(f"v_xor_b32 v4, {64*s}, v11")
            for t in range(2):
                a(f"ds_read_b128 {vr(48+(s*2+t)*4)}, v{4 if s else 11} offset:{t*1024}")
        self.tagpoll("v1", "s63")
        self.stamp(5)
        flag = f"s_mov_b64 exec, s[0:1]\nbuffer_store_dword v118, v120, {WS}, s2 offen sc1\ns_mov_b64 exec, -1"
        a(f"""
        ds_write_b64 v13, v[80:81] offset:{X2 - X1}
        ds_write_b64 v13, v[84:85] offset:{X2 - X1 + 128}
        s_waitcnt lgkmcnt(0)
        s_barrier
        """)
        if self.opt.get("earlyflag"):
            a(flag)
        self.smallgemm(X2, 48)
        self.dpp("v_add_f32", range(112, 116), "quad_perm:[1,0,3,2]")
        a("s_mov_b64 exec, s[98:99]")
        for r in range(4):
            a(f"v_mul_f32 v{112+r}, 0x{QSCALE:x}, v{112+r}")
        a(f"""
        v_cvt_pk_bf16_f32 v116, v112, v113
        v_cvt_pk_bf16_f32 v117, v114, v115
        buffer_store_dwordx2 v[116:117], v15, {WS}, s35 offen sc1
        """)
        if not self.opt.get("earlyflag"):
            a(flag)
        else:
            a("s_mov_b64 exec, -1")
        self.stamp(6)
        a(f"""
        s_and_b32 s60, {sID}, 15
        s_and_b32 s61, {sID}, 3
        s_lshl2_add_u32 s61, {sXCD}, s61
        s_cmp_lt_u32 s60, 8
        s_cbranch_scc1 W_SETO
        s_cmp_lt_u32 s60, 12
        s_cbranch_scc1 W_SETM
        s_cmp_ge_u32 s61, 28
        s_cbranch_scc1 FIN
        """)
        self.srd(R1, 18, 512 * 3584)
        a(f"""
        s_movk_i32 s62, 3584
        s_lshl_b32 s32, s61, 7
        s_branch W_LOAD
        W_SETM:
        """)
        self.srd(R1, 24, 512 * 6144)
        a(f"""
        s_movk_i32 s62, 6144
        s_lshl_b32 s32, s61, 7
        s_add_u32 s32, s32, 2048
        s_branch W_LOAD
        W_SETO:
        """)
        self.srd(R1, 14, 1 << 22)
        a(f"""
        s_movk_i32 s62, 1024
        s_lshl_b32 s32, {sXCD}, 19
        s_lshl_b32 s33, s60, 7
        s_add_u32 s32, s32, s33
        W_LOAD:
        s_lshl_b32 s33, {sW}, 7
        s_mul_i32 s33, s33, s62
        s_add_u32 s32, s32, s33
        s_lshl_b32 s33, s62, 3
        s_sub_u32 s33, s33, 1024
        s_add_u32 s63, s33, 4096
        s_lshl_b32 s34, {sW}, 14
        v_lshrrev_b32 v4, 3, v0
        v_mul_lo_u32 v4, v4, s62
        v_and_b32 v5, 1, v2
        v_lshlrev_b32 v5, 1, v5
        v_and_b32 v6, 7, v0
        v_xor_b32 v5, v5, v6
        v_lshl_add_u32 v6, v5, 4, v4
        v_xor_b32 v5, 4, v5
        v_lshl_add_u32 v7, v5, 4, v4
        """)
        for j in range(16):
            if j % 4 == 0:
                a(f"s_add_u32 m0, s34, {W2R + j*1024}")
            a(f"buffer_load_dwordx4 v{6+(j&1)}, {R1}, s32 offen offset:{(j&3)*1024} nt lds")
            if j < 15:
                a(f"s_add_u32 s32, s32, {'s63' if j % 4 == 3 else 's33'}")
        a(f"""
        v_bfe_u32 v4, v0, 2, 2
        v_lshl_add_u32 v5, v2, 3, v4
        v_lshlrev_b32 v5, 7, v5
        v_bfe_u32 v6, v0, 3, 2
        v_xor_b32 v6, {sW}, v6
        v_lshl_add_u32 v5, v6, 5, v5
        v_and_b32 v6, 3, v0
        v_lshl_add_u32 v5, v6, 3, v5
        v_add_u32 v10, {W2R}, v5
        s_cmp_lt_u32 s60, 8
        s_cbranch_scc1 W_WAIT
        s_cmp_lt_u32 s60, 12
        s_cbranch_scc1 W_PREM
        """)
        self.srd(R2, 20, 1792 * 1024)
        a(f"""
        s_lshl_b32 s32, s61, 16
        s_add_u32 s32, s32, s34
        v_xor_b32 v5, 16, v1
        v_xor_b32 v6, 32, v1
        v_xor_b32 v7, 48, v1
        """)
        for j in range(16):
            if j % 4 == 0:
                a(f"s_add_u32 m0, s34, {j*1024}")
                if j:
                    a("s_add_u32 s32, s32, 4096")
            a(f"buffer_load_dwordx4 v{[1, 5, 6, 7][j&3]}, {R2}, s32 offen offset:{(j&3)*1024} nt lds")
        a(f"""
        s_branch W_WAIT
        W_PREM:
        """)
        self.srd(R3, 22, 2048)
        a(f"""
        s_lshl_b32 s32, {sW}, 9
        v_lshlrev_b32 v4, 3, v0
        buffer_load_dwordx2 v[16:17], v4, {R3}, s32 offen
        s_lshr_b32 s33, {sW}, 1
        s_lshl_b32 s33, s33, 5
        s_add_u32 s32, s32, s33
        s_add_u32 s32, s32, {SL}
        v_add_u32 v4, s32, v4
        s_waitcnt vmcnt(0)
        """)
        self.silu([16, 17], 20)
        a(f"""
        ds_write_b64 v4, v[16:17]
        W_WAIT:
        s_waitcnt vmcnt(0) lgkmcnt(0)
        """)
        self.stamp(7)
        a("s_barrier")
        for s in range(16):
            for u in range(2):
                a(f"ds_read_b64_tr_b16 {ar(4*s+2*u, 2)}, v10 offset:{s*4096 + u*512}")
        a(f"""
        s_cmp_lt_u32 s60, 8
        s_cbranch_scc0 W_NOTO
        """)
        self.orole()
        a(f"""
        W_NOTO:
        v_and_b32 v4, 3, v0
        v_mul_u32_u24 v4, 2112, v4
        v_bfe_u32 v5, v0, 2, 1
        v_mul_u32_u24 v5, 1056, v5
        v_lshl_add_u32 v5, v2, 4, v5
        s_cmp_lt_u32 s60, 12
        s_cbranch_scc1 W_M2
        """)
        self.ffn()
        a("W_M2:")
        self.m2()

    def actgemm(self, addr, fill=None):
        a = self.a
        fill = list(fill or [])
        for s in range(12):
            a(f"ds_read_b128 {vr(128+4*s)}, v{addr} offset:{s*64}")
        for s in range(16):
            a(f"s_waitcnt lgkmcnt({min(11, 15-s)})")
            c = "0" if s < 2 else vr(104 + 4 * (s & 1))
            a(f"v_mfma_f32_16x16x32_bf16 {vr(104+4*(s&1))}, {vr(128+4*s)}, {ar(4*s)}, {c}")
            if s < 4:
                a(f"ds_read_b128 {vr(128+4*(s+12))}, v{addr} offset:{(s+12)*64}")
            for _ in range(3):
                if fill:
                    a(fill.pop(0))
        assert not fill

    def orole(self):
        a = self.a
        self.sect = "O"
        a(f"""
        s_lshl2_add_u32 s34, {sXCD}, {sW}
        s_lshl_b32 s34, s34, 11
        s_add_u32 s34, s34, {H3B}
        v_and_b32 v4, 1, v2
        v_lshlrev_b32 v4, 3, v4
        v_lshrrev_b32 v5, 1, v2
        v_or_b32 v4, v4, v5
        v_lshlrev_b32 v4, 4, v4
        v_xor_b32 v4, v4, v1
        s_lshl_b32 s32, {sW}, 11
        s_add_u32 s32, s32, {XO}
        v_add_u32 v11, s32, v4
        v_xor_b32 v12, 32, v11
        v_and_b32 v4, 3, v0
        v_bfe_u32 v5, v0, 2, 1
        v_lshl_add_u32 v6, v4, 1, v5
        v_lshlrev_b32 v6, 8, v6
        v_xor_b32 v4, v4, v2
        v_lshl_add_u32 v6, v4, 4, v6
        v_lshl_add_u32 v6, v5, 7, v6
        v_bfe_u32 v4, v0, 3, 1
        v_lshl_add_u32 v6, v4, 6, v6
        v_add_u32 v13, {XO}, v6
        v_xor_b32 v14, 128, v13
        v_lshlrev_b32 v5, 10, v5
        v_lshl_add_u32 v15, v2, 3, v5
        s_lshl_b32 s35, {sXCD}, 11
        s_lshl2_add_u32 s32, s60, {sW}
        s_lshl_b32 s32, s32, 5
        s_add_u32 s35, s35, s32
        s_add_u32 s35, s35, {H4}
        """)
        self.premask(96, 0x0011001100110011)
        self.poll(f"buffer_load_dwordx4 v[80:83], v1, {WS}, s34 offen sc1\n"
                  f"buffer_load_dwordx4 v[84:87], v1, {WS}, s34 offen offset:1024 sc1", self.sent([80, 84], 4))
        self.stamp(8)
        a(f"""
        ds_write_b128 v11, v[80:83]
        ds_write_b128 v12, v[84:87] offset:1024
        s_waitcnt lgkmcnt(0)
        s_barrier
        """)
        for sp in range(8):
            a(f"ds_read_b128 {vr(128+4*sp)}, v{13+(sp&1)} offset:{(sp>>1)*2048}")
        for sp in range(8):
            a(f"s_waitcnt lgkmcnt({7-sp})")
            for k in range(2):
                c = "0" if sp == 0 else vr(104 + 4 * k)
                a(f"v_mfma_f32_16x16x32_bf16 {vr(104+4*k)}, {ar(4*(2*sp+k))}, {vr(128+4*sp)}, {c}")
        for r in range(4):
            a(f"v_add_f32_dpp v{112+r}, v{108+r}, v{104+r} row_ror:8 row_mask:0xf bank_mask:0xf")
        self.dpp("v_add_f32", range(112, 116), "quad_perm:[1,0,3,2]")
        self.dpp("v_add_f32", range(112, 116), "quad_perm:[2,3,0,1]")
        a(f"""
        s_mov_b64 exec, s[96:97]
        v_cvt_pk_bf16_f32 v116, v112, v113
        v_cvt_pk_bf16_f32 v117, v114, v115
        buffer_store_dwordx2 v[116:117], v15, {WS}, s35 offen sc1
        """)
        self.stamp(9)
        a("s_branch FIN")

    def selmat(self, esel, on):
        a = self.a
        a(f"""
        v_and_b32 v24, 1, v{esel}
        v_lshlrev_b32 v24, 4, v24
        s_movk_i32 s32, 0x3f80
        v_lshlrev_b32 v24, v24, s32
        v_lshrrev_b32 v25, 1, v{esel}
        v_lshl_or_b32 v25, v{on}, 2, v25
        """)
        for i in range(4):
            a(f"v_cmp_eq_u32 vcc, {i}, v25\nv_cndmask_b32 v{20+i}, 0, v24, vcc")

    def ffn(self):
        a = self.a
        self.sect = "F"
        a(f"""
        s_mov_b32 s32, {YB}
        v_add3_u32 v11, v4, v5, s32
        v_bfe_u32 v4, v0, 2, 2
        v_lshl_add_u32 v5, v2, 3, v4
        v_lshlrev_b32 v5, 10, v5
        v_lshl_add_u32 v5, v4, 4, v5
        v_and_b32 v4, 3, v0
        v_lshl_add_u32 v5, v4, 6, v5
        s_lshl_b32 s33, {sW}, 8
        v_add_u32 v4, s33, v5
        """)
        for tp in range(4):
            if tp:
                a(f"v_xor_b32 v{4+tp}, {16*tp}, v4")
            for th in range(2):
                for s in range(2):
                    for u in range(2):
                        t = 2 * tp + th
                        a(f"ds_read_b64_tr_b16 {ar(64+(t*2+s)*4+2*u, 2)}, v{4+tp} offset:{s*32768 + u*4096 + th*8}")
        self.srd(R2, 4, 2048)
        a(f"""
        v_lshrrev_b32 v4, 5, v0
        v_and_b32 v5, 1, v2
        v_lshl_add_u32 v6, v3, 1, v5
        v_lshlrev_b32 v7, 3, v6
        v_lshl_add_u32 v8, v4, 10, v7
        buffer_load_dwordx2 v[16:17], v8, {R2}, s33 offen
        v_mul_u32_u24 v8, 1056, v4
        s_add_u32 s32, s33, {YB}
        v_add3_u32 v12, v8, v7, s32
        v_lshlrev_b32 v7, 4, v6
        v_lshl_add_u32 v13, v4, 13, v7
        s_lshl_b32 s34, {sW}, 9
        s_add_u32 s34, s34, {M2O}
        s_add_u32 s35, s34, 4096
        v_and_b32 v6, 31, v0
        v_lshlrev_b32 v6, 3, v6
        v_lshl_add_u32 v6, v4, 10, v6
        s_add_u32 s32, s33, {ST}
        v_add_u32 v14, s32, v6
        v_lshlrev_b32 v6, 4, v3
        v_lshl_add_u32 v6, v4, 8, v6
        v_lshl_add_u32 v6, v5, 10, v6
        v_add_u32 v15, {ST}, v6
        v_lshlrev_b32 v6, 4, v3
        v_lshl_add_u32 v26, v2, 10, v6
        s_add_u32 s62, s33, {H4}
        s_add_u32 s63, s62, 4096
        s_add_u32 s0, s62, 8192
        s_add_u32 s1, s62, 12288
        v_mul_u32_u24 v6, 160, v5
        v_lshl_add_u32 v6, v3, 1, v6
        s_lshl_b32 s32, {sW}, 5
        s_add_u32 s32, s32, {AB}
        v_add_u32 v27, s32, v6
        v_bfe_u32 v6, v0, 2, 1
        v_mul_u32_u24 v6, 160, v6
        v_lshl_add_u32 v6, v2, 4, v6
        v_add_u32 v28, {AB}, v6
        v_bfe_u32 v6, v0, 3, 1
        v_mul_u32_u24 v7, 7168, v6
        v_lshl_add_u32 v7, v5, 7, v7
        v_and_b32 v8, 7, v0
        v_lshl_add_u32 v29, v8, 4, v7
        v_xor_b32 v6, v6, v5
        s_mul_i32 s2, {sW}, 14336
        s_lshl_b32 s32, s61, 8
        s_add_u32 s2, s2, s32
        s_add_u32 s2, s2, {H5}
        """)
        self.selmat(8, 6)
        self.poll(f"buffer_load_dwordx4 v[32:35], v13, {WS}, s34 offen sc1\n"
                  f"buffer_load_dwordx4 v[36:39], v13, {WS}, s34 offen offset:2048 sc1\n"
                  f"buffer_load_dwordx4 v[40:43], v13, {WS}, s35 offen sc1", self.sent(range(32, 44), 4))
        self.stamp(8)
        for r in range(4):
            a(f"v_add_f32 v{40+r}, 1.0, v{40+r}")
        a(f"""
        v_cvt_pk_bf16_f32 v4, v40, v41
        v_cvt_pk_bf16_f32 v5, v42, v43
        v_cvt_pk_bf16_f32 v6, v36, v37
        v_cvt_pk_bf16_f32 v7, v38, v39
        ds_write_b64 v12, v[4:5] offset:2112
        ds_write_b64 v12, v[6:7] offset:4224
        v_lshlrev_b32 v40, 16, v4
        v_and_b32 v41, 0xffff0000, v4
        v_lshlrev_b32 v42, 16, v5
        v_and_b32 v43, 0xffff0000, v5
        v_lshlrev_b32 v36, 16, v16
        v_and_b32 v37, 0xffff0000, v16
        v_lshlrev_b32 v38, 16, v17
        v_and_b32 v39, 0xffff0000, v17
        """)
        so = ["s62", "s63", "s0", "s1"]
        self.poll("\n".join(f"buffer_load_dwordx4 {vr(48+4*j)}, v26, {WS}, {so[j]} offen sc1" for j in range(4)),
                  self.sent(range(48, 64, 2), 4))
        self.stamp(9)
        for j in range(4):
            c = "0" if j == 0 else "v[44:47]"
            a(f"v_mfma_f32_16x16x32_bf16 v[44:47], v[20:23], {vr(48+4*j)}, {c}")
        a(f"""
        v_pk_fma_f32 v[36:37], v[32:33], v[44:45], v[36:37]
        v_pk_fma_f32 v[38:39], v[34:35], v[46:47], v[38:39]
        v_pk_mul_f32 v[40:41], v[40:41], v[36:37]
        v_pk_mul_f32 v[42:43], v[42:43], v[38:39]
        v_cvt_pk_bf16_f32 v4, v40, v41
        v_cvt_pk_bf16_f32 v5, v42, v43
        ds_write_b64 v12, v[4:5]
        v_pk_add_f32 v[6:7], v[36:37], v[38:39]
        v_pk_mul_f32 v[8:9], v[36:37], v[36:37]
        v_pk_fma_f32 v[8:9], v[38:39], v[38:39], v[8:9]
        v_add_f32 v6, v6, v7
        v_add_f32 v7, v8, v9
        ds_write_b64 v14, v[6:7]
        s_waitcnt lgkmcnt(0)
        s_barrier
        ds_read_b128 v[32:35], v15
        ds_read_b128 v[36:39], v15 offset:512
        """)
        d = lambda c: [f"v_add_f32_dpp v{r}, v{r}, v{r} {c} row_mask:0xf bank_mask:0xf" for r in (32, 33)] + ["s_nop 0"]
        fill = ["v_pk_add_f32 v[32:33], v[32:33], v[34:35]", "v_pk_add_f32 v[36:37], v[36:37], v[38:39]",
                "v_pk_add_f32 v[32:33], v[32:33], v[36:37]"]
        for c in ("quad_perm:[1,0,3,2]", "quad_perm:[2,3,0,1]", "row_half_mirror", "row_mirror"):
            fill += d(c)
        fill += ["v_mov_b32 v34, v32", "v_mov_b32 v35, v33", "s_nop 0",
                 "v_permlane32_swap_b32 v32, v34", "v_permlane32_swap_b32 v33, v35", "s_nop 0",
                 "v_pk_add_f32 v[32:33], v[32:33], v[34:35]", "v_mov_b32 v34, 0x3727c5ac",
                 "v_mul_f32 v32, 0x3b000000, v32", "v_fmac_f32 v34, 0x3b000000, v33",
                 "v_fma_f32 v34, -v32, v32, v34", "v_rsq_f32 v34, v34"]
        self.actgemm(11, fill)
        a(f"""
        s_mov_b32 exec_hi, 0
        v_pk_add_f32 v[104:105], v[104:105], v[108:109]
        v_add_f32 v106, v106, v110
        v_fma_f32 v104, -v32, v105, v104
        v_fma_f32 v104, v34, v104, v106
        v_max_f32 v104, 0, v104
        v_cvt_pk_bf16_f32 v104, v104, v104
        ds_write_b16 v27, v104
        s_mov_b32 exec_hi, -1
        s_waitcnt lgkmcnt(0)
        s_barrier
        ds_read_b128 v[32:35], v28
        ds_read_b128 v[36:39], v28 offset:64
        """)
        self.stamp(10)
        for s in range(2):
            a(f"s_waitcnt lgkmcnt({1-s})")
            for t in range(8):
                c = "0" if s == 0 else vr(128 + 4 * t)
                a(f"v_mfma_f32_16x16x32_bf16 {vr(128+4*t)}, {vr(32+4*s)}, {ar(64+(t*2+s)*4)}, {c}")
        a("s_mov_b32 exec_hi, 0")
        for i in range(4):
            a(f"v_cvt_pk_bf16_f32 v{40+i}, v{128+8*i}, v{132+8*i}")
        a(f"buffer_store_dwordx4 v[40:43], v29, {WS}, s2 offen sc1")
        self.stamp(11)
        a("s_branch FIN")

    def m2(self):
        a = self.a
        self.sect = "M"
        a(f"""
        v_add_u32 v11, {SL}, v5
        v_lshlrev_b32 v4, 2, v3
        v_lshl_add_u32 v12, v2, 13, v4
        s_lshl2_add_u32 s34, s61, {sW}
        s_lshl_b32 s34, s34, 6
        s_add_u32 s34, s34, {M2O}
        s_waitcnt lgkmcnt(0)
        """)
        self.actgemm(11)
        a(f"""
        s_mov_b32 exec_hi, 0
        v_add_f32 v104, v104, v108
        v_cvt_pk_bf16_f32 v104, v104, v104
        v_lshlrev_b32 v104, 16, v104
        buffer_store_dword v104, v12, {WS}, s34 offen sc1
        s_mov_b32 exec_hi, -1
        """)
        self.stamp(8)
        a(f"""
        s_cmp_lt_u32 s61, 24
        s_cbranch_scc1 FIN
        s_cmp_lg_u32 {sW}, 0
        s_cbranch_scc1 FIN
        s_sub_u32 s61, s61, 24
        """)
        self.srd(R2, 4, 2048)
        self.srd(R3, 26, 2048)
        a(f"""
        v_bfe_u32 v4, v0, 3, 1
        v_and_b32 v5, 7, v0
        v_lshl_add_u32 v6, v5, 2, v2
        v_lshlrev_b32 v7, 2, v6
        v_lshl_add_u32 v7, v4, 10, v7
        s_lshl_b32 s33, s61, 7
        buffer_load_dword v16, v7, {R2}, s33 offen
        v_lshlrev_b32 v7, 3, v6
        v_lshl_add_u32 v11, v4, 13, v7
        v_lshl_add_u32 v7, v4, 8, v7
        v_add_u32 v12, {XF}, v7
        v_bfe_u32 v6, v0, 2, 1
        v_lshl_add_u32 v6, v6, 2, v2
        v_and_b32 v7, 3, v0
        v_lshl_add_u32 v6, v6, 3, v7
        v_lshlrev_b32 v8, 2, v6
        v_lshl_add_u32 v13, v4, 13, v8
        v_lshl_add_u32 v8, v4, 8, v8
        v_add_u32 v14, {XF}, v8
        v_lshlrev_b32 v8, 1, v6
        v_lshl_add_u32 v15, v4, 10, v8
        v_lshrrev_b32 v8, 3, v0
        v_lshlrev_b32 v8, 10, v8
        v_lshl_add_u32 v26, v5, 4, v8
        s_lshl_b32 s34, s61, 8
        s_add_u32 s34, s34, {M2O}
        s_add_u32 s35, s34, 6144
        s_add_u32 s62, s33, {H4}
        s_add_u32 s63, s62, 8192
        s_mul_i32 s0, s61, 7168
        s_add_u32 s0, s0, {H5}
        s_add_u32 s1, s0, 4096
        v_bfe_u32 v8, v0, 2, 2
        v_and_b32 v6, 1, v0
        v_lshl_add_u32 v8, v8, 1, v6
        v_bfe_u32 v6, v0, 1, 1
        """)
        self.selmat(8, 6)
        self.poll(f"buffer_load_dwordx2 v[32:33], v11, {WS}, s34 offen sc1\n"
                  f"buffer_load_dword v34, v13, {WS}, s35 offen sc1\n"
                  f"buffer_load_dword v35, v13, {WS}, s35 offen offset:16 sc1", self.sent(range(32, 36), 4))
        a("v_lshlrev_b32 v36, 16, v16\nv_and_b32 v37, 0xffff0000, v16")
        self.poll(f"buffer_load_dwordx4 v[48:51], v26, {WS}, s62 offen sc1\n"
                  f"buffer_load_dwordx4 v[52:55], v26, {WS}, s63 offen sc1", self.sent(range(48, 56, 2), 4))
        self.stamp(9)
        a(f"""
        v_mfma_f32_16x16x32_bf16 v[44:47], v[20:23], v[48:51], 0
        v_mfma_f32_16x16x32_bf16 v[44:47], v[20:23], v[52:55], v[44:47]
        v_pk_fma_f32 v[36:37], v[32:33], v[44:45], v[36:37]
        ds_write_b64 v12, v[36:37]
        s_waitcnt lgkmcnt(0)
        ds_read_b32 v36, v14
        ds_read_b32 v37, v14 offset:16
        s_cmp_lg_u32 s61, 0
        s_cbranch_scc1 W_NOGEN
        s_mov_b64 exec, 1
        buffer_store_dword v118, v0, {WS}, 0 offen sc1
        s_mov_b64 exec, -1
        W_NOGEN:
        """)
        self.poll("\n".join(f"buffer_load_dwordx4 {vr(48+4*j)}, v1, {WS}, {'s0' if j < 4 else 's1'} offen offset:{(j&3)*1024} sc1" for j in range(7)),
                  self.sent(range(48, 76, 4), 4))
        self.stamp(10)
        for j in range(7):
            c = "0" if j < 2 else vr(40 + 4 * (j & 1))
            a(f"v_mfma_f32_16x16x32_bf16 {vr(40+4*(j&1))}, v[20:23], {vr(48+4*j)}, {c}")
        a(f"""
        s_waitcnt lgkmcnt(0)
        v_pk_add_f32 v[40:41], v[40:41], v[44:45]
        v_pk_fma_f32 v[36:37], v[34:35], v[40:41], v[36:37]
        v_cvt_pk_bf16_f32 v36, v36, v37
        buffer_store_short v36, v15, {R3}, s33 offen
        buffer_store_short_d16_hi v36, v15, {R3}, s33 offen offset:8
        """)
        self.stamp(11)

    def fin(self):
        a = self.a
        a("FIN:")
        if self.diag:
            a("s_mov_b64 exec, -1\ns_waitcnt vmcnt(0)")
            self.stamp(15)
            a(f"""
            s_waitcnt lgkmcnt(0)
            s_lshl2_add_u32 s32, s101, {sW}
            s_lshl_b32 s32, s32, 6
            s_add_u32 s32, s32, {STAMP}
            """)
            for i in range(16):
                a(f"v_mov_b32 v{16+i}, s{64+2*i}")
            a("s_mov_b64 exec, 1")
            for i in range(4):
                a(f"buffer_store_dwordx4 {vr(16+4*i)}, v0, {WS}, s32 offen offset:{16*i}")
        if self.probe:
            wg = self.opt.get("probewg")
            if wg is not None:
                a(f"s_cmp_lg_u32 s101, {wg}\ns_cbranch_scc1 EXIT")
            a(f"""
            s_waitcnt lgkmcnt(0)
            s_cmp_eq_u64 s[64:65], 0
            s_cbranch_scc1 EXIT
            s_add_u32 s32, s64, {self.opt.get("spin", 4000)}
            PROBE:
            s_memrealtime s[34:35]
            s_waitcnt lgkmcnt(0)
            s_sub_u32 s33, s34, s32
            s_cmp_lt_i32 s33, 0
            s_cbranch_scc1 PROBE
            """)
        a("EXIT:")

    def build(self):
        if self.diag:
            self.a("s_mov_b32 s101, s2")
        self.entry()
        self.arole()
        self.wrole()
        self.fin()
        return wrap(pad(self.a.text()), 256, 256, 163840)


if __name__ == "__main__":
    out = sys.argv[1]
    opts = dict(kv.split("=") for kv in sys.argv[2:])
    opts = {k: (int(v) if v.lstrip('-').isdigit() else v) for k, v in opts.items()}
    open(out, "w").write(G(**opts).build())
```

```python
import sys
from asmlib import Asm, wrap, KNAME
from hazard import pad

FLAG, HQ, H1 = 0x10000, 0x20000, 0xC0000
SB = 0x60000
H4, H2, H3B, M2O, ML, H5 = SB, SB + 0x20000, SB + 0x30000, SB + 0x44000, SB + 0x48000, SB + 0x50000
H3 = 0x100000
STAMP = 200 << 20
TAGC = 0x9E3779B9
NPOLL = 20000

Q = 131072
SIL = Q + 8192
PB = Q
MX = Q + 8192
XU = 32768
WQ, WK, W2R = 0, 32768, 65536
X1, X2 = 131072, 135168
XO = 139264
YB = 139264
ST = 149504
AB = 151552
SL = 139264
XF = 152064

WS = "s[36:39]"
R1, R2, R3, R4 = "s[40:43]", "s[44:47]", "s[48:51]", "s[52:55]"
sW, sXCD, sID, sTAG, sCNT = "s3", "s56", "s58", "s59", "s57"
LOG2E = 0x3FB8AA3B
QSCALE = 0x3E0293EE


def vr(b, n=4):
    return f"v[{b}:{b+n-1}]"


def ar(b, n=4):
    return f"a[{b}:{b+n-1}]"


class G:
    def __init__(self, diag=False, **opt):
        self.a = Asm()
        self.diag = diag
        self.opt = opt
        self.sect = "E"
        p = opt.get("probe")
        self.probe = (p[0], int(p[1:])) if p else None

    def stamp(self, i):
        if self.diag:
            self.a(f"s_memrealtime s[{64+2*i}:{65+2*i}]")
        elif self.probe == (self.sect, i):
            self.a("s_memrealtime s[64:65]")

    def srd(self, r, ptr, size):
        b = int(r[2:4])
        self.a(f"s_mov_b64 s[{b}:{b+1}], s[{ptr}:{ptr+1}]\ns_mov_b32 s{b+2}, {size}")

    def execmask(self, m):
        lo, hi = m & 0xFFFFFFFF, m >> 32
        self.a(f"s_mov_b32 exec_lo, 0x{lo:x}\ns_mov_b32 exec_hi, 0x{hi:x}")

    def premask(self, s, m):
        lo, hi = m & 0xFFFFFFFF, m >> 32
        self.a(f"s_mov_b32 s{s}, 0x{lo:x}\ns_mov_b32 s{s+1}, 0x{hi:x}")

    def poll(self, loads, check):
        a = self.a
        lp, ok = a.label("POLL"), a.label("POK")
        a(f"s_movk_i32 {sCNT}, {NPOLL}\n{lp}:")
        a(loads)
        a("s_waitcnt vmcnt(0)")
        a(check)
        a(f"""
        s_cbranch_vccz {ok}
        s_sub_u32 {sCNT}, {sCNT}, 1
        s_cbranch_scc0 {lp}
        {ok}:
        """)

    @staticmethod
    def sent(regs, t):
        regs = list(regs)
        if len(regs) == 1:
            return f"v_cmp_eq_u32 vcc, -1, v{regs[0]}"
        s = []
        if len(regs) % 2 == 0:
            s.append(f"v_max_u32 v{t}, v{regs[0]}, v{regs[1]}")
            regs = regs[2:]
        else:
            s.append(f"v_max3_u32 v{t}, v{regs[0]}, v{regs[1]}, v{regs[2]}")
            regs = regs[3:]
        while regs:
            s.append(f"v_max3_u32 v{t}, v{t}, v{regs[0]}, v{regs[1]}")
            regs = regs[2:]
        s.append(f"v_cmp_eq_u32 vcc, -1, v{t}")
        return "\n".join(s)

    def dpp(self, op, regs, ctrl):
        for r in regs:
            self.a(f"{op}_dpp v{r}, v{r}, v{r} {ctrl} row_mask:0xf bank_mask:0xf")

    def swapred(self, op, regs, tmps, which):
        a = self.a
        for r, t in zip(regs, tmps):
            a(f"v_mov_b32 v{t}, v{r}")
        for r, t in zip(regs, tmps):
            a(f"v_permlane{which}_swap_b32 v{r}, v{t}")
        for r, t in zip(regs, tmps):
            a(f"{op} v{r}, v{r}, v{t}")

    def silu(self, pairs, t):
        a = self.a
        n = len(pairs)
        x = [t + i for i in range(2 * n)]
        e = [t + 2 * n + i for i in range(2 * n)]
        for i, p in enumerate(pairs):
            a(f"v_lshlrev_b32 v{x[2*i]}, 16, v{p}\nv_and_b32 v{x[2*i+1]}, 0xffff0000, v{p}")
        for i in range(2 * n):
            a(f"v_mul_f32 v{e[i]}, 0x{LOG2E | 0x80000000:x}, v{x[i]}")
        for i in range(2 * n):
            a(f"v_exp_f32 v{e[i]}, v{e[i]}")
        for i in range(2 * n):
            a(f"v_add_f32 v{e[i]}, 1.0, v{e[i]}")
        for i in range(2 * n):
            a(f"v_rcp_f32 v{e[i]}, v{e[i]}")
        for i in range(2 * n):
            a(f"v_mul_f32 v{x[i]}, v{x[i]}, v{e[i]}")
        for i, p in enumerate(pairs):
            a(f"v_cvt_pk_bf16_f32 v{p}, v{x[2*i]}, v{x[2*i+1]}")

    def entry(self):
        a = self.a
        if self.diag:
            for i in range(1, 16):
                a(f"s_mov_b64 s[{64+2*i}:{65+2*i}], 0")
        if self.probe:
            a("s_mov_b64 s[64:65], 0\ns_mov_b32 s101, s2")
        self.stamp(0)
        a(f"""
        s_cmp_ge_u32 s2, 256
        s_cbranch_scc1 EXIT
        s_load_dwordx16 s[4:19], s[0:1], 0
        s_load_dwordx8 s[20:27], s[0:1], 64
        s_load_dwordx4 s[28:31], s[0:1], 96
        v_lshrrev_b32 v1, 6, v0
        v_and_b32 v0, 63, v0
        v_readfirstlane_b32 {sW}, v1
        s_and_b32 {sXCD}, s2, 7
        {"s_bfe_u32 s57, s2, 0x40003" if self.opt.get("hi") else "s_lshr_b32 s57, s2, 4"}
        s_lshl4_add_u32 {sID}, {sXCD}, s57
        v_lshlrev_b32 v1, 4, v0
        v_lshrrev_b32 v2, 4, v0
        v_and_b32 v3, 15, v0
        s_mov_b32 s39, 0x20000
        s_mov_b32 s43, 0x20000
        s_mov_b32 s47, 0x20000
        s_mov_b32 s51, 0x20000
        s_mov_b32 s55, 0x20000
        s_bitcmp1_b32 s2, {7 if self.opt.get('hi') else 3}
        s_cbranch_scc1 WROLE
        """)

    def h3clear(self, late=False):
        a = self.a
        if bool(self.opt.get("late", 1)) != late:
            return
        a("s_mov_b32 s34, s62")
        for i in range(8):
            a(f"buffer_store_dwordx4 v[64:67], v68, {WS}, s34 offen sc1")
            if i < 7:
                a(f"s_add_u32 s34, s34, {131072 * (13 if i == 3 else 1)}")

    def arole(self):
        a = self.a
        self.sect = "A"
        a(f"""
        s_and_b32 s60, {sID}, 15
        s_lshr_b32 s61, {sID}, 4
        v_lshlrev_b32 v4, 4, v3
        v_lshl_or_b32 v68, v2, 19, v4
        v_mov_b32 v64, -1
        v_mov_b32 v65, -1
        v_mov_b32 v66, -1
        v_mov_b32 v67, -1
        s_lshl_b32 s62, {sW}, 15
        s_lshl_b32 s63, {sID}, 8
        s_add_u32 s62, s62, s63
        s_add_u32 s62, s62, {H3}
        s_cmp_ge_u32 {sW}, 2
        s_cbranch_scc1 A_W23
        v_lshrrev_b32 v5, 3, v0
        v_and_b32 v6, 7, v0
        v_lshlrev_b32 v7, 1, v2
        v_xor_b32 v7, v6, v7
        v_mul_u32_u24 v8, 6144, v5
        v_lshrrev_b32 v9, 2, v7
        v_lshl_add_u32 v8, v9, 10, v8
        v_and_b32 v9, 3, v7
        v_lshl_add_u32 v8, v9, 4, v8
        v_and_b32 v10, 1, v5
        v_lshlrev_b32 v10, 10, v10
        v_lshl_add_u32 v11, v2, 3, v6
        v_lshl_add_u32 v11, v11, 5, v10
        v_lshl_add_u32 v12, v2, 3, v10
        s_lshl1_add_u32 s32, s61, {sW}
        s_mul_i32 s32, s32, {32 * 6144}
        s_lshl_b32 s33, s60, 6
        s_add_u32 s32, s32, s33
        s_lshl_b32 s34, {sW}, 5
        s_add_u32 s33, s33, s34
        s_lshl_b32 s34, {sW}, 12
        s_add_u32 m0, s34, {Q}
        s_waitcnt lgkmcnt(0)
        """)
        self.srd(R2, 4, 2048)
        self.srd(R1, 24, 512 * 6144)
        a(f"""
        buffer_load_dwordx4 v[16:19], v11, {R2}, 0 offen
        buffer_load_dwordx4 v[20:23], v11, {R2}, 0 offen offset:16
        buffer_load_dwordx2 v[24:25], v12, {R2}, s33 offen
        """)
        for j in range(4):
            a(f"buffer_load_dwordx4 v8, {R1}, s32 offen offset:{1024*j} nt lds")
            if j < 3:
                a(f"s_add_u32 s32, s32, {8 * 6144 - 1024}")
        a(f"s_load_dword {sTAG}, s[30:31], 0")
        self.srd(WS, 30, 0x10000000)
        self.h3clear()
        a(f"""
        v_lshrrev_b32 v13, 2, v0
        v_lshlrev_b32 v13, 7, v13
        v_and_b32 v14, 3, v5
        v_xor_b32 v14, {sW}, v14
        v_lshl_add_u32 v13, v14, 5, v13
        v_and_b32 v14, 3, v0
        v_lshl_add_u32 v13, v14, 3, v13
        v_add_u32 v13, {Q}, v13
        v_xor_b32 v14, 64, v13
        v_lshrrev_b32 v15, 3, v10
        v_lshl_add_u32 v15, v2, 4, v15
        v_add_u32 v15, {SIL}, v15
        s_cmp_eq_u32 s61, 0
        s_cselect_b32 s32, 1.0, 0
        v_mov_b32 v56, s32
        v_mov_b32 v57, s32
        v_mov_b32 v58, s32
        v_mov_b32 v59, s32
        v_lshlrev_b32 v5, 4, v5
        v_lshl_add_u32 v5, v6, 15, v5
        s_lshl_b32 s32, s60, 11
        s_lshl_b32 s33, s61, 8
        s_add_u32 s32, s32, s33
        s_lshl_b32 s33, {sW}, 7
        s_add_u32 s32, s32, s33
        s_add_u32 s32, s32, {H1}
        s_mov_b32 s33, 0x3f803f80
        v_mov_b32 v26, 0
        v_mov_b32 v27, 0
        """)
        r1 = self.opt.get("r1", 8)
        self.premask(96, 0x0101010101010101 * ((1 << r1) - 1))
        nc = 0 if self.opt.get("late", 1) else 8
        a(f"s_waitcnt vmcnt({5+nc})")
        for i in range(8):
            a(f"v_dot2c_f32_bf16 v26, s33, v{16+i}\nv_dot2c_f32_bf16 v27, v{16+i}, v{16+i}")
        self.dpp("v_add_f32", [26, 27], "quad_perm:[1,0,3,2]")
        self.dpp("v_add_f32", [26, 27], "quad_perm:[2,3,0,1]")
        self.dpp("v_add_f32", [26, 27], "row_half_mirror")
        self.swapred("v_add_f32", [26, 27], [16, 17], 16)
        self.swapred("v_add_f32", [26, 27], [16, 17], 32)
        a(f"""
        v_mul_f32 v26, 0x3b000000, v26
        v_mov_b32 v16, 0x3727c5ac
        v_fmac_f32 v16, 0x3b000000, v27
        v_fma_f32 v16, -v26, v26, v16
        v_rsq_f32 v16, v16
        s_waitcnt vmcnt({4+nc})
        v_lshlrev_b32 v20, 16, v24
        v_and_b32 v21, 0xffff0000, v24
        v_lshlrev_b32 v22, 16, v25
        v_and_b32 v23, 0xffff0000, v25
        """)
        for i in range(4):
            a(f"v_sub_f32 v{20+i}, v{20+i}, v26")
        for i in range(4):
            a(f"v_mul_f32 v{20+i}, v{20+i}, v16")
        a(f"s_waitcnt vmcnt({nc}) lgkmcnt(0)")
        self.stamp(1)
        a(f"""
        s_barrier
        ds_read_b128 v[44:47], v15
        """)
        for s in range(2):
            for blk in range(2):
                for u in range(2):
                    a(f"ds_read_b64_tr_b16 {vr(28 + (s*2+blk)*4 + 2*u, 2)}, v{13+blk} offset:{s*4096 + u*2048}")
            if s == 0:
                a("ds_read_b128 v[48:51], v15 offset:64")
        a(f"""
        s_add_u32 {sTAG}, {sTAG}, 0x{TAGC:x}
        v_mov_b32 v62, {sTAG}
        v_mov_b32 v63, {sTAG}
        s_waitcnt lgkmcnt(7)
        v_mfma_f32_16x16x32_bf16 v[52:55], v[28:31], v[44:47], 0
        s_waitcnt lgkmcnt(5)
        v_mfma_f32_16x16x32_bf16 v[56:59], v[32:35], v[44:47], v[56:59]
        s_waitcnt lgkmcnt(2)
        v_mfma_f32_16x16x32_bf16 v[52:55], v[36:39], v[48:51], v[52:55]
        s_waitcnt lgkmcnt(0)
        v_mfma_f32_16x16x32_bf16 v[56:59], v[40:43], v[48:51], v[56:59]
        s_mov_b64 exec, s[96:97]
        v_pk_fma_f32 v[52:53], v[20:21], v[56:57], v[52:53]
        v_pk_fma_f32 v[54:55], v[22:23], v[58:59], v[54:55]
        v_cvt_pk_bf16_f32 v60, v52, v53
        v_cvt_pk_bf16_f32 v61, v54, v55
        buffer_store_dwordx4 v[60:63], v5, {WS}, s32 offen sc1
        s_mov_b64 exec, -1
        """)
        self.stamp(2)
        a(f"""
        s_branch A_STREAM
        A_W23:
        s_cmp_eq_u32 {sW}, 3
        s_cbranch_scc1 A_W3
        v_lshrrev_b32 v5, 5, v0
        v_and_b32 v6, 31, v0
        v_lshlrev_b32 v7, 2, v6
        v_lshl_add_u32 v7, v5, 10, v7
        s_lshl_b32 s32, s61, 7
        s_waitcnt lgkmcnt(0)
        """)
        self.srd(R3, 22, 2048)
        a(f"""
        buffer_load_dword v16, v7, {R3}, s32 offen
        s_load_dword {sTAG}, s[30:31], 0
        """)
        self.srd(WS, 30, 0x10000000)
        self.h3clear()
        a(f"""
        v_lshlrev_b32 v8, 6, v2
        v_bfe_u32 v9, v0, 1, 2
        v_lshl_add_u32 v8, v9, 4, v8
        v_and_b32 v9, 8, v0
        v_add_u32 v8, v8, v9
        v_and_b32 v9, 1, v0
        v_lshl_add_u32 v8, v9, 2, v8
        v_add_u32 v8, {SIL}, v8
        s_waitcnt vmcnt({nc})
        """)
        self.silu([16], 20)
        a(f"""
        ds_write_b32 v8, v16
        s_branch A_W23B
        A_W3:
        s_mul_i32 s32, {sID}, 3072
        s_add_u32 s32, s32, {SB}
        s_waitcnt lgkmcnt(0)
        """)
        self.srd(WS, 30, 0x10000000)
        a(f"""
        buffer_store_dwordx4 v[64:67], v1, {WS}, s32 offen sc1
        buffer_store_dwordx4 v[64:67], v1, {WS}, s32 offen offset:1024 sc1
        buffer_store_dwordx4 v[64:67], v1, {WS}, s32 offen offset:2048 sc1
        s_load_dword {sTAG}, s[30:31], 0
        """)
        self.h3clear()
        a(f"""
        s_waitcnt vmcnt({nc})
        A_W23B:
        s_waitcnt lgkmcnt(0)
        """)
        self.stamp(1)
        a(f"""
        s_barrier
        s_add_u32 {sTAG}, {sTAG}, 0x{TAGC:x}
        A_STREAM:
        """)
        self.srd(R4, 6, 1 << 24)
        a(f"""
        s_lshl_b32 s32, {sID}, 17
        s_lshl_b32 s33, {sW}, 15
        s_add_u32 s32, s32, s33
        """)
        fk = lambda k: ((k & 7) << 1) | ((k >> 3) & 1)
        for k in range(32):
            if k % 4 == 0:
                a(f"s_add_u32 m0, s33, {k*1024}")
            if k == 16:
                a("s_add_u32 s32, s32, 16384")
            if k < 16:
                a(f"v_xor_b32 v{70+k}, {fk(k)*16 + (k & ~3)*1024}, v1")
            thr = self.opt.get("thr", 0)
            if thr and k >= thr:
                a(f"s_waitcnt vmcnt({thr-1})")
            if k < self.opt.get("nstream", 32):
                a(f"buffer_load_dwordx4 v{70+(k&15)}, {R4}, s32 offen offset:{(k&3)*1024} nt lds")
        self.stamp(3)
        self.srd(R1, 12, 1 << 22)
        a(f"""
        v_and_b32 v4, 31, v0
        v_lshrrev_b32 v5, 5, v0
        v_and_b32 v6, 7, v0
        v_bfe_u32 v7, v0, 3, 1
        v_lshl_or_b32 v6, v6, 1, v7
        v_xor_b32 v6, v6, v5
        v_lshlrev_b32 v6, 4, v6
        v_lshl_add_u32 v6, v4, 10, v6
        v_add_u32 v69, s33, v6
        v_xor_b32 v6, v3, v5
        v_lshlrev_b32 v6, 4, v6
        v_lshl_add_u32 v6, v4, 8, v6
        v_add_u32 v70, {Q}, v6
        """)
        for i in range(1, 8):
            a(f"v_xor_b32 v{70+i}, {32*i}, v70")
        a(f"""
        v_bfe_u32 v6, v0, 2, 3
        v_lshl_add_u32 v7, v5, 4, v6
        v_lshlrev_b32 v7, 10, v7
        v_lshl_add_u32 v7, v6, 5, v7
        v_and_b32 v6, 3, v0
        v_lshl_add_u32 v7, v6, 3, v7
        s_lshl_b32 s32, {sW}, 8
        v_add_u32 v78, s32, v7
        v_xor_b32 v6, v3, v2
        v_lshlrev_b32 v6, 4, v6
        v_lshl_add_u32 v124, v2, 8, v6
        v_xor_b32 v125, 64, v124
        v_xor_b32 v126, 128, v124
        v_xor_b32 v127, 192, v124
        v_lshlrev_b32 v6, 4, v3
        v_lshl_add_u32 v82, v2, 13, v6
        s_lshl_b32 s32, {sW}, 2
        s_add_u32 s32, s32, {MX}
        v_lshlrev_b32 v6, 4, v4
        v_add_u32 v8, s32, v6
        v_add_u32 v9, {MX}, v6
        s_lshl_b32 s32, {sW}, 11
        s_add_u32 s32, s32, {PB}
        v_add_u32 v10, s32, v1
        v_lshlrev_b32 v6, 4, v3
        v_lshl_add_u32 v6, v2, 9, v6
        v_add_u32 v11, {PB}, v6
        v_lshlrev_b32 v12, 10, v0
        s_lshr_b32 s60, {sID}, 6
        s_lshl2_add_u32 s60, s60, {sW}
        s_lshl_b32 s60, s60, 13
        s_add_u32 s60, s60, {H2}
        s_and_b32 s63, {sID}, 3
        s_lshl2_add_u32 s63, s63, {sW}
        s_lshl_b32 s63, s63, 18
        s_lshr_b32 s32, {sID}, 2
        s_lshl_b32 s32, s32, 8
        s_add_u32 s63, s63, s32
        s_lshr_b32 s61, {sID}, {7 - self.opt.get("rf", 3)}
        s_lshl2_add_u32 s61, s61, {sW}
        s_lshl_b32 s61, s61, 7
        s_add_u32 s61, s61, {FLAG}
        s_add_u32 s2, s61, 64
        s_mov_b32 s0, {sTAG}
        s_mov_b32 s1, {sTAG}
        """)
        pre = self.opt.get("pre", 0)

        def wuv():
            self.h3clear(True)
            a("s_mov_b32 s32, s63")
            for s in range(8):
                a(f"buffer_load_dwordx4 {vr(128+4*s)}, v82, {R1}, s32 offen nt")
                if s < 7:
                    a("s_add_u32 s32, s32, 32768")

        def areads():
            for i in range(8):
                if i:
                    a(f"v_xor_b32 v{79+(i&1)}, {32*i}, v69")
                for q in range(4):
                    a(f"ds_read_b128 {ar((q*8+i)*4)}, v{69 if i == 0 else 79+(i&1)} offset:{q*256}")

        def trreads(s):
            kwh, j, u = s >> 4, (s >> 1) & 7, s & 1
            a(f"v_xor_b32 v{79+u}, {j*32 + u*16 + kwh*65536}, v78")
            for kl in range(2):
                kw = 2 * kwh + kl
                a(f"ds_read_b64_tr_b16 {ar(128 + (kw*8+j)*4 + 2*u, 2)}, v{79+u} offset:{u*8192 + kl*32768}")

        if pre:
            wuv()
        if pre >= 2:
            a("s_waitcnt vmcnt(16)")
            self.stamp(5)
            areads()
            a("s_barrier")
            for s in range(32):
                trreads(s)
        a(f"""
        s_movk_i32 {sCNT}, {NPOLL}
        A_FPOLL:
        s_buffer_load_dwordx16 s[4:19], {WS}, s61 glc
        s_buffer_load_dwordx16 s[20:35], {WS}, s2 glc
        s_sub_u32 {sCNT}, {sCNT}, 1
        s_cbranch_scc1 A_FTIME
        s_waitcnt lgkmcnt(0)
        """)
        for i in range(16):
            a(f"s_cmp_lg_u64 s[{4+2*i}:{5+2*i}], s[0:1]\ns_cbranch_scc1 A_FPOLL")
        a(f"""
        A_FTIME:
        s_waitcnt lgkmcnt(0)
        s_movk_i32 {sCNT}, 2000
        A_QDMA:
        """)
        self.stamp(4)
        a(f"""
        s_lshl_b32 s32, {sW}, 13
        s_add_u32 m0, s32, {Q}
        s_add_u32 s33, s60, 4096
        """)
        for j in range(8):
            if j == 4:
                a(f"s_add_u32 m0, s32, {Q + 4096}")
            a(f"buffer_load_dwordx4 v{124+(j&3)}, {WS}, {'s60' if j < 4 else 's33'} offen offset:{(j&3)*1024} sc1 lds")
        late = self.opt.get("late", 1)
        if late and not pre:
            wuv()
        if pre < 2:
            a(f"s_waitcnt vmcnt({24 if late else 8})")
            self.stamp(5)
            areads()
        a(f"v_mov_b32 v81, 0\ns_mov_b32 s32, s63\ns_waitcnt vmcnt({16 if late and not pre else 0})")
        self.stamp(6)
        a("s_barrier")
        D, NS = 4, 5
        bs = lambda s: 84 + 4 * (s % NS)
        rdB = lambda s: f"ds_read_b128 {vr(bs(s))}, v{70+(s&7)} offset:{(s>>3)*8192}"
        for s in range(D):
            a(rdB(s))
        for s in range(32):
            if pre >= 2:
                n = min(D - 1, 31 - s)
            elif s < D:
                n = (D - 1 - s) + 3 * s
            else:
                n = 2 + sum(3 if t + D < 32 else 2 for t in range(s - D + 1, s))
            a(f"s_waitcnt lgkmcnt({n})")
            a(f"v_mfma_f32_32x32x16_bf16 v[108:123], {ar(4*s)}, {vr(bs(s))}, {'0' if s == 0 else 'v[108:123]'}")
            if s + D < 32:
                a(rdB(s + D))
            if pre < 2:
                trreads(s)
            a(f"v_max3_u32 v81, v81, v{bs(s)}, v{bs(s)+2}")
            if s < 8 and not late:
                a(f"buffer_load_dwordx4 {vr(128+4*s)}, v82, {R1}, s32 offen nt")
                a("s_add_u32 s32, s32, 32768")
            if s == 20:
                a("s_barrier")
        a(f"""
        v_cmp_eq_u32 vcc, -1, v81
        s_cbranch_vccnz A_REDO
        A_QOK:
        """)
        self.stamp(7)
        a("v_max3_f32 v4, v108, v109, v110\nv_max3_f32 v5, v111, v112, v113")
        a("v_max3_f32 v4, v4, v114, v115\nv_max3_f32 v5, v5, v116, v117")
        a("v_max3_f32 v4, v4, v118, v119\nv_max3_f32 v5, v5, v120, v121")
        a("v_max3_f32 v4, v4, v122, v123\nv_max_f32 v4, v4, v5")
        self.swapred("v_max_f32", [4], [5], 32)
        a(f"""
        ds_write_b32 v8, v4
        s_waitcnt lgkmcnt(0)
        s_barrier
        ds_read_b128 v[4:7], v9
        s_waitcnt lgkmcnt(0)
        v_max3_f32 v4, v4, v5, v6
        v_max_f32 v14, v4, v7
        """)
        for st in range(2):
            for i in range(8):
                a(f"v_sub_f32 v{108+8*st+i}, v{108+8*st+i}, v14")
            for i in range(8):
                a(f"v_exp_f32 v{108+8*st+i}, v{108+8*st+i}")
            for i in range(4):
                a(f"v_cvt_pk_bf16_f32 v{84+4*st+i}, v{108+8*st+2*i}, v{109+8*st+2*i}")
            a(f"ds_write_b128 v10, {vr(84+4*st)} offset:{st*1024}")
        a("s_waitcnt vmcnt(8) lgkmcnt(0)\ns_barrier")
        self.stamp(8)
        for ht in range(2):
            for kw in range(4):
                a(f"ds_read_b128 {vr(160+(ht*4+kw)*4)}, v11 offset:{kw*2048 + ht*256}")
        a(f"""
        s_mov_b32 s33, 0x3f803f80
        v_mov_b32 v15, 0
        v_mov_b32 v16, 0
        s_lshl_b32 s34, {sW}, 3
        s_lshl_b32 s96, 0xff, s34
        s_mov_b32 s97, 0
        s_lshl_b32 s35, {sID}, 3
        s_add_u32 s35, s35, {ML}
        s_mov_b32 s34, s62
        """)
        side = []
        for ht in range(2):
            for i in range(16):
                side.append(f"v_dot2c_f32_bf16 v{15+ht}, s33, v{160+ht*16+i}")
        side += ["s_nop 0", "v_permlane16_swap_b32 v15, v16", "v_add_f32 v15, v15, v16", "v_mov_b32 v16, v15", "s_nop 0",
                 "v_permlane32_swap_b32 v15, v16", "v_add_f32 v15, v15, v16",
                 f"s_mov_b64 exec, s[96:97]\nbuffer_store_dwordx2 v[14:15], v12, {WS}, s35 offen sc1\ns_mov_b64 exec, -1"]
        acc = lambda ht, j: 192 + ht * 32 + j * 4
        gr = lambda ht, r: 84 + ht * 16 + r * 4
        late = {}
        for ht in range(2):
            for jp in range(4):
                blk = ht * 4 + jp
                cv = [f"v_cvt_pk_bf16_f32 v{gr(ht, r)+jp}, v{acc(ht, 2*jp)+r}, v{acc(ht, 2*jp+1)+r}" for r in range(4)]
                if jp == 3:
                    nv = []
                    for r in range(4):
                        nv.append(cv[r])
                        st = f"buffer_store_dwordx4 {vr(gr(ht, r))}, v68, {WS}, s34 offen sc1"
                        if not (ht == 1 and r == 3):
                            st += f"\ns_add_u32 s34, s34, {131072 * (13 if r == 3 else 1)}"
                        nv.append(st)
                    cv = nv
                late[blk + 1] = cv
        first = True
        for blk in range(8):
            ht, jp = blk >> 2, blk & 3
            pend = list(late.get(blk, []))
            for kw in range(4):
                if blk == 0:
                    a(f"s_waitcnt lgkmcnt({7-kw})")
                for jj in range(2):
                    j = 2 * jp + jj
                    c = "0" if kw == 0 else vr(acc(ht, j))
                    a(f"v_mfma_f32_16x16x32_bf16 {vr(acc(ht, j))}, {vr(160+(ht*4+kw)*4)}, {ar(128+(kw*8+j)*4)}, {c}")
                    if blk == 0 and kw == 3 and jj == 1:
                        a("s_waitcnt lgkmcnt(0)")
                    n = 2
                    if blk >= 1 and kw >= 2:
                        for _ in range(2):
                            if pend:
                                a(pend.pop(0))
                                n -= 1
                    if blk >= 1:
                        for _ in range(n):
                            if side:
                                a(side.pop(0))
            assert not pend
        assert not side
        for x in late[8]:
            a(x)
        self.stamp(9)
        a(f"""
        s_lshl_b32 s32, {sW}, 7
        s_and_b32 s32, s32, 128
        s_lshl_b32 s33, {sW}, 13
        v_xor_b32 v4, s32, v1
        v_add_u32 v4, s33, v4
        v_xor_b32 v5, 64, v4
        s_waitcnt vmcnt(9)
        """)
        for j in range(8):
            a(f"ds_write_b128 v{4+(j>>2)}, {vr(128+4*j)} offset:{j*1024}")
        a(f"""
        s_and_b32 s32, {sW}, 1
        s_lshl_b32 s33, s32, 3
        v_xor_b32 v6, s33, v0
        v_lshlrev_b32 v6, 3, v6
        s_lshr_b32 s34, {sW}, 1
        s_lshr_b32 s35, {sID}, 2
        s_lshl1_add_u32 s35, s35, s34
        s_lshl_b32 s35, s35, 9
        s_add_u32 s35, s35, {ML}
        s_lshl3_add_u32 s34, s34, s32
        s_lshl_b32 s34, s34, 11
        s_lshl_b32 s32, {sID}, 15
        s_add_u32 s34, s34, s32
        s_add_u32 s34, s34, {H3}
        v_lshlrev_b32 v7, 4, v3
        v_lshl_add_u32 v7, v2, 12, v7
        v_bfe_u32 v8, v0, 2, 2
        v_xor_b32 v9, {sW}, v8
        v_lshlrev_b32 v9, 6, v9
        v_lshl_add_u32 v9, v8, 12, v9
        v_lshl_add_u32 v9, v2, 8, v9
        v_and_b32 v8, 3, v0
        v_lshl_add_u32 v9, v8, 4, v9
        v_mul_u32_u24 v10, 288, v8
        v_lshl_add_u32 v10, v2, 4, v10
        s_mul_i32 s32, {sW}, 288
        v_lshlrev_b32 v11, 4, v3
        v_lshl_add_u32 v11, v2, 3, v11
        v_add_u32 v11, s32, v11
        v_and_b32 v12, 1, v0
        v_lshlrev_b32 v12, 4, v12
        s_mov_b32 s32, 0xffff
        v_lshlrev_b32 v12, v12, s32
        v_lshrrev_b32 v13, 1, v3
        """)
        for i in range(4):
            a(f"v_cmp_eq_u32 vcc, {i}, v13\nv_cndmask_b32 v{20+i}, 0, v12, vcc")
        a(f"""
        v_bfe_u32 v12, v0, 1, 1
        v_lshlrev_b32 v12, 8, v12
        v_lshl_add_u32 v12, v2, 4, v12
        s_lshl_b32 s60, {sID}, 9
        s_lshl_b32 s32, {sW}, 6
        s_add_u32 s60, s60, s32
        s_add_u32 s60, s60, {H3B}
        """)
        self.premask(96, 0x0005000500050005)
        a("s_waitcnt lgkmcnt(0)\ns_barrier")
        for s in range(4):
            for t in range(2):
                for u in range(2):
                    a(f"ds_read_b64_tr_b16 {vr(128+(s*2+t)*4+2*u, 2)}, v9 offset:{u*16384 + s*1024 + t*8}")
        self.poll(f"buffer_load_dwordx2 v[16:17], v6, {WS}, s35 offen sc1", self.sent([16], 18))
        self.stamp(10)
        oloads = "\n".join(f"buffer_load_dwordx4 {vr(160+4*j)}, v7, {WS}, s34 offen offset:{j*256} sc1" for j in range(8))
        a(oloads)
        a("v_mov_b32 v18, v16")
        for c in ("quad_perm:[1,0,3,2]", "quad_perm:[2,3,0,1]", "row_half_mirror", "row_mirror"):
            self.dpp("v_max_f32", [18], c)
        self.swapred("v_max_f32", [18], [19], 16)
        self.swapred("v_max_f32", [18], [19], 32)
        a("v_sub_f32 v16, v16, v18\nv_exp_f32 v16, v16\nv_mul_f32 v18, v16, v17")
        for c in ("quad_perm:[1,0,3,2]", "quad_perm:[2,3,0,1]", "row_half_mirror", "row_mirror"):
            self.dpp("v_add_f32", [18], c)
        self.swapred("v_add_f32", [18], [19], 16)
        self.swapred("v_add_f32", [18], [19], 32)
        a("v_rcp_f32 v18, v18\nv_mul_f32 v16, v16, v18\nv_cvt_pk_bf16_f32 v16, v16, v16")
        for j in range(8):
            for i in range(4):
                a(f"v_and_b32_dpp v{192+4*j+i}, v16, v{20+i} row_newbcast:{j} row_mask:0xf bank_mask:0xf")
        chk = self.sent([160 + 4 * j for j in range(8)], 18)
        a(f"""
        s_movk_i32 {sCNT}, {NPOLL}
        A_OWAIT:
        s_waitcnt vmcnt(0)
        {chk}
        s_cbranch_vccnz A_OREDO
        A_OOK:
        """)
        self.stamp(11)
        for j in range(8):
            c = "0" if j < 2 else vr(24 + 4 * (j & 1))
            a(f"v_mfma_f32_16x16x32_bf16 {vr(24+4*(j&1))}, {vr(192+4*j)}, {vr(160+4*j)}, {c}")
        a(f"""
        s_mov_b32 exec_hi, 0
        v_pk_add_f32 v[24:25], v[24:25], v[28:29]
        v_pk_add_f32 v[26:27], v[26:27], v[30:31]
        v_cvt_pk_bf16_f32 v24, v24, v25
        v_cvt_pk_bf16_f32 v25, v26, v27
        ds_write_b64 v11, v[24:25] offset:{XU}
        s_mov_b32 exec_hi, -1
        s_waitcnt lgkmcnt(0)
        s_barrier
        """)
        for s in range(4):
            a(f"ds_read_b128 {vr(32+4*s)}, v10 offset:{XU + s*64}")
        for s in range(4):
            a(f"s_waitcnt lgkmcnt({3-s})")
            for t in range(2):
                c = "0" if s == 0 else vr(24 + 4 * t)
                a(f"v_mfma_f32_16x16x32_bf16 {vr(24+4*t)}, {vr(128+(s*2+t)*4)}, {vr(32+4*s)}, {c}")
        self.dpp("v_add_f32", range(24, 32), "quad_perm:[1,0,3,2]")
        a("s_mov_b64 exec, s[96:97]")
        for i in range(4):
            a(f"v_cvt_pk_bf16_f32 v{32+i}, v{24+2*i}, v{25+2*i}")
        a(f"buffer_store_dwordx4 v[32:35], v12, {WS}, s60 offen sc1")
        self.stamp(12)
        a(f"""
        s_branch FIN
        A_REDO:
        s_sub_u32 {sCNT}, {sCNT}, 1
        s_cbranch_scc1 A_QOK
        s_waitcnt lgkmcnt(0)
        s_barrier
        s_branch A_QDMA
        A_OREDO:
        s_sub_u32 {sCNT}, {sCNT}, 1
        s_cbranch_scc1 A_OOK
        {oloads}
        s_branch A_OWAIT
        """)

    def tagpoll(self, voff, soff):
        self.poll(f"buffer_load_dwordx3 v[80:82], {voff}, {WS}, {soff} offen sc1\n"
                  f"buffer_load_dwordx3 v[84:86], {voff}, {WS}, {soff} offen offset:1024 sc1",
                  f"v_cmp_ne_u32 s[32:33], {sTAG}, v82\nv_cmp_ne_u32 vcc, {sTAG}, v86\ns_or_b64 vcc, vcc, s[32:33]")

    def smallgemm(self, xb, wbase):
        a = self.a
        for s in range(4):
            a(f"ds_read_b128 {vr(88+4*s)}, v9 offset:{xb - X1 + s*1024}")
        for s in range(4):
            a(f"s_waitcnt lgkmcnt({3-s})")
            for t in range(2):
                c = "0" if s == 0 else vr(104 + 4 * t)
                a(f"v_mfma_f32_16x16x32_bf16 {vr(104+4*t)}, {vr(wbase+(s*2+t)*4)}, {vr(88+4*s)}, {c}")
        for t in range(2):
            for r in range(4):
                a(f"v_add_f32_dpp v{112+r}, v{104+4*t+r}, v{104+4*t+r} row_ror:8 row_mask:0xf bank_mask:{'0x3' if t == 0 else '0xc'}")
        self.dpp("v_add_f32", range(112, 116), "quad_perm:[2,3,0,1]")

    def wrole(self):
        a = self.a
        self.sect = "W"
        a(f"""
        WROLE:
        s_lshr_b32 s60, {sID}, 2
        s_and_b32 s61, {sID}, 3
        s_lshl2_add_u32 s62, s61, {sW}
        s_lshl_b32 s32, s62, 18
        s_lshl_b32 s33, s60, 8
        s_add_u32 s32, s32, s33
        s_lshl_b32 s33, {sW}, 13
        s_mov_b32 m0, s33
        v_lshlrev_b32 v4, 2, v2
        v_xor_b32 v4, v4, v3
        v_lshlrev_b32 v4, 4, v4
        v_lshl_add_u32 v4, v2, 13, v4
        v_xor_b32 v5, v2, v3
        v_lshlrev_b32 v5, 4, v5
        v_lshl_add_u32 v5, v2, 13, v5
        v_xor_b32 v6, 64, v5
        v_xor_b32 v7, 128, v5
        v_xor_b32 v8, 192, v5
        s_mov_b32 s34, s32
        s_waitcnt lgkmcnt(0)
        """)
        self.srd(R1, 8, 1 << 22)
        self.srd(R2, 10, 1 << 22)
        for m, (R, so) in enumerate(((R1, "s32"), (R2, "s34"))):
            for j in range(8):
                if j == 4 or (m == 1 and j == 0):
                    a(f"s_add_u32 m0, s33, {m*WK + (j>>2)*4096}")
                v = 4 if m == 0 else 5 + (j >> 1)
                a(f"buffer_load_dwordx4 v{v}, {R}, {so} offen offset:{(j&3)*1024} nt lds")
                if j < 7:
                    a(f"s_add_u32 {so}, {so}, {32768 - 1024 + (4096 if j == 3 else 0)}")
        a(f"s_load_dword {sTAG}, s[30:31], 0")
        self.srd(WS, 30, 0x10000000)
        self.stamp(1)
        a(f"""
        v_bfe_u32 v4, v0, 2, 2
        v_xor_b32 v5, {sW}, v4
        v_lshlrev_b32 v5, 6, v5
        v_lshrrev_b32 v6, 2, v0
        v_lshl_add_u32 v5, v6, 8, v5
        v_and_b32 v6, 3, v0
        v_lshl_add_u32 v10, v6, 4, v5
        v_lshl_add_u32 v5, v4, 3, v6
        v_lshlrev_b32 v5, 8, v5
        v_xor_b32 v7, v2, v3
        v_lshl_add_u32 v5, v7, 4, v5
        s_add_u32 s32, s33, {WK}
        v_add_u32 v11, s32, v5
        v_add_u32 v9, {X1}, v1
        s_lshl_b32 s32, {sW}, 10
        s_add_u32 s32, s32, {X1}
        v_bfe_u32 v4, v0, 1, 2
        v_lshlrev_b32 v4, 8, v4
        v_and_b32 v5, 1, v0
        v_lshl_add_u32 v4, v5, 6, v4
        v_lshl_add_u32 v4, v2, 4, v4
        v_and_b32 v6, 8, v0
        v_add3_u32 v12, v4, v6, s32
        v_bfe_u32 v4, v0, 3, 2
        v_lshlrev_b32 v4, 8, v4
        v_lshl_add_u32 v4, v5, 4, v4
        v_bfe_u32 v6, v0, 1, 1
        v_lshl_add_u32 v4, v6, 6, v4
        v_and_b32 v6, 32, v0
        v_add_u32 v4, v4, v6
        v_bfe_u32 v6, v0, 2, 1
        v_lshl_add_u32 v4, v6, 3, v4
        v_add_u32 v13, s32, v4
        v_lshrrev_b32 v4, 2, v0
        v_lshl_add_u32 v4, v4, 1, v5
        v_lshlrev_b32 v14, 4, v4
        v_lshlrev_b32 v4, 15, v6
        v_lshl_add_u32 v4, v2, 4, v4
        v_and_b32 v6, 8, v0
        v_add_u32 v15, v4, v6
        v_lshlrev_b32 v120, 9, v0
        s_lshl_b32 s62, s62, 11
        s_and_b32 s63, {sXCD}, {self.opt.get("r1", 8) - 1}
        s_lshl_b32 s63, s63, 15
        s_add_u32 s62, s62, s63
        s_add_u32 s62, s62, {H1}
        s_lshl2_add_u32 s63, s60, {sW}
        s_lshl_b32 s63, s63, 11
        s_add_u32 s63, s63, {HQ}
        s_lshl_b32 s34, s61, 9
        s_add_u32 s34, s34, s63
        s_lshl_b32 s35, s61, 5
        s_add_u32 s35, s35, s60
        s_lshl_b32 s2, s35, 2
        s_add_u32 s2, s2, {FLAG}
        s_lshl_b32 s0, {sW}, {7 + self.opt.get("rf", 3)}
        s_add_u32 s2, s2, s0
        s_lshl2_add_u32 s35, s35, {sW}
        s_lshl_b32 s35, s35, 6
        s_add_u32 s35, s35, {H2}
        s_mov_b32 s0, 0x{(1 << (1 << (self.opt.get("rf", 3) - 2))) - 1:x}
        s_mov_b32 s1, 0
        """)
        if self.opt.get("touch"):
            a(f"buffer_load_dwordx3 v[80:82], v1, {WS}, s63 offen sc1\nbuffer_load_dwordx3 v[84:86], v1, {WS}, s63 offen offset:1024 sc1")
        self.premask(96, 0x3333333333333333)
        self.premask(98, 0x1111111111111111)
        a(f"""
        s_waitcnt vmcnt({10 if self.opt.get("touch") else 8}) lgkmcnt(0)
        s_add_u32 {sTAG}, {sTAG}, 0x{TAGC:x}
        """)
        self.stamp(2)
        a(f"""
        s_barrier
        v_mov_b32 v118, {sTAG}
        v_mov_b32 v119, {sTAG}
        """)
        for s in range(4):
            for t in range(2):
                for u in range(2):
                    a(f"ds_read_b64_tr_b16 {vr(16+(s*2+t)*4+2*u, 2)}, v10 offset:{s*8192 + u*4096 + t*8}")
        self.tagpoll("v1", "s62")
        self.stamp(3)
        a(f"""
        ds_write_b64 v12, v[80:81]
        ds_write_b64 v12, v[84:85] offset:128
        s_waitcnt lgkmcnt(0)
        s_barrier
        """)
        self.smallgemm(X1, 16)
        a(f"""
        s_mov_b64 exec, s[96:97]
        v_cvt_pk_bf16_f32 v116, v112, v113
        v_cvt_pk_bf16_f32 v117, v114, v115
        buffer_store_dwordx4 v[116:119], v14, {WS}, s34 offen sc1
        s_mov_b64 exec, -1
        """)
        self.stamp(4)
        for s in range(4):
            if s:
                a(f"v_xor_b32 v4, {64*s}, v11")
            for t in range(2):
                a(f"ds_read_b128 {vr(48+(s*2+t)*4)}, v{4 if s else 11} offset:{t*1024}")
        self.tagpoll("v1", "s63")
        self.stamp(5)
        flag = f"s_mov_b64 exec, s[0:1]\nbuffer_store_dword v118, v120, {WS}, s2 offen sc1\ns_mov_b64 exec, -1"
        a(f"""
        ds_write_b64 v13, v[80:81] offset:{X2 - X1}
        ds_write_b64 v13, v[84:85] offset:{X2 - X1 + 128}
        s_waitcnt lgkmcnt(0)
        s_barrier
        """)
        if self.opt.get("earlyflag"):
            a(flag)
        self.smallgemm(X2, 48)
        self.dpp("v_add_f32", range(112, 116), "quad_perm:[1,0,3,2]")
        a("s_mov_b64 exec, s[98:99]")
        for r in range(4):
            a(f"v_mul_f32 v{112+r}, 0x{QSCALE:x}, v{112+r}")
        a(f"""
        v_cvt_pk_bf16_f32 v116, v112, v113
        v_cvt_pk_bf16_f32 v117, v114, v115
        buffer_store_dwordx2 v[116:117], v15, {WS}, s35 offen sc1
        """)
        if not self.opt.get("earlyflag"):
            a(flag)
        else:
            a("s_mov_b64 exec, -1")
        self.stamp(6)
        a(f"""
        s_and_b32 s60, {sID}, 15
        s_and_b32 s61, {sID}, 3
        s_lshl2_add_u32 s61, {sXCD}, s61
        s_cmp_lt_u32 s60, 8
        s_cbranch_scc1 W_SETO
        s_cmp_lt_u32 s60, 12
        s_cbranch_scc1 W_SETM
        s_cmp_ge_u32 s61, 28
        s_cbranch_scc1 FIN
        """)
        self.srd(R1, 18, 512 * 3584)
        a(f"""
        s_movk_i32 s62, 3584
        s_lshl_b32 s32, s61, 7
        s_branch W_LOAD
        W_SETM:
        """)
        self.srd(R1, 24, 512 * 6144)
        a(f"""
        s_movk_i32 s62, 6144
        s_lshl_b32 s32, s61, 7
        s_add_u32 s32, s32, 2048
        s_branch W_LOAD
        W_SETO:
        """)
        self.srd(R1, 14, 1 << 22)
        a(f"""
        s_movk_i32 s62, 1024
        s_lshl_b32 s32, {sXCD}, 19
        s_lshl_b32 s33, s60, 7
        s_add_u32 s32, s32, s33
        W_LOAD:
        s_lshl_b32 s33, {sW}, 7
        s_mul_i32 s33, s33, s62
        s_add_u32 s32, s32, s33
        s_lshl_b32 s33, s62, 3
        s_sub_u32 s33, s33, 1024
        s_add_u32 s63, s33, 4096
        s_lshl_b32 s34, {sW}, 14
        v_lshrrev_b32 v4, 3, v0
        v_mul_lo_u32 v4, v4, s62
        v_and_b32 v5, 1, v2
        v_lshlrev_b32 v5, 1, v5
        v_and_b32 v6, 7, v0
        v_xor_b32 v5, v5, v6
        v_lshl_add_u32 v6, v5, 4, v4
        v_xor_b32 v5, 4, v5
        v_lshl_add_u32 v7, v5, 4, v4
        """)
        for j in range(16):
            if j % 4 == 0:
                a(f"s_add_u32 m0, s34, {W2R + j*1024}")
            a(f"buffer_load_dwordx4 v{6+(j&1)}, {R1}, s32 offen offset:{(j&3)*1024} nt lds")
            if j < 15:
                a(f"s_add_u32 s32, s32, {'s63' if j % 4 == 3 else 's33'}")
        a(f"""
        v_bfe_u32 v4, v0, 2, 2
        v_lshl_add_u32 v5, v2, 3, v4
        v_lshlrev_b32 v5, 7, v5
        v_bfe_u32 v6, v0, 3, 2
        v_xor_b32 v6, {sW}, v6
        v_lshl_add_u32 v5, v6, 5, v5
        v_and_b32 v6, 3, v0
        v_lshl_add_u32 v5, v6, 3, v5
        v_add_u32 v10, {W2R}, v5
        s_cmp_lt_u32 s60, 8
        s_cbranch_scc1 W_WAIT
        s_cmp_lt_u32 s60, 12
        s_cbranch_scc1 W_PREM
        """)
        self.srd(R2, 20, 1792 * 1024)
        a(f"""
        s_lshl_b32 s32, s61, 16
        s_add_u32 s32, s32, s34
        v_xor_b32 v5, 16, v1
        v_xor_b32 v6, 32, v1
        v_xor_b32 v7, 48, v1
        """)
        for j in range(16):
            if j % 4 == 0:
                a(f"s_add_u32 m0, s34, {j*1024}")
                if j:
                    a("s_add_u32 s32, s32, 4096")
            a(f"buffer_load_dwordx4 v{[1, 5, 6, 7][j&3]}, {R2}, s32 offen offset:{(j&3)*1024} nt lds")
        a(f"""
        s_branch W_WAIT
        W_PREM:
        """)
        self.srd(R3, 22, 2048)
        a(f"""
        s_lshl_b32 s32, {sW}, 9
        v_lshlrev_b32 v4, 3, v0
        buffer_load_dwordx2 v[16:17], v4, {R3}, s32 offen
        s_lshr_b32 s33, {sW}, 1
        s_lshl_b32 s33, s33, 5
        s_add_u32 s32, s32, s33
        s_add_u32 s32, s32, {SL}
        v_add_u32 v4, s32, v4
        s_waitcnt vmcnt(0)
        """)
        self.silu([16, 17], 20)
        a(f"""
        ds_write_b64 v4, v[16:17]
        W_WAIT:
        s_waitcnt vmcnt(0) lgkmcnt(0)
        """)
        self.stamp(7)
        a("s_barrier")
        for s in range(16):
            for u in range(2):
                a(f"ds_read_b64_tr_b16 {ar(4*s+2*u, 2)}, v10 offset:{s*4096 + u*512}")
        a(f"""
        s_cmp_lt_u32 s60, 8
        s_cbranch_scc0 W_NOTO
        """)
        self.orole()
        a(f"""
        W_NOTO:
        v_and_b32 v4, 3, v0
        v_mul_u32_u24 v4, 2112, v4
        v_bfe_u32 v5, v0, 2, 1
        v_mul_u32_u24 v5, 1056, v5
        v_lshl_add_u32 v5, v2, 4, v5
        s_cmp_lt_u32 s60, 12
        s_cbranch_scc1 W_M2
        """)
        self.ffn()
        a("W_M2:")
        self.m2()

    def actgemm(self, addr, fill=None):
        a = self.a
        fill = list(fill or [])
        for s in range(12):
            a(f"ds_read_b128 {vr(128+4*s)}, v{addr} offset:{s*64}")
        for s in range(16):
            a(f"s_waitcnt lgkmcnt({min(11, 15-s)})")
            c = "0" if s < 2 else vr(104 + 4 * (s & 1))
            a(f"v_mfma_f32_16x16x32_bf16 {vr(104+4*(s&1))}, {vr(128+4*s)}, {ar(4*s)}, {c}")
            if s < 4:
                a(f"ds_read_b128 {vr(128+4*(s+12))}, v{addr} offset:{(s+12)*64}")
            for _ in range(3):
                if fill:
                    a(fill.pop(0))
        assert not fill

    def orole(self):
        a = self.a
        self.sect = "O"
        a(f"""
        s_lshl2_add_u32 s34, {sXCD}, {sW}
        s_lshl_b32 s34, s34, 11
        s_add_u32 s34, s34, {H3B}
        v_and_b32 v4, 1, v2
        v_lshlrev_b32 v4, 3, v4
        v_lshrrev_b32 v5, 1, v2
        v_or_b32 v4, v4, v5
        v_lshlrev_b32 v4, 4, v4
        v_xor_b32 v4, v4, v1
        s_lshl_b32 s32, {sW}, 11
        s_add_u32 s32, s32, {XO}
        v_add_u32 v11, s32, v4
        v_xor_b32 v12, 32, v11
        v_and_b32 v4, 3, v0
        v_bfe_u32 v5, v0, 2, 1
        v_lshl_add_u32 v6, v4, 1, v5
        v_lshlrev_b32 v6, 8, v6
        v_xor_b32 v4, v4, v2
        v_lshl_add_u32 v6, v4, 4, v6
        v_lshl_add_u32 v6, v5, 7, v6
        v_bfe_u32 v4, v0, 3, 1
        v_lshl_add_u32 v6, v4, 6, v6
        v_add_u32 v13, {XO}, v6
        v_xor_b32 v14, 128, v13
        v_lshlrev_b32 v5, 10, v5
        v_lshl_add_u32 v15, v2, 3, v5
        v_and_b32 v4, 3, v0
        v_lshl_add_u32 v15, v4, 14, v15
        s_lshl_b32 s35, {sXCD}, 11
        s_lshl2_add_u32 s32, s60, {sW}
        s_lshl_b32 s32, s32, 5
        s_add_u32 s35, s35, s32
        s_add_u32 s35, s35, {H4}
        """)
        self.premask(96, 0x0011001100110011 * ((1 << self.opt.get("r4", 4)) - 1))
        self.poll(f"buffer_load_dwordx4 v[80:83], v1, {WS}, s34 offen sc1\n"
                  f"buffer_load_dwordx4 v[84:87], v1, {WS}, s34 offen offset:1024 sc1", self.sent([80, 84], 4))
        self.stamp(8)
        a(f"""
        ds_write_b128 v11, v[80:83]
        ds_write_b128 v12, v[84:87] offset:1024
        s_waitcnt lgkmcnt(0)
        s_barrier
        """)
        for sp in range(8):
            a(f"ds_read_b128 {vr(128+4*sp)}, v{13+(sp&1)} offset:{(sp>>1)*2048}")
        for sp in range(8):
            a(f"s_waitcnt lgkmcnt({7-sp})")
            for k in range(2):
                c = "0" if sp == 0 else vr(104 + 4 * k)
                a(f"v_mfma_f32_16x16x32_bf16 {vr(104+4*k)}, {ar(4*(2*sp+k))}, {vr(128+4*sp)}, {c}")
        for r in range(4):
            a(f"v_add_f32_dpp v{112+r}, v{108+r}, v{104+r} row_ror:8 row_mask:0xf bank_mask:0xf")
        self.dpp("v_add_f32", range(112, 116), "quad_perm:[1,0,3,2]")
        self.dpp("v_add_f32", range(112, 116), "quad_perm:[2,3,0,1]")
        a(f"""
        s_mov_b64 exec, s[96:97]
        v_cvt_pk_bf16_f32 v116, v112, v113
        v_cvt_pk_bf16_f32 v117, v114, v115
        buffer_store_dwordx2 v[116:117], v15, {WS}, s35 offen sc1
        """)
        self.stamp(9)
        a("s_branch FIN")

    def selmat(self, esel, on):
        a = self.a
        a(f"""
        v_and_b32 v24, 1, v{esel}
        v_lshlrev_b32 v24, 4, v24
        s_movk_i32 s32, 0x3f80
        v_lshlrev_b32 v24, v24, s32
        v_lshrrev_b32 v25, 1, v{esel}
        v_lshl_or_b32 v25, v{on}, 2, v25
        """)
        for i in range(4):
            a(f"v_cmp_eq_u32 vcc, {i}, v25\nv_cndmask_b32 v{20+i}, 0, v24, vcc")

    def ffn(self):
        a = self.a
        self.sect = "F"
        a(f"""
        s_mov_b32 s32, {YB}
        v_add3_u32 v11, v4, v5, s32
        v_bfe_u32 v4, v0, 2, 2
        v_lshl_add_u32 v5, v2, 3, v4
        v_lshlrev_b32 v5, 10, v5
        v_lshl_add_u32 v5, v4, 4, v5
        v_and_b32 v4, 3, v0
        v_lshl_add_u32 v5, v4, 6, v5
        s_lshl_b32 s33, {sW}, 8
        v_add_u32 v4, s33, v5
        """)
        for tp in range(4):
            if tp:
                a(f"v_xor_b32 v{4+tp}, {16*tp}, v4")
            for th in range(2):
                for s in range(2):
                    for u in range(2):
                        t = 2 * tp + th
                        a(f"ds_read_b64_tr_b16 {ar(64+(t*2+s)*4+2*u, 2)}, v{4+tp} offset:{s*32768 + u*4096 + th*8}")
        self.srd(R2, 4, 2048)
        a(f"""
        v_lshrrev_b32 v4, 5, v0
        v_and_b32 v5, 1, v2
        v_lshl_add_u32 v6, v3, 1, v5
        v_lshlrev_b32 v7, 3, v6
        v_lshl_add_u32 v8, v4, 10, v7
        buffer_load_dwordx2 v[16:17], v8, {R2}, s33 offen
        v_mul_u32_u24 v8, 1056, v4
        s_add_u32 s32, s33, {YB}
        v_add3_u32 v12, v8, v7, s32
        v_lshlrev_b32 v7, 4, v6
        v_lshl_add_u32 v13, v4, 13, v7
        s_lshl_b32 s34, {sW}, 9
        s_add_u32 s34, s34, {M2O}
        s_add_u32 s35, s34, 4096
        v_and_b32 v6, 31, v0
        v_lshlrev_b32 v6, 3, v6
        v_lshl_add_u32 v6, v4, 10, v6
        s_add_u32 s32, s33, {ST}
        v_add_u32 v14, s32, v6
        v_lshlrev_b32 v6, 4, v3
        v_lshl_add_u32 v6, v4, 8, v6
        v_lshl_add_u32 v6, v5, 10, v6
        v_add_u32 v15, {ST}, v6
        v_lshlrev_b32 v6, 4, v3
        v_lshl_add_u32 v26, v2, 10, v6
        s_and_b32 s62, {sID}, {self.opt.get("r4", 4) - 1}
        s_lshl_b32 s62, s62, 14
        s_add_u32 s62, s62, s33
        s_add_u32 s62, s62, {H4}
        s_add_u32 s63, s62, 4096
        s_add_u32 s0, s62, 8192
        s_add_u32 s1, s62, 12288
        v_mul_u32_u24 v6, 160, v5
        v_lshl_add_u32 v6, v3, 1, v6
        s_lshl_b32 s32, {sW}, 5
        s_add_u32 s32, s32, {AB}
        v_add_u32 v27, s32, v6
        v_bfe_u32 v6, v0, 2, 1
        v_mul_u32_u24 v6, 160, v6
        v_lshl_add_u32 v6, v2, 4, v6
        v_add_u32 v28, {AB}, v6
        v_bfe_u32 v6, v0, 3, 1
        v_mul_u32_u24 v7, 7168, v6
        v_lshl_add_u32 v7, v5, 7, v7
        v_and_b32 v8, 7, v0
        v_lshl_add_u32 v29, v8, 4, v7
        v_xor_b32 v6, v6, v5
        s_mul_i32 s2, {sW}, 14336
        s_lshl_b32 s32, s61, 8
        s_add_u32 s2, s2, s32
        s_add_u32 s2, s2, {H5}
        """)
        self.selmat(8, 6)
        self.poll(f"buffer_load_dwordx4 v[32:35], v13, {WS}, s34 offen sc1\n"
                  f"buffer_load_dwordx4 v[36:39], v13, {WS}, s34 offen offset:2048 sc1\n"
                  f"buffer_load_dwordx4 v[40:43], v13, {WS}, s35 offen sc1", self.sent(range(32, 44), 4))
        self.stamp(8)
        for r in range(4):
            a(f"v_add_f32 v{40+r}, 1.0, v{40+r}")
        a(f"""
        v_cvt_pk_bf16_f32 v4, v40, v41
        v_cvt_pk_bf16_f32 v5, v42, v43
        v_cvt_pk_bf16_f32 v6, v36, v37
        v_cvt_pk_bf16_f32 v7, v38, v39
        ds_write_b64 v12, v[4:5] offset:2112
        ds_write_b64 v12, v[6:7] offset:4224
        v_lshlrev_b32 v40, 16, v4
        v_and_b32 v41, 0xffff0000, v4
        v_lshlrev_b32 v42, 16, v5
        v_and_b32 v43, 0xffff0000, v5
        v_lshlrev_b32 v36, 16, v16
        v_and_b32 v37, 0xffff0000, v16
        v_lshlrev_b32 v38, 16, v17
        v_and_b32 v39, 0xffff0000, v17
        """)
        so = ["s62", "s63", "s0", "s1"]
        self.poll("\n".join(f"buffer_load_dwordx4 {vr(48+4*j)}, v26, {WS}, {so[j]} offen sc1" for j in range(4)),
                  self.sent(range(48, 64, 2), 4))
        self.stamp(9)
        for j in range(4):
            c = "0" if j == 0 else "v[44:47]"
            a(f"v_mfma_f32_16x16x32_bf16 v[44:47], v[20:23], {vr(48+4*j)}, {c}")
        a(f"""
        v_pk_fma_f32 v[36:37], v[32:33], v[44:45], v[36:37]
        v_pk_fma_f32 v[38:39], v[34:35], v[46:47], v[38:39]
        v_pk_mul_f32 v[40:41], v[40:41], v[36:37]
        v_pk_mul_f32 v[42:43], v[42:43], v[38:39]
        v_cvt_pk_bf16_f32 v4, v40, v41
        v_cvt_pk_bf16_f32 v5, v42, v43
        ds_write_b64 v12, v[4:5]
        v_pk_add_f32 v[6:7], v[36:37], v[38:39]
        v_pk_mul_f32 v[8:9], v[36:37], v[36:37]
        v_pk_fma_f32 v[8:9], v[38:39], v[38:39], v[8:9]
        v_add_f32 v6, v6, v7
        v_add_f32 v7, v8, v9
        ds_write_b64 v14, v[6:7]
        s_waitcnt lgkmcnt(0)
        s_barrier
        ds_read_b128 v[32:35], v15
        ds_read_b128 v[36:39], v15 offset:512
        """)
        d = lambda c: [f"v_add_f32_dpp v{r}, v{r}, v{r} {c} row_mask:0xf bank_mask:0xf" for r in (32, 33)] + ["s_nop 0"]
        fill = ["v_pk_add_f32 v[32:33], v[32:33], v[34:35]", "v_pk_add_f32 v[36:37], v[36:37], v[38:39]",
                "v_pk_add_f32 v[32:33], v[32:33], v[36:37]"]
        for c in ("quad_perm:[1,0,3,2]", "quad_perm:[2,3,0,1]", "row_half_mirror", "row_mirror"):
            fill += d(c)
        fill += ["v_mov_b32 v34, v32", "v_mov_b32 v35, v33", "s_nop 0",
                 "v_permlane32_swap_b32 v32, v34", "v_permlane32_swap_b32 v33, v35", "s_nop 0",
                 "v_pk_add_f32 v[32:33], v[32:33], v[34:35]", "v_mov_b32 v34, 0x3727c5ac",
                 "v_mul_f32 v32, 0x3b000000, v32", "v_fmac_f32 v34, 0x3b000000, v33",
                 "v_fma_f32 v34, -v32, v32, v34", "v_rsq_f32 v34, v34"]
        self.actgemm(11, fill)
        a(f"""
        s_mov_b32 exec_hi, 0
        v_pk_add_f32 v[104:105], v[104:105], v[108:109]
        v_add_f32 v106, v106, v110
        v_fma_f32 v104, -v32, v105, v104
        v_fma_f32 v104, v34, v104, v106
        v_max_f32 v104, 0, v104
        v_cvt_pk_bf16_f32 v104, v104, v104
        ds_write_b16 v27, v104
        s_mov_b32 exec_hi, -1
        s_waitcnt lgkmcnt(0)
        s_barrier
        ds_read_b128 v[32:35], v28
        ds_read_b128 v[36:39], v28 offset:64
        """)
        self.stamp(10)
        for s in range(2):
            a(f"s_waitcnt lgkmcnt({1-s})")
            for t in range(8):
                c = "0" if s == 0 else vr(128 + 4 * t)
                a(f"v_mfma_f32_16x16x32_bf16 {vr(128+4*t)}, {vr(32+4*s)}, {ar(64+(t*2+s)*4)}, {c}")
        a("s_mov_b32 exec_hi, 0")
        for i in range(4):
            a(f"v_cvt_pk_bf16_f32 v{40+i}, v{128+8*i}, v{132+8*i}")
        a(f"buffer_store_dwordx4 v[40:43], v29, {WS}, s2 offen sc1")
        self.stamp(11)
        a("s_branch FIN")

    def m2(self):
        a = self.a
        self.sect = "M"
        a(f"""
        v_add_u32 v11, {SL}, v5
        v_lshlrev_b32 v4, 2, v3
        v_lshl_add_u32 v12, v2, 13, v4
        s_lshl2_add_u32 s34, s61, {sW}
        s_lshl_b32 s34, s34, 6
        s_add_u32 s34, s34, {M2O}
        s_waitcnt lgkmcnt(0)
        """)
        self.actgemm(11)
        a(f"""
        s_mov_b32 exec_hi, 0
        v_add_f32 v104, v104, v108
        v_cvt_pk_bf16_f32 v104, v104, v104
        v_lshlrev_b32 v104, 16, v104
        buffer_store_dword v104, v12, {WS}, s34 offen sc1
        s_mov_b32 exec_hi, -1
        """)
        self.stamp(8)
        a(f"""
        s_cmp_lt_u32 s61, 24
        s_cbranch_scc1 FIN
        s_cmp_lg_u32 {sW}, 0
        s_cbranch_scc1 FIN
        s_sub_u32 s61, s61, 24
        """)
        self.srd(R2, 4, 2048)
        self.srd(R3, 26, 2048)
        a(f"""
        v_bfe_u32 v4, v0, 3, 1
        v_and_b32 v5, 7, v0
        v_lshl_add_u32 v6, v5, 2, v2
        v_lshlrev_b32 v7, 2, v6
        v_lshl_add_u32 v7, v4, 10, v7
        s_lshl_b32 s33, s61, 7
        buffer_load_dword v16, v7, {R2}, s33 offen
        v_lshlrev_b32 v7, 3, v6
        v_lshl_add_u32 v11, v4, 13, v7
        v_lshl_add_u32 v7, v4, 8, v7
        v_add_u32 v12, {XF}, v7
        v_bfe_u32 v6, v0, 2, 1
        v_lshl_add_u32 v6, v6, 2, v2
        v_and_b32 v7, 3, v0
        v_lshl_add_u32 v6, v6, 3, v7
        v_lshlrev_b32 v8, 2, v6
        v_lshl_add_u32 v13, v4, 13, v8
        v_lshl_add_u32 v8, v4, 8, v8
        v_add_u32 v14, {XF}, v8
        v_lshlrev_b32 v8, 1, v6
        v_lshl_add_u32 v15, v4, 10, v8
        v_lshrrev_b32 v8, 3, v0
        v_lshlrev_b32 v8, 10, v8
        v_lshl_add_u32 v26, v5, 4, v8
        s_lshl_b32 s34, s61, 8
        s_add_u32 s34, s34, {M2O}
        s_add_u32 s35, s34, 6144
        s_and_b32 s62, {sID}, {self.opt.get("r4", 4) - 1}
        s_lshl_b32 s62, s62, 14
        s_add_u32 s62, s62, s33
        s_add_u32 s62, s62, {H4}
        s_add_u32 s63, s62, 8192
        s_mul_i32 s0, s61, 7168
        s_add_u32 s0, s0, {H5}
        s_add_u32 s1, s0, 4096
        v_bfe_u32 v8, v0, 2, 2
        v_and_b32 v6, 1, v0
        v_lshl_add_u32 v8, v8, 1, v6
        v_bfe_u32 v6, v0, 1, 1
        """)
        self.selmat(8, 6)
        self.poll(f"buffer_load_dwordx2 v[32:33], v11, {WS}, s34 offen sc1\n"
                  f"buffer_load_dword v34, v13, {WS}, s35 offen sc1\n"
                  f"buffer_load_dword v35, v13, {WS}, s35 offen offset:16 sc1", self.sent(range(32, 36), 4))
        a("v_lshlrev_b32 v36, 16, v16\nv_and_b32 v37, 0xffff0000, v16")
        self.poll(f"buffer_load_dwordx4 v[48:51], v26, {WS}, s62 offen sc1\n"
                  f"buffer_load_dwordx4 v[52:55], v26, {WS}, s63 offen sc1", self.sent(range(48, 56, 2), 4))
        self.stamp(9)
        a(f"""
        v_mfma_f32_16x16x32_bf16 v[44:47], v[20:23], v[48:51], 0
        v_mfma_f32_16x16x32_bf16 v[44:47], v[20:23], v[52:55], v[44:47]
        v_pk_fma_f32 v[36:37], v[32:33], v[44:45], v[36:37]
        ds_write_b64 v12, v[36:37]
        s_waitcnt lgkmcnt(0)
        ds_read_b32 v36, v14
        ds_read_b32 v37, v14 offset:16
        s_cmp_lg_u32 s61, 0
        s_cbranch_scc1 W_NOGEN
        s_mov_b64 exec, 1
        buffer_store_dword v118, v0, {WS}, 0 offen sc1
        s_mov_b64 exec, -1
        W_NOGEN:
        """)
        self.poll("\n".join(f"buffer_load_dwordx4 {vr(48+4*j)}, v1, {WS}, {'s0' if j < 4 else 's1'} offen offset:{(j&3)*1024} sc1" for j in range(7)),
                  self.sent(range(48, 76, 4), 4))
        self.stamp(10)
        for j in range(7):
            c = "0" if j < 2 else vr(40 + 4 * (j & 1))
            a(f"v_mfma_f32_16x16x32_bf16 {vr(40+4*(j&1))}, v[20:23], {vr(48+4*j)}, {c}")
        a(f"""
        s_waitcnt lgkmcnt(0)
        v_pk_add_f32 v[40:41], v[40:41], v[44:45]
        v_pk_fma_f32 v[36:37], v[34:35], v[40:41], v[36:37]
        v_cvt_pk_bf16_f32 v36, v36, v37
        buffer_store_short v36, v15, {R3}, s33 offen
        buffer_store_short_d16_hi v36, v15, {R3}, s33 offen offset:8
        """)
        self.stamp(11)

    def fin(self):
        a = self.a
        a("FIN:")
        if self.diag:
            a("s_mov_b64 exec, -1\ns_waitcnt vmcnt(0)")
            self.stamp(15)
            a(f"""
            s_waitcnt lgkmcnt(0)
            s_lshl2_add_u32 s32, s101, {sW}
            s_lshl_b32 s32, s32, 6
            s_add_u32 s32, s32, {STAMP}
            """)
            for i in range(16):
                a(f"v_mov_b32 v{16+i}, s{64+2*i}")
            a("s_mov_b64 exec, 1")
            for i in range(4):
                a(f"buffer_store_dwordx4 {vr(16+4*i)}, v0, {WS}, s32 offen offset:{16*i}")
        if self.probe:
            wg = self.opt.get("probewg")
            if wg is not None:
                a(f"s_cmp_lg_u32 s101, {wg}\ns_cbranch_scc1 EXIT")
            a(f"""
            s_waitcnt lgkmcnt(0)
            s_cmp_eq_u64 s[64:65], 0
            s_cbranch_scc1 EXIT
            s_add_u32 s32, s64, {self.opt.get("spin", 4000)}
            PROBE:
            s_memrealtime s[34:35]
            s_waitcnt lgkmcnt(0)
            s_sub_u32 s33, s34, s32
            s_cmp_lt_i32 s33, 0
            s_cbranch_scc1 PROBE
            """)
        a("EXIT:")

    def build(self):
        if self.diag:
            self.a("s_mov_b32 s101, s2")
        self.entry()
        self.arole()
        self.wrole()
        self.fin()
        return wrap(pad(self.a.text()), 256, 256, 163840)


if __name__ == "__main__":
    out = sys.argv[1]
    opts = dict(kv.split("=") for kv in sys.argv[2:])
    opts = {k: (int(v) if v.lstrip('-').isdigit() else v) for k, v in opts.items()}
    open(out, "w").write(G(**opts).build())
```

```python
import sys
from asmlib import Asm, wrap, KNAME
from hazard import pad

FLAG, FLAG2, HQ, H1 = 0x10000, 0x18000, 0x20000, 0xC0000
SB = 0x60000
H4, H2, H3B, M2O, H5 = SB, SB + 0x20000, SB + 0x30000, SB + 0x44000, SB + 0x50000
ML = 0x500000
H3 = 0x100000
STAMP = 200 << 20
TAGC = 0x9E3779B9
NPOLL = 20000

Q = 131072
SIL = Q + 8192
PB = Q
MX = Q + 8192
XU = 32768
WQ, WK, W2R = 0, 32768, 65536
X1, X2 = 131072, 135168
XO = 139264
YB = 139264
ST = 149504
AB = 151552
SL = 139264
XF = 152064

WS = "s[36:39]"
R1, R2, R3, R4 = "s[40:43]", "s[44:47]", "s[48:51]", "s[52:55]"
sW, sXCD, sID, sTAG, sCNT = "s3", "s56", "s58", "s59", "s57"
LOG2E = 0x3FB8AA3B
QSCALE = 0x3E0293EE


def vr(b, n=4):
    return f"v[{b}:{b+n-1}]"


def ar(b, n=4):
    return f"a[{b}:{b+n-1}]"


class G:
    def __init__(self, diag=False, **opt):
        self.a = Asm()
        self.diag = diag
        self.opt = opt
        self.sect = "E"
        p = opt.get("probe")
        self.probe = (p[0], int(p[1:])) if p else None

    def stamp(self, i):
        if self.diag:
            self.a(f"s_memrealtime s[{64+2*i}:{65+2*i}]")
        elif self.probe == (self.sect, i):
            self.a("s_memrealtime s[64:65]")

    def srd(self, r, ptr, size):
        b = int(r[2:4])
        self.a(f"s_mov_b64 s[{b}:{b+1}], s[{ptr}:{ptr+1}]\ns_mov_b32 s{b+2}, {size}")

    def execmask(self, m):
        lo, hi = m & 0xFFFFFFFF, m >> 32
        self.a(f"s_mov_b32 exec_lo, 0x{lo:x}\ns_mov_b32 exec_hi, 0x{hi:x}")

    def premask(self, s, m):
        lo, hi = m & 0xFFFFFFFF, m >> 32
        self.a(f"s_mov_b32 s{s}, 0x{lo:x}\ns_mov_b32 s{s+1}, 0x{hi:x}")

    def poll(self, loads, check, depth=1):
        a = self.a
        lp, ok = a.label("POLL"), a.label("POK")
        for _ in range(depth - 1):
            a(loads)
        a(f"s_movk_i32 {sCNT}, {NPOLL}\n{lp}:")
        a(loads)
        a(f"s_waitcnt vmcnt({(depth - 1) * len(loads.splitlines())})")
        a(check)
        a(f"""
        s_cbranch_vccz {ok}
        s_sub_u32 {sCNT}, {sCNT}, 1
        s_cbranch_scc0 {lp}
        {ok}:
        """)

    @staticmethod
    def sent(regs, t):
        regs = list(regs)
        if len(regs) == 1:
            return f"v_cmp_eq_u32 vcc, -1, v{regs[0]}"
        s = []
        if len(regs) % 2 == 0:
            s.append(f"v_max_u32 v{t}, v{regs[0]}, v{regs[1]}")
            regs = regs[2:]
        else:
            s.append(f"v_max3_u32 v{t}, v{regs[0]}, v{regs[1]}, v{regs[2]}")
            regs = regs[3:]
        while regs:
            s.append(f"v_max3_u32 v{t}, v{t}, v{regs[0]}, v{regs[1]}")
            regs = regs[2:]
        s.append(f"v_cmp_eq_u32 vcc, -1, v{t}")
        return "\n".join(s)

    def dpp(self, op, regs, ctrl):
        for r in regs:
            self.a(f"{op}_dpp v{r}, v{r}, v{r} {ctrl} row_mask:0xf bank_mask:0xf")

    def swapred(self, op, regs, tmps, which):
        a = self.a
        for r, t in zip(regs, tmps):
            a(f"v_mov_b32 v{t}, v{r}")
        for r, t in zip(regs, tmps):
            a(f"v_permlane{which}_swap_b32 v{r}, v{t}")
        for r, t in zip(regs, tmps):
            a(f"{op} v{r}, v{r}, v{t}")

    def silu(self, pairs, t):
        a = self.a
        n = len(pairs)
        x = [t + i for i in range(2 * n)]
        e = [t + 2 * n + i for i in range(2 * n)]
        for i, p in enumerate(pairs):
            a(f"v_lshlrev_b32 v{x[2*i]}, 16, v{p}\nv_and_b32 v{x[2*i+1]}, 0xffff0000, v{p}")
        for i in range(2 * n):
            a(f"v_mul_f32 v{e[i]}, 0x{LOG2E | 0x80000000:x}, v{x[i]}")
        for i in range(2 * n):
            a(f"v_exp_f32 v{e[i]}, v{e[i]}")
        for i in range(2 * n):
            a(f"v_add_f32 v{e[i]}, 1.0, v{e[i]}")
        for i in range(2 * n):
            a(f"v_rcp_f32 v{e[i]}, v{e[i]}")
        for i in range(2 * n):
            a(f"v_mul_f32 v{x[i]}, v{x[i]}, v{e[i]}")
        for i, p in enumerate(pairs):
            a(f"v_cvt_pk_bf16_f32 v{p}, v{x[2*i]}, v{x[2*i+1]}")

    def entry(self):
        a = self.a
        if self.diag:
            for i in range(1, 16):
                a(f"s_mov_b64 s[{64+2*i}:{65+2*i}], 0")
        if self.probe:
            a("s_mov_b64 s[64:65], 0\ns_mov_b32 s101, s2")
        self.stamp(0)
        a(f"""
        s_cmp_ge_u32 s2, 256
        s_cbranch_scc1 EXIT
        s_load_dwordx16 s[4:19], s[0:1], 0
        s_load_dwordx8 s[20:27], s[0:1], 64
        s_load_dwordx4 s[28:31], s[0:1], 96
        v_lshrrev_b32 v1, 6, v0
        v_and_b32 v0, 63, v0
        v_readfirstlane_b32 {sW}, v1
        s_and_b32 {sXCD}, s2, 7
        {"s_bfe_u32 s57, s2, 0x40003" if self.opt.get("hi") else "s_lshr_b32 s57, s2, 4"}
        s_lshl4_add_u32 {sID}, {sXCD}, s57
        v_lshlrev_b32 v1, 4, v0
        v_lshrrev_b32 v2, 4, v0
        v_and_b32 v3, 15, v0
        s_mov_b32 s39, 0x20000
        s_mov_b32 s43, 0x20000
        s_mov_b32 s47, 0x20000
        s_mov_b32 s51, 0x20000
        s_mov_b32 s55, 0x20000
        s_bitcmp1_b32 s2, {7 if self.opt.get('hi') else 3}
        s_cbranch_scc1 WROLE
        """)

    def arole(self):
        a = self.a
        self.sect = "A"
        a(f"""
        s_and_b32 s60, {sID}, 15
        s_lshr_b32 s61, {sID}, 4
        v_lshlrev_b32 v4, 4, v3
        v_lshl_or_b32 v68, v2, 19, v4
        v_mov_b32 v64, -1
        v_mov_b32 v65, -1
        v_mov_b32 v66, -1
        v_mov_b32 v67, -1
        s_lshl_b32 s62, {sW}, 15
        s_lshl_b32 s63, {sID}, 8
        s_add_u32 s62, s62, s63
        s_add_u32 s62, s62, {H3}
        s_cmp_ge_u32 {sW}, 2
        s_cbranch_scc1 A_W23
        v_lshrrev_b32 v5, 3, v0
        v_and_b32 v6, 7, v0
        v_lshlrev_b32 v7, 1, v2
        v_xor_b32 v7, v6, v7
        v_mul_u32_u24 v8, 6144, v5
        v_lshrrev_b32 v9, 2, v7
        v_lshl_add_u32 v8, v9, 10, v8
        v_and_b32 v9, 3, v7
        v_lshl_add_u32 v8, v9, 4, v8
        v_and_b32 v10, 1, v5
        v_lshlrev_b32 v10, 10, v10
        v_lshl_add_u32 v11, v2, 3, v6
        v_lshl_add_u32 v11, v11, 5, v10
        v_lshl_add_u32 v12, v2, 3, v10
        s_lshl1_add_u32 s32, s61, {sW}
        s_mul_i32 s32, s32, {32 * 6144}
        s_lshl_b32 s33, s60, 6
        s_add_u32 s32, s32, s33
        s_lshl_b32 s34, {sW}, 5
        s_add_u32 s33, s33, s34
        s_lshl_b32 s34, {sW}, 12
        s_add_u32 m0, s34, {Q}
        s_waitcnt lgkmcnt(0)
        """)
        self.srd(R2, 4, 2048)
        self.srd(R1, 24, 512 * 6144)
        a(f"""
        buffer_load_dwordx4 v[16:19], v11, {R2}, 0 offen
        buffer_load_dwordx4 v[20:23], v11, {R2}, 0 offen offset:16
        buffer_load_dwordx2 v[24:25], v12, {R2}, s33 offen
        """)
        for j in range(4):
            a(f"buffer_load_dwordx4 v8, {R1}, s32 offen offset:{1024*j} nt lds")
            if j < 3:
                a(f"s_add_u32 s32, s32, {8 * 6144 - 1024}")
        a(f"s_load_dword {sTAG}, s[30:31], 0")
        self.srd(WS, 30, 0x10000000)
        a(f"""
        v_lshrrev_b32 v13, 2, v0
        v_lshlrev_b32 v13, 7, v13
        v_and_b32 v14, 3, v5
        v_xor_b32 v14, {sW}, v14
        v_lshl_add_u32 v13, v14, 5, v13
        v_and_b32 v14, 3, v0
        v_lshl_add_u32 v13, v14, 3, v13
        v_add_u32 v13, {Q}, v13
        v_xor_b32 v14, 64, v13
        v_lshrrev_b32 v15, 3, v10
        v_lshl_add_u32 v15, v2, 4, v15
        v_add_u32 v15, {SIL}, v15
        s_cmp_eq_u32 s61, 0
        s_cselect_b32 s32, 1.0, 0
        v_mov_b32 v56, s32
        v_mov_b32 v57, s32
        v_mov_b32 v58, s32
        v_mov_b32 v59, s32
        v_lshlrev_b32 v5, 4, v5
        v_lshl_add_u32 v5, v6, 15, v5
        s_lshl_b32 s32, s60, 11
        s_lshl_b32 s33, s61, 8
        s_add_u32 s32, s32, s33
        s_lshl_b32 s33, {sW}, 7
        s_add_u32 s32, s32, s33
        s_add_u32 s32, s32, {H1}
        s_mov_b32 s33, 0x3f803f80
        v_mov_b32 v26, 0
        v_mov_b32 v27, 0
        """)
        r1 = self.opt.get("r1", 1)
        self.premask(96, 0x0101010101010101 * ((1 << r1) - 1))
        nc = 0
        a(f"s_waitcnt vmcnt({5+nc})")
        for i in range(8):
            a(f"v_dot2c_f32_bf16 v26, s33, v{16+i}\nv_dot2c_f32_bf16 v27, v{16+i}, v{16+i}")
        self.dpp("v_add_f32", [26, 27], "quad_perm:[1,0,3,2]")
        self.dpp("v_add_f32", [26, 27], "quad_perm:[2,3,0,1]")
        self.dpp("v_add_f32", [26, 27], "row_half_mirror")
        self.swapred("v_add_f32", [26, 27], [16, 17], 16)
        self.swapred("v_add_f32", [26, 27], [16, 17], 32)
        a(f"""
        v_mul_f32 v26, 0x3b000000, v26
        v_mov_b32 v16, 0x3727c5ac
        v_fmac_f32 v16, 0x3b000000, v27
        v_fma_f32 v16, -v26, v26, v16
        v_rsq_f32 v16, v16
        s_waitcnt vmcnt({4+nc})
        v_lshlrev_b32 v20, 16, v24
        v_and_b32 v21, 0xffff0000, v24
        v_lshlrev_b32 v22, 16, v25
        v_and_b32 v23, 0xffff0000, v25
        """)
        for i in range(4):
            a(f"v_sub_f32 v{20+i}, v{20+i}, v26")
        for i in range(4):
            a(f"v_mul_f32 v{20+i}, v{20+i}, v16")
        a(f"s_waitcnt vmcnt({nc}) lgkmcnt(0)")
        self.stamp(1)
        a(f"""
        s_barrier
        ds_read_b128 v[44:47], v15
        """)
        for s in range(2):
            for blk in range(2):
                for u in range(2):
                    a(f"ds_read_b64_tr_b16 {vr(28 + (s*2+blk)*4 + 2*u, 2)}, v{13+blk} offset:{s*4096 + u*2048}")
            if s == 0:
                a("ds_read_b128 v[48:51], v15 offset:64")
        a(f"""
        s_add_u32 {sTAG}, {sTAG}, 0x{TAGC:x}
        v_mov_b32 v62, {sTAG}
        v_mov_b32 v63, {sTAG}
        s_waitcnt lgkmcnt(7)
        v_mfma_f32_16x16x32_bf16 v[52:55], v[28:31], v[44:47], 0
        s_waitcnt lgkmcnt(5)
        v_mfma_f32_16x16x32_bf16 v[56:59], v[32:35], v[44:47], v[56:59]
        s_waitcnt lgkmcnt(2)
        v_mfma_f32_16x16x32_bf16 v[52:55], v[36:39], v[48:51], v[52:55]
        s_waitcnt lgkmcnt(0)
        v_mfma_f32_16x16x32_bf16 v[56:59], v[40:43], v[48:51], v[56:59]
        s_mov_b64 exec, s[96:97]
        v_pk_fma_f32 v[52:53], v[20:21], v[56:57], v[52:53]
        v_pk_fma_f32 v[54:55], v[22:23], v[58:59], v[54:55]
        v_cvt_pk_bf16_f32 v60, v52, v53
        v_cvt_pk_bf16_f32 v61, v54, v55
        buffer_store_dwordx4 v[60:63], v5, {WS}, s32 offen sc1
        s_mov_b64 exec, -1
        """)
        self.stamp(2)
        a(f"""
        s_branch A_STREAM
        A_W23:
        s_cmp_eq_u32 {sW}, 3
        s_cbranch_scc1 A_W3
        v_lshrrev_b32 v5, 5, v0
        v_and_b32 v6, 31, v0
        v_lshlrev_b32 v7, 2, v6
        v_lshl_add_u32 v7, v5, 10, v7
        s_lshl_b32 s32, s61, 7
        s_waitcnt lgkmcnt(0)
        """)
        self.srd(R3, 22, 2048)
        a(f"""
        buffer_load_dword v16, v7, {R3}, s32 offen
        s_load_dword {sTAG}, s[30:31], 0
        """)
        self.srd(WS, 30, 0x10000000)
        a(f"""
        v_lshlrev_b32 v8, 6, v2
        v_bfe_u32 v9, v0, 1, 2
        v_lshl_add_u32 v8, v9, 4, v8
        v_and_b32 v9, 8, v0
        v_add_u32 v8, v8, v9
        v_and_b32 v9, 1, v0
        v_lshl_add_u32 v8, v9, 2, v8
        v_add_u32 v8, {SIL}, v8
        """)
        early = self.opt.get("early", 0)
        if early:
            self.stream(0, early)
        a(f"s_waitcnt vmcnt({early})")
        self.silu([16], 20)
        a(f"""
        ds_write_b32 v8, v16
        s_branch A_W23B
        A_W3:
        s_mul_i32 s32, {sID}, 3072
        s_add_u32 s32, s32, {SB}
        s_waitcnt lgkmcnt(0)
        """)
        self.srd(WS, 30, 0x10000000)
        a(f"""
        buffer_store_dwordx4 v[64:67], v1, {WS}, s32 offen sc1
        buffer_store_dwordx4 v[64:67], v1, {WS}, s32 offen offset:1024 sc1
        buffer_store_dwordx4 v[64:67], v1, {WS}, s32 offen offset:2048 sc1
        s_load_dword {sTAG}, s[30:31], 0
        """)
        if early:
            self.stream(0, early)
        a(f"""
        s_waitcnt vmcnt({early})
        A_W23B:
        s_waitcnt lgkmcnt(0)
        """)
        self.stamp(1)
        a(f"""
        s_barrier
        s_add_u32 {sTAG}, {sTAG}, 0x{TAGC:x}
        {"s_branch A_STREAM2" if early else ""}
        A_STREAM:
        """)
        self.stream(0, 32, early)
        self.stamp(3)
        self.attn()

    def stream(self, k0, k1, early=0):
        a = self.a
        if k0 == 0:
            self.srd(R4, 6, 1 << 24)
            a(f"""
            s_lshl_b32 s32, {sID}, 17
            s_lshl_b32 s33, {sW}, 15
            s_add_u32 s32, s32, s33
            """)
        fk = lambda k: ((k & 7) << 1) | ((k >> 3) & 1)
        for k in range(k0, k1):
            if early and k == early:
                a("A_STREAM2:")
            if k % 4 == 0:
                a(f"s_add_u32 m0, s33, {k*1024}")
            if k == 16:
                a("s_add_u32 s32, s32, 16384")
            if k < 16:
                a(f"v_xor_b32 v{70+k}, {fk(k)*16 + (k & ~3)*1024}, v1")
            thr = self.opt.get("thr", 0)
            if thr and k >= thr:
                a(f"s_waitcnt vmcnt({thr-1})")
            if k < self.opt.get("nstream", 32):
                a(f"buffer_load_dwordx4 v{70+(k&15)}, {R4}, s32 offen offset:{(k&3)*1024} nt lds")

    def attn(self):
        a = self.a
        self.srd(R1, 12, 1 << 22)
        a(f"""
        v_and_b32 v4, 31, v0
        v_lshrrev_b32 v5, 5, v0
        v_and_b32 v6, 7, v0
        v_bfe_u32 v7, v0, 3, 1
        v_lshl_or_b32 v6, v6, 1, v7
        v_xor_b32 v6, v6, v5
        v_lshlrev_b32 v6, 4, v6
        v_lshl_add_u32 v6, v4, 10, v6
        v_add_u32 v69, s33, v6
        v_xor_b32 v6, v3, v5
        v_lshlrev_b32 v6, 4, v6
        v_lshl_add_u32 v6, v4, 8, v6
        v_add_u32 v70, {Q}, v6
        """)
        for i in range(1, 8):
            a(f"v_xor_b32 v{70+i}, {32*i}, v70")
        a(f"""
        v_bfe_u32 v6, v0, 2, 3
        v_lshl_add_u32 v7, v5, 4, v6
        v_lshlrev_b32 v7, 10, v7
        v_lshl_add_u32 v7, v6, 5, v7
        v_and_b32 v6, 3, v0
        v_lshl_add_u32 v7, v6, 3, v7
        s_lshl_b32 s32, {sW}, 8
        v_add_u32 v78, s32, v7
        v_xor_b32 v6, v3, v2
        v_lshlrev_b32 v6, 4, v6
        v_lshl_add_u32 v124, v2, 8, v6
        v_xor_b32 v125, 64, v124
        v_xor_b32 v126, 128, v124
        v_xor_b32 v127, 192, v124
        v_lshlrev_b32 v6, 4, v3
        v_lshl_add_u32 v82, v2, 13, v6
        s_lshl_b32 s32, {sW}, 7
        s_and_b32 s32, s32, 128
        v_xor_b32 v82, s32, v82
        v_xor_b32 v12, 64, v82
        v_lshlrev_b32 v83, 2, v4
        v_add_u32 v83, {FLAG2 - FLAG}, v83
        s_lshl_b32 s32, {sW}, 2
        s_add_u32 s32, s32, {MX}
        v_lshlrev_b32 v6, 4, v4
        v_add_u32 v8, s32, v6
        v_add_u32 v9, {MX}, v6
        s_lshl_b32 s32, {sW}, 11
        s_add_u32 s32, s32, {PB}
        v_add_u32 v10, s32, v1
        v_lshlrev_b32 v6, 4, v3
        v_lshl_add_u32 v6, v2, 9, v6
        v_add_u32 v11, {PB}, v6
        s_lshr_b32 s60, {sID}, 6
        s_lshl2_add_u32 s60, s60, {sW}
        s_lshl_b32 s60, s60, 13
        s_add_u32 s60, s60, {H2}
        s_and_b32 s63, {sID}, 3
        s_lshl2_add_u32 s63, s63, {sW}
        s_lshl_b32 s63, s63, 18
        s_lshr_b32 s32, {sID}, 2
        s_lshl_b32 s32, s32, 8
        s_add_u32 s63, s63, s32
        s_lshr_b32 s61, {sID}, {7 - self.opt.get("rf", 5)}
        s_lshl2_add_u32 s61, s61, {sW}
        s_lshl_b32 s61, s61, 7
        s_add_u32 s61, s61, {FLAG}
        s_add_u32 s2, s61, 64
        s_mov_b32 s0, {sTAG}
        s_mov_b32 s1, {sTAG}
        """)

        uvpos = self.opt.get("uvpos", 0)
        f2pos = self.opt.get("f2pos", 0)

        def wuv(js=range(8)):
            for j in js:
                if j == 0:
                    a(f"s_lshl_b32 s33, {sW}, 13\ns_mov_b32 m0, s33\ns_mov_b32 s32, s63")
                if j == 4:
                    a("s_add_u32 m0, s33, 4096")
                a(f"buffer_load_dwordx4 v{12 if j >> 2 else 82}, {R1}, s32 offen offset:{(j&3)*1024} nt lds")
                if j < 7:
                    a(f"s_add_u32 s32, s32, {32768 - 1024 + (4096 if j == 3 else 0)}")

        def areads():
            for i in range(8):
                if i:
                    a(f"v_xor_b32 v{79+(i&1)}, {32*i}, v69")
                for q in range(4):
                    a(f"ds_read_b128 {ar((q*8+i)*4)}, v{69 if i == 0 else 79+(i&1)} offset:{q*256}")

        def trreads(s):
            kwh, j, u = s >> 4, (s >> 1) & 7, s & 1
            a(f"v_xor_b32 v{79+u}, {j*32 + u*16 + kwh*65536}, v78")
            for kl in range(2):
                kw = 2 * kwh + kl
                a(f"ds_read_b64_tr_b16 {ar(128 + (kw*8+j)*4 + 2*u, 2)}, v{79+u} offset:{u*8192 + kl*32768}")

        a(f"""
        s_movk_i32 {sCNT}, {NPOLL}
        A_FPOLL:
        s_buffer_load_dwordx16 s[4:19], {WS}, s61 glc
        s_buffer_load_dwordx16 s[20:35], {WS}, s2 glc
        s_sub_u32 {sCNT}, {sCNT}, 1
        s_cbranch_scc1 A_FTIME
        s_waitcnt lgkmcnt(0)
        """)
        for i in range(16):
            a(f"s_cmp_lg_u64 s[{4+2*i}:{5+2*i}], s[0:1]\ns_cbranch_scc1 A_FPOLL")
        a(f"""
        A_FTIME:
        s_waitcnt lgkmcnt(0)
        s_movk_i32 {sCNT}, 2000
        A_QDMA:
        """)
        self.stamp(4)
        a(f"""
        s_lshl_b32 s32, {sW}, 13
        s_add_u32 m0, s32, {Q}
        s_add_u32 s33, s60, 4096
        """)
        for j in range(8):
            if j == 4:
                a(f"s_add_u32 m0, s32, {Q + 4096}")
            a(f"buffer_load_dwordx4 v{124+(j&3)}, {WS}, {'s60' if j < 4 else 's33'} offen offset:{(j&3)*1024} sc1 lds")
        a(f"s_cmpk_lg_u32 {sCNT}, 2000\ns_cbranch_scc1 A_QW\ns_waitcnt vmcnt(8)")
        self.stamp(5)
        areads()
        a("s_barrier")
        for s in range(32):
            trreads(s)
        a("A_QW:\nv_mov_b32 v81, 0\ns_waitcnt vmcnt(0) lgkmcnt(0)")
        self.stamp(6)
        a("s_barrier")
        D, NS = 4, 5
        bs = lambda s: 84 + 4 * (s % NS)
        rdB = lambda s: f"ds_read_b128 {vr(bs(s))}, v{70+(s&7)} offset:{(s>>3)*8192}"
        for s in range(D):
            a(rdB(s))
        for s in range(32):
            n = min(D - 1, 31 - s)
            a(f"s_waitcnt lgkmcnt({n})")
            a(f"v_mfma_f32_32x32x16_bf16 v[108:123], {ar(4*s)}, {vr(bs(s))}, {'0' if s == 0 else 'v[108:123]'}")
            if s + D < 32:
                a(rdB(s + D))
            a(f"v_max3_u32 v81, v81, v{bs(s)}, v{bs(s)+2}")
            if s < 8 and uvpos == 2:
                wuv([s])
            if s == 20:
                a("s_barrier")
        a(f"""
        v_cmp_eq_u32 vcc, -1, v81
        s_cbranch_vccnz A_REDO
        A_QOK:
        """)
        self.stamp(7)
        f2 = f"buffer_load_dword v13, v83, {WS}, s61 offen sc1"
        if f2pos == 0:
            a(f2)
        a("v_max3_f32 v4, v108, v109, v110\nv_max3_f32 v5, v111, v112, v113")
        a("v_max3_f32 v4, v4, v114, v115\nv_max3_f32 v5, v5, v116, v117")
        a("v_max3_f32 v4, v4, v118, v119\nv_max3_f32 v5, v5, v120, v121")
        a("v_max3_f32 v4, v4, v122, v123\nv_max_f32 v4, v4, v5")
        self.swapred("v_max_f32", [4], [5], 32)
        a("ds_write_b32 v8, v4")
        if uvpos == 0:
            wuv()
        a(f"""
        s_waitcnt lgkmcnt(0)
        s_barrier
        ds_read_b128 v[4:7], v9
        s_waitcnt lgkmcnt(0)
        v_max3_f32 v4, v4, v5, v6
        v_max_f32 v14, v4, v7
        """)
        for st in range(2):
            for i in range(8):
                a(f"v_sub_f32 v{108+8*st+i}, v{108+8*st+i}, v14")
            for i in range(8):
                a(f"v_exp_f32 v{108+8*st+i}, v{108+8*st+i}")
            for i in range(4):
                a(f"v_cvt_pk_bf16_f32 v{84+4*st+i}, v{108+8*st+2*i}, v{109+8*st+2*i}")
            a(f"ds_write_b128 v10, {vr(84+4*st)} offset:{st*1024}")
        if f2pos == 1:
            a(f2)
        if uvpos == 1:
            wuv()
        a("s_waitcnt lgkmcnt(0)\ns_barrier")
        self.stamp(8)
        for ht in range(2):
            for kw in range(4):
                a(f"ds_read_b128 {vr(160+(ht*4+kw)*4)}, v11 offset:{kw*2048 + ht*256}")
        a(f"""
        s_mov_b32 s33, 0x3f803f80
        v_mov_b32 v15, 0
        v_mov_b32 v16, 0
        s_lshl_b32 s34, {sW}, 3
        s_lshl_b32 s96, 0xff, s34
        s_mov_b32 s97, 0
        s_lshl_b32 s35, {sID}, 9
        s_add_u32 s35, s35, {ML}
        s_mov_b32 s34, s62
        """)
        side = []
        for ht in range(2):
            for i in range(16):
                side.append(f"v_dot2c_f32_bf16 v{15+ht}, s33, v{160+ht*16+i}")
        side += ["s_nop 0", "v_permlane16_swap_b32 v15, v16", "v_add_f32 v15, v15, v16", "v_mov_b32 v16, v15", "s_nop 0",
                 "v_permlane32_swap_b32 v15, v16", "v_add_f32 v15, v15, v16", f"v_mov_b32 v16, {sTAG}"]
        mlst = f"s_mov_b64 exec, s[96:97]\nbuffer_store_dwordx4 v[14:17], v1, {WS}, s35 offen sc1\ns_mov_b64 exec, -1"
        mlpos = self.opt.get("mlpos", 4)
        acc = lambda ht, j: 192 + ht * 32 + j * 4
        gr = lambda ht, r: 84 + ht * 16 + r * 4
        late = {}
        for ht in range(2):
            for jp in range(4):
                blk = ht * 4 + jp
                cv = [f"v_cvt_pk_bf16_f32 v{gr(ht, r)+jp}, v{acc(ht, 2*jp)+r}, v{acc(ht, 2*jp+1)+r}" for r in range(4)]
                if jp == 3:
                    nv = []
                    for r in range(4):
                        nv.append(cv[r])
                        st = f"buffer_store_dwordx4 {vr(gr(ht, r))}, v68, {WS}, s34 offen sc1"
                        if not (ht == 1 and r == 3):
                            st += f"\ns_add_u32 s34, s34, {131072 * (13 if r == 3 else 1)}"
                        nv.append(st)
                    cv = nv
                late[blk + 1] = cv
        first = True
        for blk in range(8):
            ht, jp = blk >> 2, blk & 3
            pend = list(late.get(blk, []))
            if blk == 4:
                a(f"""
                s_waitcnt vmcnt({8 if uvpos < 2 and f2pos <= uvpos else 0})
                v_cmp_ne_u32 vcc, {sTAG}, v13
                s_cbranch_vccnz A_F2POLL
                A_F2OK:
                """)
            if blk == mlpos and mlpos > 4:
                assert not side
                a(mlst)
            for kw in range(4):
                if blk == 0:
                    a(f"s_waitcnt lgkmcnt({7-kw})")
                for jj in range(2):
                    j = 2 * jp + jj
                    c = "0" if kw == 0 else vr(acc(ht, j))
                    a(f"v_mfma_f32_16x16x32_bf16 {vr(acc(ht, j))}, {vr(160+(ht*4+kw)*4)}, {ar(128+(kw*8+j)*4)}, {c}")
                    if blk == 0 and kw == 3 and jj == 1:
                        a("s_waitcnt lgkmcnt(0)")
                    n = 2
                    if blk >= 1 and kw >= 2:
                        for _ in range(2):
                            if pend:
                                a(pend.pop(0))
                                n -= 1
                    if blk >= 1:
                        for _ in range(n):
                            if side:
                                a(side.pop(0))
                                if not side and mlpos == 4:
                                    a(mlst)
            assert not pend
        assert not side
        if mlpos == 8:
            a(mlst)
        for x in late[8]:
            a(x)
        if mlpos == 9:
            a(mlst)
        self.stamp(9)
        a(f"""
        s_and_b32 s32, {sW}, 1
        s_lshl_b32 s33, s32, 3
        v_xor_b32 v6, s33, v0
        v_lshlrev_b32 v6, 9, v6
        s_lshr_b32 s34, {sW}, 1
        s_lshr_b32 s35, {sID}, 2
        s_lshl_b32 s35, s35, 4
        s_lshl_b32 s33, s34, 15
        s_add_u32 s35, s35, s33
        s_add_u32 s35, s35, {ML}
        s_lshl3_add_u32 s34, s34, s32
        s_lshl_b32 s34, s34, 11
        s_lshl_b32 s32, {sID}, 15
        s_add_u32 s34, s34, s32
        s_add_u32 s34, s34, {H3}
        v_lshlrev_b32 v7, 4, v3
        v_lshl_add_u32 v7, v2, 12, v7
        v_bfe_u32 v8, v0, 2, 2
        v_xor_b32 v9, {sW}, v8
        v_lshlrev_b32 v9, 6, v9
        v_lshl_add_u32 v9, v8, 12, v9
        v_lshl_add_u32 v9, v2, 8, v9
        v_and_b32 v8, 3, v0
        v_lshl_add_u32 v9, v8, 4, v9
        v_mul_u32_u24 v10, 288, v8
        v_lshl_add_u32 v10, v2, 4, v10
        s_mul_i32 s32, {sW}, 288
        v_lshlrev_b32 v11, 4, v3
        v_lshl_add_u32 v11, v2, 3, v11
        v_add_u32 v11, s32, v11
        v_and_b32 v12, 1, v0
        v_lshlrev_b32 v12, 4, v12
        s_mov_b32 s32, 0xffff
        v_lshlrev_b32 v12, v12, s32
        v_lshrrev_b32 v13, 1, v3
        """)
        for i in range(4):
            a(f"v_cmp_eq_u32 vcc, {i}, v13\nv_cndmask_b32 v{20+i}, 0, v12, vcc")
        a(f"""
        v_bfe_u32 v12, v0, 1, 1
        v_lshlrev_b32 v12, 6, v12
        v_lshl_add_u32 v12, v2, 4, v12
        s_lshl_b32 s60, {sID}, 9
        s_lshl_b32 s32, {sW}, 7
        s_add_u32 s60, s60, s32
        s_add_u32 s60, s60, {H3B}
        """)
        self.premask(96, 0x0005000500050005)
        a("s_waitcnt vmcnt(9)\ns_barrier")
        for s in range(4):
            for t in range(2):
                for u in range(2):
                    a(f"ds_read_b64_tr_b16 {vr(128+(s*2+t)*4+2*u, 2)}, v9 offset:{u*16384 + s*1024 + t*8}")
        self.poll(f"buffer_load_dwordx3 v[16:18], v6, {WS}, s35 offen sc1", f"v_cmp_ne_u32 vcc, {sTAG}, v18")
        self.stamp(10)
        oloads = "\n".join(f"buffer_load_dwordx4 {vr(160+4*j)}, v7, {WS}, s34 offen offset:{j*256} sc1" for j in range(8))
        a(oloads)
        a("v_mov_b32 v18, v16")
        for c in ("quad_perm:[1,0,3,2]", "quad_perm:[2,3,0,1]", "row_half_mirror", "row_mirror"):
            self.dpp("v_max_f32", [18], c)
        self.swapred("v_max_f32", [18], [19], 16)
        self.swapred("v_max_f32", [18], [19], 32)
        a("v_sub_f32 v16, v16, v18\nv_exp_f32 v16, v16\nv_mul_f32 v18, v16, v17")
        for c in ("quad_perm:[1,0,3,2]", "quad_perm:[2,3,0,1]", "row_half_mirror", "row_mirror"):
            self.dpp("v_add_f32", [18], c)
        self.swapred("v_add_f32", [18], [19], 16)
        self.swapred("v_add_f32", [18], [19], 32)
        a("v_rcp_f32 v18, v18\nv_mul_f32 v16, v16, v18\nv_cvt_pk_bf16_f32 v16, v16, v16")
        for j in range(8):
            for i in range(4):
                a(f"v_and_b32_dpp v{192+4*j+i}, v16, v{20+i} row_newbcast:{j} row_mask:0xf bank_mask:0xf")
        chk = self.sent([160 + 4 * j for j in range(8)], 18)
        a(f"""
        s_movk_i32 {sCNT}, {NPOLL}
        A_OWAIT:
        s_waitcnt vmcnt(0)
        {chk}
        s_cbranch_vccnz A_OREDO
        A_OOK:
        """)
        self.stamp(11)
        for j in range(8):
            c = "0" if j < 2 else vr(24 + 4 * (j & 1))
            a(f"v_mfma_f32_16x16x32_bf16 {vr(24+4*(j&1))}, {vr(192+4*j)}, {vr(160+4*j)}, {c}")
        a(f"""
        s_mov_b32 exec_hi, 0
        v_pk_add_f32 v[24:25], v[24:25], v[28:29]
        v_pk_add_f32 v[26:27], v[26:27], v[30:31]
        v_cvt_pk_bf16_f32 v24, v24, v25
        v_cvt_pk_bf16_f32 v25, v26, v27
        ds_write_b64 v11, v[24:25] offset:{XU}
        s_mov_b32 exec_hi, -1
        s_waitcnt lgkmcnt(0)
        s_barrier
        """)
        for s in range(4):
            a(f"ds_read_b128 {vr(32+4*s)}, v10 offset:{XU + s*64}")
        for s in range(4):
            a(f"s_waitcnt lgkmcnt({3-s})")
            for t in range(2):
                c = "0" if s == 0 else vr(24 + 4 * t)
                a(f"v_mfma_f32_16x16x32_bf16 {vr(24+4*t)}, {vr(128+(s*2+t)*4)}, {vr(32+4*s)}, {c}")
        self.dpp("v_add_f32", range(24, 32), "quad_perm:[1,0,3,2]")
        a("s_mov_b64 exec, s[96:97]")
        for i in range(4):
            a(f"v_cvt_pk_bf16_f32 v{32+i}, v{24+2*i}, v{25+2*i}")
        a(f"buffer_store_dwordx4 v[32:35], v12, {WS}, s60 offen sc1")
        self.stamp(12)
        a(f"""
        s_branch FIN
        A_REDO:
        s_sub_u32 {sCNT}, {sCNT}, 1
        s_cbranch_scc1 A_QOK
        s_waitcnt lgkmcnt(0)
        s_barrier
        s_branch A_QDMA
        A_OREDO:
        s_sub_u32 {sCNT}, {sCNT}, 1
        s_cbranch_scc1 A_OOK
        {oloads}
        s_branch A_OWAIT
        A_F2POLL:
        """)
        self.poll(f2, f"v_cmp_ne_u32 vcc, {sTAG}, v13")
        a("s_branch A_F2OK")

    def tagpoll(self, voff, soff, r, depth):
        self.poll(f"buffer_load_dwordx3 {vr(r, 3)}, {voff}, {WS}, {soff} offen sc1\n"
                  f"buffer_load_dwordx3 {vr(r+4, 3)}, {voff}, {WS}, {soff} offen offset:1024 sc1",
                  f"v_cmp_ne_u32 s[32:33], {sTAG}, v{r+2}\nv_cmp_ne_u32 vcc, {sTAG}, v{r+6}\ns_or_b64 vcc, vcc, s[32:33]", depth)

    def smallgemm(self, xb, wbase):
        a = self.a
        for s in range(4):
            a(f"ds_read_b128 {vr(88+4*s)}, v9 offset:{xb - X1 + s*1024}")
        for s in range(4):
            a(f"s_waitcnt lgkmcnt({3-s})")
            for t in range(2):
                c = "0" if s == 0 else vr(104 + 4 * t)
                a(f"v_mfma_f32_16x16x32_bf16 {vr(104+4*t)}, {vr(wbase+(s*2+t)*4)}, {vr(88+4*s)}, {c}")
        for t in range(2):
            for r in range(4):
                a(f"v_add_f32_dpp v{112+r}, v{104+4*t+r}, v{104+4*t+r} row_ror:8 row_mask:0xf bank_mask:{'0x3' if t == 0 else '0xc'}")
        self.dpp("v_add_f32", range(112, 116), "quad_perm:[2,3,0,1]")

    def wrole(self):
        a = self.a
        self.sect = "W"
        a(f"""
        WROLE:
        s_lshr_b32 s60, {sID}, 2
        s_and_b32 s61, {sID}, 3
        s_lshl2_add_u32 s62, s61, {sW}
        s_lshl_b32 s32, s62, 18
        s_lshl_b32 s33, s60, 8
        s_add_u32 s32, s32, s33
        s_lshl_b32 s33, {sW}, 13
        s_mov_b32 m0, s33
        v_lshlrev_b32 v4, 2, v2
        v_xor_b32 v4, v4, v3
        v_lshlrev_b32 v4, 4, v4
        v_lshl_add_u32 v4, v2, 13, v4
        v_xor_b32 v5, v2, v3
        v_lshlrev_b32 v5, 4, v5
        v_lshl_add_u32 v124, v2, 13, v5
        v_xor_b32 v125, 64, v124
        v_xor_b32 v126, 128, v124
        v_xor_b32 v127, 192, v124
        s_mov_b32 s100, s32
        s_waitcnt lgkmcnt(0)
        """)
        self.srd(R1, 8, 1 << 22)
        self.srd(R2, 10, 1 << 22)
        ukpos = self.opt.get("ukpos", 0)

        def wdma(m):
            R, so = ((R1, "s32"), (R2, "s100"))[m]
            for j in range(8):
                if j == 4 or (m == 1 and j == 0):
                    a(f"s_add_u32 m0, s33, {m*WK + (j>>2)*4096}")
                v = 4 if m == 0 else 124 + (j >> 1)
                a(f"buffer_load_dwordx4 v{v}, {R}, {so} offen offset:{(j&3)*1024} nt lds")
                if j < 7:
                    a(f"s_add_u32 {so}, {so}, {32768 - 1024 + (4096 if j == 3 else 0)}")

        wdma(0)
        if ukpos == 0:
            wdma(1)
        a(f"s_load_dword {sTAG}, s[30:31], 0")
        self.srd(WS, 30, 0x10000000)
        self.stamp(1)
        a(f"""
        v_bfe_u32 v4, v0, 2, 2
        v_xor_b32 v5, {sW}, v4
        v_lshlrev_b32 v5, 6, v5
        v_lshrrev_b32 v6, 2, v0
        v_lshl_add_u32 v5, v6, 8, v5
        v_and_b32 v6, 3, v0
        v_lshl_add_u32 v10, v6, 4, v5
        v_lshl_add_u32 v5, v4, 3, v6
        v_lshlrev_b32 v5, 8, v5
        v_xor_b32 v7, v2, v3
        v_lshl_add_u32 v5, v7, 4, v5
        s_add_u32 s32, s33, {WK}
        v_add_u32 v11, s32, v5
        v_add_u32 v9, {X1}, v1
        s_lshl_b32 s32, {sW}, 10
        s_add_u32 s32, s32, {X1}
        v_bfe_u32 v4, v0, 1, 2
        v_lshlrev_b32 v4, 8, v4
        v_and_b32 v5, 1, v0
        v_lshl_add_u32 v4, v5, 6, v4
        v_lshl_add_u32 v4, v2, 4, v4
        v_and_b32 v6, 8, v0
        v_add3_u32 v12, v4, v6, s32
        v_bfe_u32 v4, v0, 3, 2
        v_lshlrev_b32 v4, 8, v4
        v_lshl_add_u32 v4, v5, 4, v4
        v_bfe_u32 v6, v0, 1, 1
        v_lshl_add_u32 v4, v6, 6, v4
        v_and_b32 v6, 32, v0
        v_add_u32 v4, v4, v6
        v_bfe_u32 v6, v0, 2, 1
        v_lshl_add_u32 v4, v6, 3, v4
        v_add_u32 v13, s32, v4
        v_lshrrev_b32 v4, 2, v0
        v_lshl_add_u32 v4, v4, 1, v5
        v_lshlrev_b32 v14, 4, v4
        v_lshlrev_b32 v4, 15, v6
        v_lshl_add_u32 v4, v2, 4, v4
        v_and_b32 v6, 8, v0
        v_add_u32 v15, v4, v6
        v_lshlrev_b32 v120, 9, v0
        s_lshl_b32 s62, s62, 11
        s_and_b32 s63, {sXCD}, {self.opt.get("r1", 1) - 1}
        s_lshl_b32 s63, s63, 15
        s_add_u32 s62, s62, s63
        s_add_u32 s62, s62, {H1}
        s_lshl2_add_u32 s63, s60, {sW}
        s_lshl_b32 s63, s63, 11
        s_add_u32 s63, s63, {HQ}
        s_lshl_b32 s34, s61, 9
        s_add_u32 s34, s34, s63
        s_lshl_b32 s35, s61, 5
        s_add_u32 s35, s35, s60
        s_lshl_b32 s2, s35, 2
        s_add_u32 s2, s2, {FLAG}
        s_lshl_b32 s0, {sW}, {7 + self.opt.get("rf", 5)}
        s_add_u32 s2, s2, s0
        s_lshl2_add_u32 s35, s35, {sW}
        s_lshl_b32 s35, s35, 6
        s_add_u32 s35, s35, {H2}
        s_mov_b32 s0, 0x{(1 << (1 << (self.opt.get("rf", 5) - 2))) - 1:x}
        s_mov_b32 s1, 0
        """)
        if self.opt.get("touch", 1):
            a(f"buffer_load_dwordx3 v[80:82], v1, {WS}, s63 offen sc1\nbuffer_load_dwordx3 v[84:86], v1, {WS}, s63 offen offset:1024 sc1")
        self.premask(96, 0x3333333333333333)
        self.premask(98, 0x1111111111111111)
        a(f"""
        s_waitcnt vmcnt({(2 if self.opt.get("touch", 1) else 0) + (8 if ukpos == 0 else (0, 0, 4, 6)[ukpos])}) lgkmcnt(0)
        s_add_u32 {sTAG}, {sTAG}, 0x{TAGC:x}
        """)
        if ukpos:
            wdma(1)
        if ukpos > 1:
            a("s_waitcnt vmcnt(10)")
        self.stamp(2)
        a(f"""
        s_barrier
        v_mov_b32 v118, {sTAG}
        v_mov_b32 v119, {sTAG}
        """)
        for s in range(4):
            for t in range(2):
                for u in range(2):
                    a(f"ds_read_b64_tr_b16 {vr(16+(s*2+t)*4+2*u, 2)}, v10 offset:{s*8192 + u*4096 + t*8}")
        self.tagpoll("v1", "s62", 80, self.opt.get("d1", 1))
        self.stamp(3)
        a(f"""
        ds_write_b64 v12, v[80:81]
        ds_write_b64 v12, v[84:85] offset:128
        s_waitcnt lgkmcnt(0)
        s_barrier
        """)
        self.smallgemm(X1, 16)
        a(f"""
        s_mov_b64 exec, s[96:97]
        v_cvt_pk_bf16_f32 v116, v112, v113
        v_cvt_pk_bf16_f32 v117, v114, v115
        buffer_store_dwordx4 v[116:119], v14, {WS}, s34 offen sc1
        s_mov_b64 exec, -1
        """)
        self.stamp(4)
        for s in range(4):
            if s:
                a(f"v_xor_b32 v4, {64*s}, v11")
            for t in range(2):
                a(f"ds_read_b128 {vr(48+(s*2+t)*4)}, v{4 if s else 11} offset:{t*1024}")
        self.tagpoll("v1", "s63", 80, self.opt.get("dQ", 1))
        self.stamp(5)
        flag = f"s_mov_b64 exec, s[0:1]\nbuffer_store_dword v118, v120, {WS}, s2 offen sc1\ns_mov_b64 exec, -1"
        a(f"""
        ds_write_b64 v13, v[80:81] offset:{X2 - X1}
        ds_write_b64 v13, v[84:85] offset:{X2 - X1 + 128}
        s_waitcnt lgkmcnt(0)
        s_barrier
        """)
        if self.opt.get("earlyflag"):
            a(flag)
        self.smallgemm(X2, 48)
        self.dpp("v_add_f32", range(112, 116), "quad_perm:[1,0,3,2]")
        a("s_mov_b64 exec, s[98:99]")
        for r in range(4):
            a(f"v_mul_f32 v{112+r}, 0x{QSCALE:x}, v{112+r}")
        a(f"""
        v_cvt_pk_bf16_f32 v116, v112, v113
        v_cvt_pk_bf16_f32 v117, v114, v115
        buffer_store_dwordx2 v[116:117], v15, {WS}, s35 offen sc1
        """)
        if not self.opt.get("earlyflag"):
            a(flag)
        else:
            a("s_mov_b64 exec, -1")
        self.stamp(6)
        a(f"""
        v_mov_b32 v64, -1
        v_mov_b32 v65, -1
        v_mov_b32 v66, -1
        v_mov_b32 v67, -1
        s_lshl2_add_u32 s32, {sID}, {sW}
        s_lshl_b32 s32, s32, 13
        s_add_u32 s32, s32, {H3}
        s_add_u32 s34, s32, 4096
        s_add_u32 s2, s2, {FLAG2 - FLAG}
        """)
        for j in range(8):
            a(f"buffer_store_dwordx4 v[64:67], v1, {WS}, {'s32' if j < 4 else 's34'} offen offset:{(j&3)*1024} sc1")
        cw = self.opt.get("cw", 0)

        def flag2(n):
            a(f"s_waitcnt vmcnt({n})")
            self.stamp(12)
            a("s_barrier\n" + flag)

        if cw == 0:
            flag2(0)
        a(f"""
        s_and_b32 s60, {sID}, 15
        s_and_b32 s61, {sID}, 3
        s_lshl2_add_u32 s61, {sXCD}, s61
        s_cmp_lt_u32 s60, 8
        s_cbranch_scc1 W_SETO
        s_cmp_lt_u32 s60, 12
        s_cbranch_scc1 W_SETM
        s_cmp_ge_u32 s61, 28
        s_cbranch_scc1 {"W_IDLE" if cw else "FIN"}
        """)
        self.srd(R1, 18, 512 * 3584)
        a(f"""
        s_movk_i32 s62, 3584
        s_lshl_b32 s32, s61, 7
        s_branch W_LOAD
        W_SETM:
        """)
        self.srd(R1, 24, 512 * 6144)
        a(f"""
        s_movk_i32 s62, 6144
        s_lshl_b32 s32, s61, 7
        s_add_u32 s32, s32, 2048
        s_branch W_LOAD
        W_SETO:
        """)
        self.srd(R1, 14, 1 << 22)
        a(f"""
        s_movk_i32 s62, 1024
        s_lshl_b32 s32, {sXCD}, 19
        s_lshl_b32 s33, s60, 7
        s_add_u32 s32, s32, s33
        W_LOAD:
        s_lshl_b32 s33, {sW}, 7
        s_mul_i32 s33, s33, s62
        s_add_u32 s32, s32, s33
        s_lshl_b32 s33, s62, 3
        s_sub_u32 s33, s33, 1024
        s_add_u32 s63, s33, 4096
        s_lshl_b32 s34, {sW}, 14
        v_lshrrev_b32 v4, 3, v0
        v_mul_lo_u32 v4, v4, s62
        v_and_b32 v5, 1, v2
        v_lshlrev_b32 v5, 1, v5
        v_and_b32 v6, 7, v0
        v_xor_b32 v5, v5, v6
        v_lshl_add_u32 v6, v5, 4, v4
        v_xor_b32 v5, 4, v5
        v_lshl_add_u32 v7, v5, 4, v4
        """)
        for j in range(16):
            if j % 4 == 0:
                a(f"s_add_u32 m0, s34, {W2R + j*1024}")
            a(f"buffer_load_dwordx4 v{6+(j&1)}, {R1}, s32 offen offset:{(j&3)*1024} nt lds")
            if j < 15:
                a(f"s_add_u32 s32, s32, {'s63' if j % 4 == 3 else 's33'}")
        if cw:
            flag2(16)
        a(f"""
        v_bfe_u32 v4, v0, 2, 2
        v_lshl_add_u32 v5, v2, 3, v4
        v_lshlrev_b32 v5, 7, v5
        v_bfe_u32 v6, v0, 3, 2
        v_xor_b32 v6, {sW}, v6
        v_lshl_add_u32 v5, v6, 5, v5
        v_and_b32 v6, 3, v0
        v_lshl_add_u32 v5, v6, 3, v5
        v_add_u32 v10, {W2R}, v5
        s_cmp_lt_u32 s60, 8
        s_cbranch_scc1 W_WAIT
        s_cmp_lt_u32 s60, 12
        s_cbranch_scc1 W_PREM
        """)
        self.srd(R2, 20, 1792 * 1024)
        a(f"""
        s_lshl_b32 s32, s61, 16
        s_add_u32 s32, s32, s34
        v_xor_b32 v5, 16, v1
        v_xor_b32 v6, 32, v1
        v_xor_b32 v7, 48, v1
        """)
        for j in range(16):
            if j % 4 == 0:
                a(f"s_add_u32 m0, s34, {j*1024}")
                if j:
                    a("s_add_u32 s32, s32, 4096")
            a(f"buffer_load_dwordx4 v{[1, 5, 6, 7][j&3]}, {R2}, s32 offen offset:{(j&3)*1024} nt lds")
        a(f"""
        s_branch W_WAIT
        W_PREM:
        """)
        self.srd(R3, 22, 2048)
        a(f"""
        s_lshl_b32 s32, {sW}, 9
        v_lshlrev_b32 v4, 3, v0
        buffer_load_dwordx2 v[16:17], v4, {R3}, s32 offen
        s_lshr_b32 s33, {sW}, 1
        s_lshl_b32 s33, s33, 5
        s_add_u32 s32, s32, s33
        s_add_u32 s32, s32, {SL}
        v_add_u32 v4, s32, v4
        s_waitcnt vmcnt(0)
        """)
        self.silu([16, 17], 20)
        a(f"""
        ds_write_b64 v4, v[16:17]
        W_WAIT:
        s_waitcnt vmcnt(0) lgkmcnt(0)
        """)
        self.stamp(7)
        a("s_barrier")
        for s in range(16):
            for u in range(2):
                a(f"ds_read_b64_tr_b16 {ar(4*s+2*u, 2)}, v10 offset:{s*4096 + u*512}")
        a(f"""
        s_cmp_lt_u32 s60, 8
        s_cbranch_scc0 W_NOTO
        """)
        self.orole()
        a(f"""
        W_NOTO:
        v_and_b32 v4, 3, v0
        v_mul_u32_u24 v4, 2112, v4
        v_bfe_u32 v5, v0, 2, 1
        v_mul_u32_u24 v5, 1056, v5
        v_lshl_add_u32 v5, v2, 4, v5
        s_cmp_lt_u32 s60, 12
        s_cbranch_scc1 W_M2
        """)
        self.ffn()
        if cw:
            a("W_IDLE:")
            flag2(0)
            a("s_branch FIN")
        a("W_M2:")
        self.m2()

    def actgemm(self, addr, fill=None):
        a = self.a
        fill = list(fill or [])
        for s in range(12):
            a(f"ds_read_b128 {vr(128+4*s)}, v{addr} offset:{s*64}")
        for s in range(16):
            a(f"s_waitcnt lgkmcnt({min(11, 15-s)})")
            c = "0" if s < 2 else vr(104 + 4 * (s & 1))
            a(f"v_mfma_f32_16x16x32_bf16 {vr(104+4*(s&1))}, {vr(128+4*s)}, {ar(4*s)}, {c}")
            if s < 4:
                a(f"ds_read_b128 {vr(128+4*(s+12))}, v{addr} offset:{(s+12)*64}")
            for _ in range(3):
                if fill:
                    a(fill.pop(0))
        assert not fill

    def orole(self):
        a = self.a
        self.sect = "O"
        a(f"""
        s_lshl2_add_u32 s34, {sXCD}, {sW}
        s_lshl_b32 s34, s34, 11
        s_add_u32 s34, s34, {H3B}
        v_lshrrev_b32 v4, 5, v0
        v_bfe_u32 v5, v0, 2, 2
        v_lshl_add_u32 v4, v4, 2, v5
        v_and_b32 v5, 1, v2
        v_lshl_add_u32 v4, v4, 1, v5
        v_and_b32 v5, 3, v0
        v_lshl_add_u32 v4, v4, 2, v5
        v_lshlrev_b32 v16, 4, v4
        v_and_b32 v4, 1, v2
        v_lshlrev_b32 v4, 3, v4
        v_lshrrev_b32 v5, 1, v2
        v_or_b32 v4, v4, v5
        v_lshlrev_b32 v4, 4, v4
        v_xor_b32 v4, v4, v1
        s_lshl_b32 s32, {sW}, 11
        s_add_u32 s32, s32, {XO}
        v_add_u32 v11, s32, v4
        v_xor_b32 v12, 32, v11
        v_and_b32 v4, 3, v0
        v_bfe_u32 v5, v0, 2, 1
        v_lshl_add_u32 v6, v4, 1, v5
        v_lshlrev_b32 v6, 8, v6
        v_xor_b32 v4, v4, v2
        v_lshl_add_u32 v6, v4, 4, v6
        v_lshl_add_u32 v6, v5, 7, v6
        v_bfe_u32 v4, v0, 3, 1
        v_lshl_add_u32 v6, v4, 6, v6
        v_add_u32 v13, {XO}, v6
        v_xor_b32 v14, 128, v13
        v_lshlrev_b32 v5, 5, v5
        v_lshl_add_u32 v15, v2, 3, v5
        v_and_b32 v4, 3, v0
        v_lshl_add_u32 v15, v4, 15, v15
        s_lshl_b32 s35, {sXCD}, 12
        s_lshl2_add_u32 s32, s60, {sW}
        s_lshl_b32 s32, s32, 7
        s_add_u32 s35, s35, s32
        s_add_u32 s35, s35, {H4}
        """)
        self.premask(96, 0x0011001100110011 * ((1 << self.opt.get("r4", 1)) - 1))
        self.poll(f"buffer_load_dwordx4 v[80:83], v16, {WS}, s34 offen sc1\n"
                  f"buffer_load_dwordx4 v[84:87], v16, {WS}, s34 offen offset:1024 sc1", self.sent([80, 84], 4), self.opt.get("dO", 1))
        self.stamp(8)
        a(f"""
        ds_write_b128 v11, v[80:83]
        ds_write_b128 v12, v[84:87] offset:1024
        s_waitcnt lgkmcnt(0)
        s_barrier
        """)
        for sp in range(8):
            a(f"ds_read_b128 {vr(128+4*sp)}, v{13+(sp&1)} offset:{(sp>>1)*2048}")
        for sp in range(8):
            a(f"s_waitcnt lgkmcnt({7-sp})")
            for k in range(2):
                c = "0" if sp == 0 else vr(104 + 4 * k)
                a(f"v_mfma_f32_16x16x32_bf16 {vr(104+4*k)}, {ar(4*(2*sp+k))}, {vr(128+4*sp)}, {c}")
        for r in range(4):
            a(f"v_add_f32_dpp v{112+r}, v{108+r}, v{104+r} row_ror:8 row_mask:0xf bank_mask:0xf")
        self.dpp("v_add_f32", range(112, 116), "quad_perm:[1,0,3,2]")
        self.dpp("v_add_f32", range(112, 116), "quad_perm:[2,3,0,1]")
        a(f"""
        s_mov_b64 exec, s[96:97]
        v_cvt_pk_bf16_f32 v116, v112, v113
        v_cvt_pk_bf16_f32 v117, v114, v115
        buffer_store_dwordx2 v[116:117], v15, {WS}, s35 offen sc1
        """)
        self.stamp(9)
        a("s_branch FIN")

    def selmat(self, esel, on):
        a = self.a
        a(f"""
        v_and_b32 v24, 1, v{esel}
        v_lshlrev_b32 v24, 4, v24
        s_movk_i32 s32, 0x3f80
        v_lshlrev_b32 v24, v24, s32
        v_lshrrev_b32 v25, 1, v{esel}
        v_lshl_or_b32 v25, v{on}, 2, v25
        """)
        for i in range(4):
            a(f"v_cmp_eq_u32 vcc, {i}, v25\nv_cndmask_b32 v{20+i}, 0, v24, vcc")

    def ffn(self):
        a = self.a
        self.sect = "F"
        a(f"""
        s_mov_b32 s32, {YB}
        v_add3_u32 v11, v4, v5, s32
        v_bfe_u32 v4, v0, 2, 2
        v_lshl_add_u32 v5, v2, 3, v4
        v_lshlrev_b32 v5, 10, v5
        v_lshl_add_u32 v5, v4, 4, v5
        v_and_b32 v4, 3, v0
        v_lshl_add_u32 v5, v4, 6, v5
        s_lshl_b32 s33, {sW}, 8
        v_add_u32 v4, s33, v5
        """)
        for tp in range(4):
            if tp:
                a(f"v_xor_b32 v{4+tp}, {16*tp}, v4")
            for th in range(2):
                for s in range(2):
                    for u in range(2):
                        t = 2 * tp + th
                        a(f"ds_read_b64_tr_b16 {ar(64+(t*2+s)*4+2*u, 2)}, v{4+tp} offset:{s*32768 + u*4096 + th*8}")
        self.srd(R2, 4, 2048)
        a(f"""
        v_lshrrev_b32 v4, 5, v0
        v_and_b32 v5, 1, v2
        v_lshl_add_u32 v6, v3, 1, v5
        v_lshlrev_b32 v7, 3, v6
        v_lshl_add_u32 v8, v4, 10, v7
        buffer_load_dwordx2 v[16:17], v8, {R2}, s33 offen
        v_mul_u32_u24 v8, 1056, v4
        s_add_u32 s32, s33, {YB}
        v_add3_u32 v12, v8, v7, s32
        v_lshlrev_b32 v7, 4, v6
        v_lshl_add_u32 v13, v4, 13, v7
        s_lshl_b32 s34, {sW}, 9
        s_add_u32 s34, s34, {M2O}
        s_add_u32 s35, s34, 4096
        v_and_b32 v6, 31, v0
        v_lshlrev_b32 v6, 3, v6
        v_lshl_add_u32 v6, v4, 10, v6
        s_add_u32 s32, s33, {ST}
        v_add_u32 v14, s32, v6
        v_lshlrev_b32 v6, 4, v3
        v_lshl_add_u32 v6, v4, 8, v6
        v_lshl_add_u32 v6, v5, 10, v6
        v_add_u32 v15, {ST}, v6
        v_lshrrev_b32 v6, 1, v3
        v_lshl_add_u32 v6, v4, 5, v6
        v_lshl_add_u32 v6, v6, 2, v5
        v_and_b32 v7, 1, v0
        v_lshl_add_u32 v6, v6, 1, v7
        v_lshlrev_b32 v26, 4, v6
        s_and_b32 s62, {sXCD}, {self.opt.get("r4", 1) - 1}
        s_lshl_b32 s62, s62, 13
        s_add_u32 s62, s62, s33
        s_lshl_b32 s62, s62, 2
        s_add_u32 s62, s62, {H4}
        s_add_u32 s63, s62, 8192
        s_add_u32 s0, s62, 16384
        s_add_u32 s1, s62, 24576
        v_mul_u32_u24 v6, 160, v5
        v_lshl_add_u32 v6, v3, 1, v6
        s_lshl_b32 s32, {sW}, 5
        s_add_u32 s32, s32, {AB}
        v_add_u32 v27, s32, v6
        v_bfe_u32 v6, v0, 2, 1
        v_mul_u32_u24 v6, 160, v6
        v_lshl_add_u32 v6, v2, 4, v6
        v_add_u32 v28, {AB}, v6
        v_bfe_u32 v6, v0, 3, 1
        v_mul_u32_u24 v7, 7168, v6
        v_lshl_add_u32 v7, v5, 7, v7
        v_and_b32 v8, 7, v0
        v_lshl_add_u32 v29, v8, 4, v7
        v_xor_b32 v6, v6, v5
        s_mul_i32 s2, {sW}, 14336
        s_lshl_b32 s32, s61, 8
        s_add_u32 s2, s2, s32
        s_add_u32 s2, s2, {H5}
        """)
        self.selmat(8, 6)
        self.poll(f"buffer_load_dwordx4 v[32:35], v13, {WS}, s34 offen sc1\n"
                  f"buffer_load_dwordx4 v[36:39], v13, {WS}, s34 offen offset:2048 sc1\n"
                  f"buffer_load_dwordx4 v[40:43], v13, {WS}, s35 offen sc1", self.sent(range(32, 44), 4))
        self.stamp(8)
        for r in range(4):
            a(f"v_add_f32 v{40+r}, 1.0, v{40+r}")
        a(f"""
        v_cvt_pk_bf16_f32 v4, v40, v41
        v_cvt_pk_bf16_f32 v5, v42, v43
        v_cvt_pk_bf16_f32 v6, v36, v37
        v_cvt_pk_bf16_f32 v7, v38, v39
        ds_write_b64 v12, v[4:5] offset:2112
        ds_write_b64 v12, v[6:7] offset:4224
        v_lshlrev_b32 v40, 16, v4
        v_and_b32 v41, 0xffff0000, v4
        v_lshlrev_b32 v42, 16, v5
        v_and_b32 v43, 0xffff0000, v5
        v_lshlrev_b32 v36, 16, v16
        v_and_b32 v37, 0xffff0000, v16
        v_lshlrev_b32 v38, 16, v17
        v_and_b32 v39, 0xffff0000, v17
        """)
        so = ["s62", "s63", "s0", "s1"]
        self.poll("\n".join(f"buffer_load_dwordx4 {vr(48+4*j)}, v26, {WS}, {so[j]} offen sc1" for j in range(4)),
                  self.sent(range(48, 64, 2), 4), self.opt.get("dF", 1))
        self.stamp(9)
        for j in range(4):
            c = "0" if j == 0 else "v[44:47]"
            a(f"v_mfma_f32_16x16x32_bf16 v[44:47], v[20:23], {vr(48+4*j)}, {c}")
        a(f"""
        v_pk_fma_f32 v[36:37], v[32:33], v[44:45], v[36:37]
        v_pk_fma_f32 v[38:39], v[34:35], v[46:47], v[38:39]
        v_pk_mul_f32 v[40:41], v[40:41], v[36:37]
        v_pk_mul_f32 v[42:43], v[42:43], v[38:39]
        v_cvt_pk_bf16_f32 v4, v40, v41
        v_cvt_pk_bf16_f32 v5, v42, v43
        ds_write_b64 v12, v[4:5]
        v_pk_add_f32 v[6:7], v[36:37], v[38:39]
        v_pk_mul_f32 v[8:9], v[36:37], v[36:37]
        v_pk_fma_f32 v[8:9], v[38:39], v[38:39], v[8:9]
        v_add_f32 v6, v6, v7
        v_add_f32 v7, v8, v9
        ds_write_b64 v14, v[6:7]
        s_waitcnt lgkmcnt(0)
        s_barrier
        ds_read_b128 v[32:35], v15
        ds_read_b128 v[36:39], v15 offset:512
        """)
        d = lambda c: [f"v_add_f32_dpp v{r}, v{r}, v{r} {c} row_mask:0xf bank_mask:0xf" for r in (32, 33)] + ["s_nop 0"]
        fill = ["v_pk_add_f32 v[32:33], v[32:33], v[34:35]", "v_pk_add_f32 v[36:37], v[36:37], v[38:39]",
                "v_pk_add_f32 v[32:33], v[32:33], v[36:37]"]
        for c in ("quad_perm:[1,0,3,2]", "quad_perm:[2,3,0,1]", "row_half_mirror", "row_mirror"):
            fill += d(c)
        fill += ["v_mov_b32 v34, v32", "v_mov_b32 v35, v33", "s_nop 0",
                 "v_permlane32_swap_b32 v32, v34", "v_permlane32_swap_b32 v33, v35", "s_nop 0",
                 "v_pk_add_f32 v[32:33], v[32:33], v[34:35]", "v_mov_b32 v34, 0x3727c5ac",
                 "v_mul_f32 v32, 0x3b000000, v32", "v_fmac_f32 v34, 0x3b000000, v33",
                 "v_fma_f32 v34, -v32, v32, v34", "v_rsq_f32 v34, v34"]
        self.actgemm(11, fill)
        a(f"""
        s_mov_b32 exec_hi, 0
        v_pk_add_f32 v[104:105], v[104:105], v[108:109]
        v_add_f32 v106, v106, v110
        v_fma_f32 v104, -v32, v105, v104
        v_fma_f32 v104, v34, v104, v106
        v_max_f32 v104, 0, v104
        v_cvt_pk_bf16_f32 v104, v104, v104
        ds_write_b16 v27, v104
        s_mov_b32 exec_hi, -1
        s_waitcnt lgkmcnt(0)
        s_barrier
        ds_read_b128 v[32:35], v28
        ds_read_b128 v[36:39], v28 offset:64
        """)
        self.stamp(10)
        for s in range(2):
            a(f"s_waitcnt lgkmcnt({1-s})")
            for t in range(8):
                c = "0" if s == 0 else vr(128 + 4 * t)
                a(f"v_mfma_f32_16x16x32_bf16 {vr(128+4*t)}, {vr(32+4*s)}, {ar(64+(t*2+s)*4)}, {c}")
        a("s_mov_b32 exec_hi, 0")
        for i in range(4):
            a(f"v_cvt_pk_bf16_f32 v{40+i}, v{128+8*i}, v{132+8*i}")
        a(f"buffer_store_dwordx4 v[40:43], v29, {WS}, s2 offen sc1")
        self.stamp(11)
        a("s_branch FIN")

    def m2(self):
        a = self.a
        self.sect = "M"
        a(f"""
        v_add_u32 v11, {SL}, v5
        v_lshlrev_b32 v4, 2, v3
        v_lshl_add_u32 v12, v2, 13, v4
        s_lshl2_add_u32 s34, s61, {sW}
        s_lshl_b32 s34, s34, 6
        s_add_u32 s34, s34, {M2O}
        s_waitcnt lgkmcnt(0)
        """)
        self.actgemm(11)
        a(f"""
        s_mov_b32 exec_hi, 0
        v_add_f32 v104, v104, v108
        v_cvt_pk_bf16_f32 v104, v104, v104
        v_lshlrev_b32 v104, 16, v104
        buffer_store_dword v104, v12, {WS}, s34 offen sc1
        s_mov_b32 exec_hi, -1
        """)
        self.stamp(8)
        a(f"""
        s_cmp_lt_u32 s61, 24
        s_cbranch_scc1 FIN
        s_cmp_lg_u32 {sW}, 0
        s_cbranch_scc1 FIN
        s_sub_u32 s61, s61, 24
        """)
        self.srd(R2, 4, 2048)
        self.srd(R3, 26, 2048)
        a(f"""
        v_bfe_u32 v4, v0, 3, 1
        v_and_b32 v5, 7, v0
        v_lshl_add_u32 v6, v5, 2, v2
        v_lshlrev_b32 v7, 2, v6
        v_lshl_add_u32 v7, v4, 10, v7
        s_lshl_b32 s33, s61, 7
        buffer_load_dword v16, v7, {R2}, s33 offen
        v_lshlrev_b32 v7, 3, v6
        v_lshl_add_u32 v11, v4, 13, v7
        v_lshl_add_u32 v7, v4, 8, v7
        v_add_u32 v12, {XF}, v7
        v_bfe_u32 v6, v0, 2, 1
        v_lshl_add_u32 v6, v6, 2, v2
        v_and_b32 v7, 3, v0
        v_lshl_add_u32 v6, v6, 3, v7
        v_lshlrev_b32 v8, 2, v6
        v_lshl_add_u32 v13, v4, 13, v8
        v_lshl_add_u32 v8, v4, 8, v8
        v_add_u32 v14, {XF}, v8
        v_lshlrev_b32 v8, 1, v6
        v_lshl_add_u32 v15, v4, 10, v8
        v_lshrrev_b32 v8, 1, v5
        v_lshl_add_u32 v8, v2, 5, v8
        v_lshl_add_u32 v8, v8, 2, v4
        v_and_b32 v26, 1, v0
        v_lshl_add_u32 v8, v8, 1, v26
        v_lshlrev_b32 v26, 4, v8
        s_lshl_b32 s34, s61, 8
        s_add_u32 s34, s34, {M2O}
        s_add_u32 s35, s34, 6144
        s_and_b32 s62, {sXCD}, {self.opt.get("r4", 1) - 1}
        s_lshl_b32 s62, s62, 13
        s_add_u32 s62, s62, s33
        s_lshl_b32 s62, s62, 2
        s_add_u32 s62, s62, {H4}
        s_add_u32 s63, s62, 16384
        s_mul_i32 s0, s61, 7168
        s_add_u32 s0, s0, {H5}
        s_add_u32 s1, s0, 4096
        v_bfe_u32 v8, v0, 2, 2
        v_and_b32 v6, 1, v0
        v_lshl_add_u32 v8, v8, 1, v6
        v_bfe_u32 v6, v0, 1, 1
        """)
        self.selmat(8, 6)
        self.poll(f"buffer_load_dwordx2 v[32:33], v11, {WS}, s34 offen sc1\n"
                  f"buffer_load_dword v34, v13, {WS}, s35 offen sc1\n"
                  f"buffer_load_dword v35, v13, {WS}, s35 offen offset:16 sc1", self.sent(range(32, 36), 4))
        a("v_lshlrev_b32 v36, 16, v16\nv_and_b32 v37, 0xffff0000, v16")
        self.poll(f"buffer_load_dwordx4 v[48:51], v26, {WS}, s62 offen sc1\n"
                  f"buffer_load_dwordx4 v[52:55], v26, {WS}, s63 offen sc1", self.sent(range(48, 56, 2), 4))
        self.stamp(9)
        a(f"""
        v_mfma_f32_16x16x32_bf16 v[44:47], v[20:23], v[48:51], 0
        v_mfma_f32_16x16x32_bf16 v[44:47], v[20:23], v[52:55], v[44:47]
        v_pk_fma_f32 v[36:37], v[32:33], v[44:45], v[36:37]
        ds_write_b64 v12, v[36:37]
        s_waitcnt lgkmcnt(0)
        ds_read_b32 v36, v14
        ds_read_b32 v37, v14 offset:16
        s_cmp_lg_u32 s61, 0
        s_cbranch_scc1 W_NOGEN
        s_mov_b64 exec, 1
        buffer_store_dword v118, v0, {WS}, 0 offen sc1
        s_mov_b64 exec, -1
        W_NOGEN:
        """)
        self.poll("\n".join(f"buffer_load_dwordx4 {vr(48+4*j)}, v1, {WS}, {'s0' if j < 4 else 's1'} offen offset:{(j&3)*1024} sc1" for j in range(7)),
                  self.sent(range(48, 76), 4), self.opt.get("d5", 3))
        self.stamp(10)
        for j in range(7):
            c = "0" if j < 2 else vr(40 + 4 * (j & 1))
            a(f"v_mfma_f32_16x16x32_bf16 {vr(40+4*(j&1))}, v[20:23], {vr(48+4*j)}, {c}")
        a(f"""
        s_waitcnt lgkmcnt(0)
        v_pk_add_f32 v[40:41], v[40:41], v[44:45]
        v_pk_fma_f32 v[36:37], v[34:35], v[40:41], v[36:37]
        v_cvt_pk_bf16_f32 v36, v36, v37
        buffer_store_short v36, v15, {R3}, s33 offen
        buffer_store_short_d16_hi v36, v15, {R3}, s33 offen offset:8
        """)
        self.stamp(11)

    def fin(self):
        a = self.a
        a("FIN:")
        if self.diag:
            a("s_mov_b64 exec, -1\ns_waitcnt vmcnt(0)")
            self.stamp(15)
            a(f"""
            s_waitcnt lgkmcnt(0)
            s_lshl2_add_u32 s32, s101, {sW}
            s_lshl_b32 s32, s32, 6
            s_add_u32 s32, s32, {STAMP}
            """)
            for i in range(16):
                a(f"v_mov_b32 v{16+i}, s{64+2*i}")
            a("s_mov_b64 exec, 1")
            for i in range(4):
                a(f"buffer_store_dwordx4 {vr(16+4*i)}, v0, {WS}, s32 offen offset:{16*i}")
        if self.probe:
            wg = self.opt.get("probewg")
            if wg is not None:
                a(f"s_cmp_lg_u32 s101, {wg}\ns_cbranch_scc1 EXIT")
            a(f"""
            s_waitcnt lgkmcnt(0)
            s_cmp_eq_u64 s[64:65], 0
            s_cbranch_scc1 EXIT
            s_add_u32 s32, s64, {self.opt.get("spin", 4000)}
            PROBE:
            s_memrealtime s[34:35]
            s_waitcnt lgkmcnt(0)
            s_sub_u32 s33, s34, s32
            s_cmp_lt_i32 s33, 0
            s_cbranch_scc1 PROBE
            """)
        a("EXIT:")

    def build(self):
        if self.diag:
            self.a("s_mov_b32 s101, s2")
        self.entry()
        self.arole()
        self.wrole()
        self.fin()
        return wrap(pad(self.a.text()), 256, 256, 163840)


if __name__ == "__main__":
    out = sys.argv[1]
    opts = dict(kv.split("=") for kv in sys.argv[2:])
    opts = {k: (int(v) if v.lstrip('-').isdigit() else v) for k, v in opts.items()}
    open(out, "w").write(G(**opts).build())
```

```python
import sys
from asmlib import Asm, wrap, KNAME
from hazard import pad

FLAG, FLAG2, HQ, H1 = 0x10000, 0x18000, 0x20000, 0xC0000
SB = 0x60000
H4, H2, H3B, M2O, H5 = SB, SB + 0x20000, SB + 0x30000, SB + 0x44000, SB + 0x50000
ML = 0x500000
GATE = 0x520000
H3 = 0x100000
STAMP = 200 << 20
TAGC = 0x9E3779B9
NPOLL = 20000

Q = 131072
SIL = Q + 8192
PB = Q
MX = Q + 8192
XU = 32768
WQ, WK, W2R = 0, 32768, 65536
X1, X2 = 131072, 135168
XO = 139264
YB = 139264
ST = 149504
AB = 151552
SL = 139264
XF = 152064

WS = "s[36:39]"
R1, R2, R3, R4 = "s[40:43]", "s[44:47]", "s[48:51]", "s[52:55]"
sW, sXCD, sID, sTAG, sCNT = "s3", "s56", "s58", "s59", "s57"
LOG2E = 0x3FB8AA3B
QSCALE = 0x3E0293EE


def vr(b, n=4):
    return f"v[{b}:{b+n-1}]"


def ar(b, n=4):
    return f"a[{b}:{b+n-1}]"


class G:
    def __init__(self, diag=False, **opt):
        self.a = Asm()
        self.diag = diag
        self.opt = opt
        self.sect = "E"
        p = opt.get("probe")
        self.probe = (p[0], int(p[1:])) if p else None

    def stamp(self, i):
        if self.diag:
            self.a(f"s_memrealtime s[{64+2*i}:{65+2*i}]")
        elif self.probe == (self.sect, i):
            self.a("s_memrealtime s[64:65]")

    def srd(self, r, ptr, size):
        b = int(r[2:4])
        self.a(f"s_mov_b64 s[{b}:{b+1}], s[{ptr}:{ptr+1}]\ns_mov_b32 s{b+2}, {size}")

    def execmask(self, m):
        lo, hi = m & 0xFFFFFFFF, m >> 32
        self.a(f"s_mov_b32 exec_lo, 0x{lo:x}\ns_mov_b32 exec_hi, 0x{hi:x}")

    def premask(self, s, m):
        lo, hi = m & 0xFFFFFFFF, m >> 32
        self.a(f"s_mov_b32 s{s}, 0x{lo:x}\ns_mov_b32 s{s+1}, 0x{hi:x}")

    def poll(self, loads, check, depth=1):
        a = self.a
        lp, ok = a.label("POLL"), a.label("POK")
        for _ in range(depth - 1):
            a(loads)
        a(f"s_movk_i32 {sCNT}, {NPOLL}\n{lp}:")
        a(loads)
        a(f"s_waitcnt vmcnt({(depth - 1) * len(loads.splitlines())})")
        a(check)
        a(f"""
        s_cbranch_vccz {ok}
        s_sub_u32 {sCNT}, {sCNT}, 1
        s_cbranch_scc0 {lp}
        {ok}:
        """)

    def mchecks(self, items, m0):
        s = []
        for j, (ld, chk) in enumerate(items):
            s.append(chk.replace("vcc", f"s[{m0+2*j}:{m0+2*j+1}]"))
        m = [f"s[{m0+2*j}:{m0+2*j+1}]" for j in range(len(items))]
        s.append(f"s_or_b64 vcc, {m[0]}, {m[-1]}")
        for x in m[1:-1]:
            s.append(f"s_or_b64 vcc, vcc, {x}")
        return "\n".join(s)

    def mloads(self, items, m0):
        s = []
        for j, (ld, chk) in enumerate(items):
            s.append(f"s_mov_b64 exec, s[{m0+2*j}:{m0+2*j+1}]\n{ld}")
        s.append("s_mov_b64 exec, -1")
        return "\n".join(s)

    def mpoll(self, items, m0):
        a = self.a
        lp, ck, ok = a.label("MPL"), a.label("MPC"), a.label("MPK")
        for ld, chk in items:
            a(ld)
        a(f"""
        s_movk_i32 {sCNT}, {NPOLL}
        s_branch {ck}
        {lp}:
        s_sub_u32 {sCNT}, {sCNT}, 1
        s_cbranch_scc1 {ok}
        {self.mloads(items, m0)}
        {ck}:
        s_waitcnt vmcnt(0)
        {self.mchecks(items, m0)}
        s_cbranch_scc1 {lp}
        {ok}:
        """)

    @staticmethod
    def sent(regs, t):
        regs = list(regs)
        if len(regs) == 1:
            return f"v_cmp_eq_u32 vcc, -1, v{regs[0]}"
        s = []
        if len(regs) % 2 == 0:
            s.append(f"v_max_u32 v{t}, v{regs[0]}, v{regs[1]}")
            regs = regs[2:]
        else:
            s.append(f"v_max3_u32 v{t}, v{regs[0]}, v{regs[1]}, v{regs[2]}")
            regs = regs[3:]
        while regs:
            s.append(f"v_max3_u32 v{t}, v{t}, v{regs[0]}, v{regs[1]}")
            regs = regs[2:]
        s.append(f"v_cmp_eq_u32 vcc, -1, v{t}")
        return "\n".join(s)

    def dpp(self, op, regs, ctrl):
        for r in regs:
            self.a(f"{op}_dpp v{r}, v{r}, v{r} {ctrl} row_mask:0xf bank_mask:0xf")

    def swapred(self, op, regs, tmps, which):
        a = self.a
        for r, t in zip(regs, tmps):
            a(f"v_mov_b32 v{t}, v{r}")
        for r, t in zip(regs, tmps):
            a(f"v_permlane{which}_swap_b32 v{r}, v{t}")
        for r, t in zip(regs, tmps):
            a(f"{op} v{r}, v{r}, v{t}")

    def silu(self, pairs, t):
        a = self.a
        n = len(pairs)
        x = [t + i for i in range(2 * n)]
        e = [t + 2 * n + i for i in range(2 * n)]
        for i, p in enumerate(pairs):
            a(f"v_lshlrev_b32 v{x[2*i]}, 16, v{p}\nv_and_b32 v{x[2*i+1]}, 0xffff0000, v{p}")
        for i in range(2 * n):
            a(f"v_mul_f32 v{e[i]}, 0x{LOG2E | 0x80000000:x}, v{x[i]}")
        for i in range(2 * n):
            a(f"v_exp_f32 v{e[i]}, v{e[i]}")
        for i in range(2 * n):
            a(f"v_add_f32 v{e[i]}, 1.0, v{e[i]}")
        for i in range(2 * n):
            a(f"v_rcp_f32 v{e[i]}, v{e[i]}")
        for i in range(2 * n):
            a(f"v_mul_f32 v{x[i]}, v{x[i]}, v{e[i]}")
        for i, p in enumerate(pairs):
            a(f"v_cvt_pk_bf16_f32 v{p}, v{x[2*i]}, v{x[2*i+1]}")

    def entry(self):
        a = self.a
        if self.diag:
            for i in range(1, 16):
                a(f"s_mov_b64 s[{64+2*i}:{65+2*i}], 0")
        if self.probe:
            a("s_mov_b64 s[64:65], 0\ns_mov_b32 s101, s2")
        self.stamp(0)
        a(f"""
        s_cmp_ge_u32 s2, 256
        s_cbranch_scc1 EXIT
        s_load_dwordx16 s[4:19], s[0:1], 0
        s_load_dwordx8 s[20:27], s[0:1], 64
        s_load_dwordx4 s[28:31], s[0:1], 96
        """)
        cwm = self.opt.get("cwm", 2)
        if cwm:
            a(f"""
            s_and_b32 s34, s2, {(0x100 - 16 * cwm) & 0xf0 | 8}
            s_cmp_lg_u32 s34, {self.opt.get("cwr", 8)}
            s_cbranch_scc1 E_NOWARM
            s_getpc_b64 s[32:33]
            E_PC:
            v_lshlrev_b32 v1, 6, v0
            v_min_u32 v1, EXIT-E_PC, v1
            global_load_dword v255, v1, s[32:33]
            E_NOWARM:
            """)
        a(f"""
        v_lshrrev_b32 v1, 6, v0
        v_and_b32 v0, 63, v0
        v_readfirstlane_b32 {sW}, v1
        s_and_b32 {sXCD}, s2, 7
        {"s_bfe_u32 s57, s2, 0x40003" if self.opt.get("hi") else "s_lshr_b32 s57, s2, 4"}
        s_lshl4_add_u32 {sID}, {sXCD}, s57
        v_lshlrev_b32 v1, 4, v0
        v_lshrrev_b32 v2, 4, v0
        v_and_b32 v3, 15, v0
        s_mov_b32 s39, 0x20000
        s_mov_b32 s43, 0x20000
        s_mov_b32 s47, 0x20000
        s_mov_b32 s51, 0x20000
        s_mov_b32 s55, 0x20000
        s_bitcmp1_b32 s2, {7 if self.opt.get('hi') else 3}
        s_cbranch_scc1 WROLE
        """)

    def arole(self):
        a = self.a
        self.sect = "A"
        a(f"""
        s_and_b32 s60, {sID}, 15
        s_lshr_b32 s61, {sID}, 4
        v_lshlrev_b32 v4, 4, v3
        v_lshl_or_b32 v68, v2, 19, v4
        v_mov_b32 v64, -1
        v_mov_b32 v65, -1
        v_mov_b32 v66, -1
        v_mov_b32 v67, -1
        s_lshl_b32 s62, {sW}, 15
        s_lshl_b32 s63, {sID}, 8
        s_add_u32 s62, s62, s63
        s_add_u32 s62, s62, {H3}
        s_cmp_ge_u32 {sW}, 2
        s_cbranch_scc1 A_W23
        v_lshrrev_b32 v5, 3, v0
        v_and_b32 v6, 7, v0
        v_lshlrev_b32 v7, 1, v2
        v_xor_b32 v7, v6, v7
        v_mul_u32_u24 v8, 6144, v5
        v_lshrrev_b32 v9, 2, v7
        v_lshl_add_u32 v8, v9, 10, v8
        v_and_b32 v9, 3, v7
        v_lshl_add_u32 v8, v9, 4, v8
        v_and_b32 v10, 1, v5
        v_lshlrev_b32 v10, 10, v10
        v_lshl_add_u32 v11, v2, 3, v6
        v_lshl_add_u32 v11, v11, 5, v10
        v_lshl_add_u32 v12, v2, 3, v10
        s_lshl1_add_u32 s32, s61, {sW}
        s_mul_i32 s32, s32, {32 * 6144}
        s_lshl_b32 s33, s60, 6
        s_add_u32 s32, s32, s33
        s_lshl_b32 s34, {sW}, 5
        s_add_u32 s33, s33, s34
        s_lshl_b32 s34, {sW}, 12
        s_add_u32 m0, s34, {Q}
        s_waitcnt lgkmcnt(0)
        """)
        self.srd(R2, 4, 2048)
        self.srd(R1, 24, 512 * 6144)
        a(f"""
        buffer_load_dwordx4 v[16:19], v11, {R2}, 0 offen
        buffer_load_dwordx4 v[20:23], v11, {R2}, 0 offen offset:16
        buffer_load_dwordx2 v[24:25], v12, {R2}, s33 offen
        """)
        for j in range(4):
            a(f"buffer_load_dwordx4 v8, {R1}, s32 offen offset:{1024*j} nt lds")
            if j < 3:
                a(f"s_add_u32 s32, s32, {8 * 6144 - 1024}")
        a(f"s_load_dword {sTAG}, s[30:31], 0")
        self.srd(WS, 30, 0x10000000)
        a(f"""
        v_lshrrev_b32 v13, 2, v0
        v_lshlrev_b32 v13, 7, v13
        v_and_b32 v14, 3, v5
        v_xor_b32 v14, {sW}, v14
        v_lshl_add_u32 v13, v14, 5, v13
        v_and_b32 v14, 3, v0
        v_lshl_add_u32 v13, v14, 3, v13
        v_add_u32 v13, {Q}, v13
        v_xor_b32 v14, 64, v13
        v_lshrrev_b32 v15, 3, v10
        v_lshl_add_u32 v15, v2, 4, v15
        v_add_u32 v15, {SIL}, v15
        s_cmp_eq_u32 s61, 0
        s_cselect_b32 s32, 1.0, 0
        v_mov_b32 v56, s32
        v_mov_b32 v57, s32
        v_mov_b32 v58, s32
        v_mov_b32 v59, s32
        v_lshlrev_b32 v5, 4, v5
        v_lshl_add_u32 v5, v6, 15, v5
        s_lshl_b32 s32, s60, 11
        s_lshl_b32 s33, s61, 8
        s_add_u32 s32, s32, s33
        s_lshl_b32 s33, {sW}, 7
        s_add_u32 s32, s32, s33
        s_add_u32 s32, s32, {H1}
        s_mov_b32 s33, 0x3f803f80
        v_mov_b32 v26, 0
        v_mov_b32 v27, 0
        """)
        r1 = self.opt.get("r1", 1)
        self.premask(96, 0x0101010101010101 * ((1 << r1) - 1))
        nc = 0
        a(f"s_waitcnt vmcnt({5+nc})")
        for i in range(8):
            a(f"v_dot2c_f32_bf16 v26, s33, v{16+i}\nv_dot2c_f32_bf16 v27, v{16+i}, v{16+i}")
        self.dpp("v_add_f32", [26, 27], "quad_perm:[1,0,3,2]")
        self.dpp("v_add_f32", [26, 27], "quad_perm:[2,3,0,1]")
        self.dpp("v_add_f32", [26, 27], "row_half_mirror")
        self.swapred("v_add_f32", [26, 27], [16, 17], 16)
        self.swapred("v_add_f32", [26, 27], [16, 17], 32)
        a(f"""
        v_mul_f32 v26, 0x3b000000, v26
        v_mov_b32 v16, 0x3727c5ac
        v_fmac_f32 v16, 0x3b000000, v27
        v_fma_f32 v16, -v26, v26, v16
        v_rsq_f32 v16, v16
        s_waitcnt vmcnt({4+nc})
        v_lshlrev_b32 v20, 16, v24
        v_and_b32 v21, 0xffff0000, v24
        v_lshlrev_b32 v22, 16, v25
        v_and_b32 v23, 0xffff0000, v25
        """)
        for i in range(4):
            a(f"v_sub_f32 v{20+i}, v{20+i}, v26")
        for i in range(4):
            a(f"v_mul_f32 v{20+i}, v{20+i}, v16")
        a(f"s_waitcnt vmcnt({nc}) lgkmcnt(0)")
        self.stamp(1)
        a(f"""
        s_barrier
        ds_read_b128 v[44:47], v15
        """)
        for s in range(2):
            for blk in range(2):
                for u in range(2):
                    a(f"ds_read_b64_tr_b16 {vr(28 + (s*2+blk)*4 + 2*u, 2)}, v{13+blk} offset:{s*4096 + u*2048}")
            if s == 0:
                a("ds_read_b128 v[48:51], v15 offset:64")
        a(f"""
        s_add_u32 {sTAG}, {sTAG}, 0x{TAGC:x}
        v_mov_b32 v62, {sTAG}
        v_mov_b32 v63, {sTAG}
        s_waitcnt lgkmcnt(7)
        v_mfma_f32_16x16x32_bf16 v[52:55], v[28:31], v[44:47], 0
        s_waitcnt lgkmcnt(5)
        v_mfma_f32_16x16x32_bf16 v[56:59], v[32:35], v[44:47], v[56:59]
        s_waitcnt lgkmcnt(2)
        v_mfma_f32_16x16x32_bf16 v[52:55], v[36:39], v[48:51], v[52:55]
        s_waitcnt lgkmcnt(0)
        v_mfma_f32_16x16x32_bf16 v[56:59], v[40:43], v[48:51], v[56:59]
        s_mov_b64 exec, s[96:97]
        v_pk_fma_f32 v[52:53], v[20:21], v[56:57], v[52:53]
        v_pk_fma_f32 v[54:55], v[22:23], v[58:59], v[54:55]
        v_cvt_pk_bf16_f32 v60, v52, v53
        v_cvt_pk_bf16_f32 v61, v54, v55
        buffer_store_dwordx4 v[60:63], v5, {WS}, s32 offen sc1
        s_mov_b64 exec, -1
        """)
        self.stamp(2)
        a(f"""
        s_branch A_STREAM
        A_W23:
        s_cmp_eq_u32 {sW}, 3
        s_cbranch_scc1 A_W3
        v_lshrrev_b32 v5, 5, v0
        v_and_b32 v6, 31, v0
        v_lshlrev_b32 v7, 2, v6
        v_lshl_add_u32 v7, v5, 10, v7
        s_lshl_b32 s32, s61, 7
        s_waitcnt lgkmcnt(0)
        """)
        self.srd(R3, 22, 2048)
        a(f"""
        buffer_load_dword v16, v7, {R3}, s32 offen
        s_load_dword {sTAG}, s[30:31], 0
        """)
        self.srd(WS, 30, 0x10000000)
        a(f"""
        v_lshlrev_b32 v8, 6, v2
        v_bfe_u32 v9, v0, 1, 2
        v_lshl_add_u32 v8, v9, 4, v8
        v_and_b32 v9, 8, v0
        v_add_u32 v8, v8, v9
        v_and_b32 v9, 1, v0
        v_lshl_add_u32 v8, v9, 2, v8
        v_add_u32 v8, {SIL}, v8
        """)
        early = self.opt.get("early", 0)
        if early:
            self.stream(0, early)
        a(f"s_waitcnt vmcnt({early})")
        self.silu([16], 20)
        a(f"""
        ds_write_b32 v8, v16
        s_branch A_W23B
        A_W3:
        s_mul_i32 s32, {sID}, 3072
        s_add_u32 s32, s32, {SB}
        s_waitcnt lgkmcnt(0)
        """)
        self.srd(WS, 30, 0x10000000)
        a(f"""
        buffer_store_dwordx4 v[64:67], v1, {WS}, s32 offen sc1
        buffer_store_dwordx4 v[64:67], v1, {WS}, s32 offen offset:1024 sc1
        buffer_store_dwordx4 v[64:67], v1, {WS}, s32 offen offset:2048 sc1
        s_load_dword {sTAG}, s[30:31], 0
        """)
        if early:
            self.stream(0, early)
        a(f"""
        s_waitcnt vmcnt({early})
        A_W23B:
        s_waitcnt lgkmcnt(0)
        """)
        self.stamp(1)
        a(f"""
        s_barrier
        s_add_u32 {sTAG}, {sTAG}, 0x{TAGC:x}
        {"s_branch A_STREAM2" if early else ""}
        A_STREAM:
        """)
        self.stream(0, 32, early)
        self.stamp(3)
        self.attn()

    def stream(self, k0, k1, early=0):
        a = self.a
        if k0 == 0:
            self.srd(R4, 6, 1 << 24)
            a(f"""
            s_lshl_b32 s32, {sID}, 17
            s_lshl_b32 s33, {sW}, 15
            s_add_u32 s32, s32, s33
            """)
        fk = lambda k: ((k & 7) << 1) | ((k >> 3) & 1)
        for k in range(k0, k1):
            if early and k == early:
                a("A_STREAM2:")
            if k % 4 == 0:
                a(f"s_add_u32 m0, s33, {k*1024}")
            if k == 16:
                a("s_add_u32 s32, s32, 16384")
            if k < 16:
                a(f"v_xor_b32 v{70+k}, {fk(k)*16 + (k & ~3)*1024}, v1")
            thr = self.opt.get("thr", 0)
            if thr and k >= thr:
                a(f"s_waitcnt vmcnt({thr-1})")
            if k < self.opt.get("nstream", 32):
                a(f"buffer_load_dwordx4 v{70+(k&15)}, {R4}, s32 offen offset:{(k&3)*1024} nt lds")

    def attn(self):
        a = self.a
        self.srd(R1, 12, 1 << 22)
        a(f"""
        v_and_b32 v4, 31, v0
        v_lshrrev_b32 v5, 5, v0
        v_and_b32 v6, 7, v0
        v_bfe_u32 v7, v0, 3, 1
        v_lshl_or_b32 v6, v6, 1, v7
        v_xor_b32 v6, v6, v5
        v_lshlrev_b32 v6, 4, v6
        v_lshl_add_u32 v6, v4, 10, v6
        v_add_u32 v69, s33, v6
        v_xor_b32 v6, v3, v5
        v_lshlrev_b32 v6, 4, v6
        v_lshl_add_u32 v6, v4, 8, v6
        v_add_u32 v70, {Q}, v6
        """)
        for i in range(1, 8):
            a(f"v_xor_b32 v{70+i}, {32*i}, v70")
        a(f"""
        v_bfe_u32 v6, v0, 2, 3
        v_lshl_add_u32 v7, v5, 4, v6
        v_lshlrev_b32 v7, 10, v7
        v_lshl_add_u32 v7, v6, 5, v7
        v_and_b32 v6, 3, v0
        v_lshl_add_u32 v7, v6, 3, v7
        s_lshl_b32 s32, {sW}, 8
        v_add_u32 v78, s32, v7
        v_xor_b32 v6, v3, v2
        v_lshlrev_b32 v6, 4, v6
        v_lshl_add_u32 v124, v2, 8, v6
        v_xor_b32 v125, 64, v124
        v_xor_b32 v126, 128, v124
        v_xor_b32 v127, 192, v124
        v_lshlrev_b32 v6, 4, v3
        v_lshl_add_u32 v82, v2, 13, v6
        s_lshl_b32 s32, {sW}, 7
        s_and_b32 s32, s32, 128
        v_xor_b32 v82, s32, v82
        v_xor_b32 v12, 64, v82
        v_lshlrev_b32 v83, 2, v4
        v_add_u32 v83, {FLAG2 - FLAG}, v83
        s_lshl_b32 s32, {sW}, 2
        s_add_u32 s32, s32, {MX}
        v_lshlrev_b32 v6, 4, v4
        v_add_u32 v8, s32, v6
        v_add_u32 v9, {MX}, v6
        s_lshl_b32 s32, {sW}, 11
        s_add_u32 s32, s32, {PB}
        v_add_u32 v10, s32, v1
        v_lshlrev_b32 v6, 4, v3
        v_lshl_add_u32 v6, v2, 9, v6
        v_add_u32 v11, {PB}, v6
        s_lshr_b32 s60, {sID}, 6
        s_lshl2_add_u32 s60, s60, {sW}
        s_lshl_b32 s60, s60, 13
        s_add_u32 s60, s60, {H2}
        s_and_b32 s63, {sID}, 3
        s_lshl2_add_u32 s63, s63, {sW}
        s_lshl_b32 s63, s63, 18
        s_lshr_b32 s32, {sID}, 2
        s_lshl_b32 s32, s32, 8
        s_add_u32 s63, s63, s32
        s_lshr_b32 s61, {sID}, {7 - self.opt.get("rf", 5)}
        s_lshl2_add_u32 s61, s61, {sW}
        s_lshl_b32 s61, s61, 7
        s_add_u32 s61, s61, {FLAG}
        s_add_u32 s2, s61, 64
        s_mov_b32 s0, {sTAG}
        s_mov_b32 s1, {sTAG}
        s_lshl2_add_u32 s32, {sID}, {sW}
        s_lshl_b32 s32, s32, 7
        s_add_u32 s32, s32, {GATE}
        v_lshl_add_u32 v14, v3, 2, s32
        v_mov_b32 v13, {sTAG}
        """)

        uvpos = self.opt.get("uvpos", 0)
        f2pos = self.opt.get("f2pos", 0)

        def wuv(js=range(8)):
            for j in js:
                if j == 0:
                    a(f"s_lshl_b32 s33, {sW}, 13\ns_mov_b32 m0, s33\ns_mov_b32 s32, s63")
                if j == 4:
                    a("s_add_u32 m0, s33, 4096")
                a(f"buffer_load_dwordx4 v{12 if j >> 2 else 82}, {R1}, s32 offen offset:{(j&3)*1024} nt lds")
                if j < 7:
                    a(f"s_add_u32 s32, s32, {32768 - 1024 + (4096 if j == 3 else 0)}")

        def areads():
            for i in range(8):
                if i:
                    a(f"v_xor_b32 v{79+(i&1)}, {32*i}, v69")
                for q in range(4):
                    a(f"ds_read_b128 {ar((q*8+i)*4)}, v{69 if i == 0 else 79+(i&1)} offset:{q*256}")

        def trreads(s):
            kwh, j, u = s >> 4, (s >> 1) & 7, s & 1
            a(f"v_xor_b32 v{79+u}, {j*32 + u*16 + kwh*65536}, v78")
            for kl in range(2):
                kw = 2 * kwh + kl
                a(f"ds_read_b64_tr_b16 {ar(128 + (kw*8+j)*4 + 2*u, 2)}, v{79+u} offset:{u*8192 + kl*32768}")

        a(f"""
        s_movk_i32 {sCNT}, {NPOLL}
        A_FPOLL:
        s_buffer_load_dwordx16 s[4:19], {WS}, s61 glc
        s_buffer_load_dwordx16 s[20:35], {WS}, s2 glc
        s_sub_u32 {sCNT}, {sCNT}, 1
        s_cbranch_scc1 A_FTIME
        s_waitcnt lgkmcnt(0)
        """)
        for i in range(16):
            a(f"s_cmp_lg_u64 s[{4+2*i}:{5+2*i}], s[0:1]\ns_cbranch_scc1 A_FPOLL")
        a(f"""
        A_FTIME:
        s_waitcnt lgkmcnt(0)
        s_movk_i32 {sCNT}, 2000
        A_QDMA:
        """)
        self.stamp(4)
        a(f"""
        s_lshl_b32 s32, {sW}, 13
        s_add_u32 m0, s32, {Q}
        s_add_u32 s33, s60, 4096
        """)
        for j in range(8):
            if j == 4:
                a(f"s_add_u32 m0, s32, {Q + 4096}")
            a(f"buffer_load_dwordx4 v{124+(j&3)}, {WS}, {'s60' if j < 4 else 's33'} offen offset:{(j&3)*1024} sc1 lds")
        uva = self.opt.get("gpos", 2) if self.opt.get("gate", 0) else 0
        tl = f"buffer_store_dword v13, v14, {WS}, 0 offen sc1"
        a(f"s_cmpk_lg_u32 {sCNT}, 2000\ns_cbranch_scc1 A_QW0")
        if uva == 1:
            a(tl)
        a(f"s_waitcnt vmcnt({9 if uva == 1 else 8})")
        self.stamp(5)
        if uva == 2:
            a(tl)
        areads()
        a("s_barrier")
        if uva == 3:
            a(tl)
        for s in range(32):
            trreads(s)
        a(f"A_QW:\nv_mov_b32 v81, 0\ns_waitcnt vmcnt({1 if 0 < uva < 4 else 0}) lgkmcnt(0)")
        self.stamp(6)
        if uva == 4:
            a(tl)
        a("s_barrier")
        D, NS = 4, 5
        bs = lambda s: 84 + 4 * (s % NS)
        rdB = lambda s: f"ds_read_b128 {vr(bs(s))}, v{70+(s&7)} offset:{(s>>3)*8192}"
        for s in range(D):
            a(rdB(s))
        for s in range(32):
            n = min(D - 1, 31 - s)
            a(f"s_waitcnt lgkmcnt({n})")
            a(f"v_mfma_f32_32x32x16_bf16 v[108:123], {ar(4*s)}, {vr(bs(s))}, {'0' if s == 0 else 'v[108:123]'}")
            if s + D < 32:
                a(rdB(s + D))
            a(f"v_max3_u32 v81, v81, v{bs(s)}, v{bs(s)+2}")
            if s < 8 and uvpos == 2:
                wuv([s])
            if s == 20:
                a("s_barrier")
        a(f"""
        v_cmp_eq_u32 vcc, -1, v81
        s_cbranch_vccnz A_REDO
        A_QOK:
        """)
        self.stamp(7)
        if uva == 5:
            a(tl)
        f2 = f"buffer_load_dword v13, v83, {WS}, s61 offen sc1"
        if f2pos == 0:
            a(f2)
        a("v_max3_f32 v4, v108, v109, v110\nv_max3_f32 v5, v111, v112, v113")
        a("v_max3_f32 v4, v4, v114, v115\nv_max3_f32 v5, v5, v116, v117")
        a("v_max3_f32 v4, v4, v118, v119\nv_max3_f32 v5, v5, v120, v121")
        a("v_max3_f32 v4, v4, v122, v123\nv_max_f32 v4, v4, v5")
        self.swapred("v_max_f32", [4], [5], 32)
        a("ds_write_b32 v8, v4")
        if uvpos == 0:
            wuv()
        a(f"""
        s_waitcnt lgkmcnt(0)
        s_barrier
        ds_read_b128 v[4:7], v9
        s_waitcnt lgkmcnt(0)
        v_max3_f32 v4, v4, v5, v6
        v_max_f32 v14, v4, v7
        """)
        for st in range(2):
            for i in range(8):
                a(f"v_sub_f32 v{108+8*st+i}, v{108+8*st+i}, v14")
            for i in range(8):
                a(f"v_exp_f32 v{108+8*st+i}, v{108+8*st+i}")
            for i in range(4):
                a(f"v_cvt_pk_bf16_f32 v{84+4*st+i}, v{108+8*st+2*i}, v{109+8*st+2*i}")
            a(f"ds_write_b128 v10, {vr(84+4*st)} offset:{st*1024}")
        if f2pos == 1:
            a(f2)
        if uvpos == 1:
            wuv()
        a("s_waitcnt lgkmcnt(0)\ns_barrier")
        self.stamp(8)
        for ht in range(2):
            for kw in range(4):
                a(f"ds_read_b128 {vr(160+(ht*4+kw)*4)}, v11 offset:{kw*2048 + ht*256}")
        a(f"""
        s_mov_b32 s33, 0x3f803f80
        v_mov_b32 v15, 0
        v_mov_b32 v16, 0
        s_lshl_b32 s34, {sW}, 3
        s_lshl_b32 s96, 0xff, s34
        s_mov_b32 s97, 0
        s_lshl_b32 s35, {sID}, 9
        s_add_u32 s35, s35, {ML}
        s_mov_b32 s34, s62
        s_and_b32 s32, {sW}, 1
        s_lshl_b32 s0, s32, 3
        v_xor_b32 v6, s0, v0
        v_lshlrev_b32 v6, 9, v6
        s_lshr_b32 s1, {sW}, 1
        s_lshr_b32 s0, {sID}, 2
        s_lshl_b32 s0, s0, 4
        s_lshl_b32 s2, s1, 15
        s_add_u32 s0, s0, s2
        s_add_u32 s0, s0, {ML}
        s_lshl3_add_u32 s1, s1, s32
        s_lshl_b32 s1, s1, 11
        s_lshl_b32 s32, {sID}, 15
        s_add_u32 s1, s1, s32
        s_add_u32 s1, s1, {H3}
        v_lshlrev_b32 v7, 4, v3
        v_lshl_add_u32 v7, v2, 12, v7
        """)
        um, mpre = self.opt.get("um", 1), self.opt.get("mpre", 8)
        mlitem = (f"buffer_load_dwordx3 v[16:18], v6, {WS}, s0 offen sc1", f"v_cmp_ne_u32 vcc, {sTAG}, v18")
        oitems = [(f"buffer_load_dwordx4 {vr(160+4*j)}, v7, {WS}, s1 offen offset:{j*256} sc1", self.sent([160 + 4 * j], 18)) for j in range(8)]
        oloads = "\n".join(x[0] for x in oitems)
        side = []
        for ht in range(2):
            for i in range(16):
                side.append(f"v_dot2c_f32_bf16 v{15+ht}, s33, v{160+ht*16+i}")
        side += ["s_nop 0", "v_permlane16_swap_b32 v15, v16", "v_add_f32 v15, v15, v16", "v_mov_b32 v16, v15", "s_nop 0",
                 "v_permlane32_swap_b32 v15, v16", "v_add_f32 v15, v15, v16", f"v_mov_b32 v16, {sTAG}"]
        mlst = f"s_mov_b64 exec, s[96:97]\nbuffer_store_dwordx4 v[14:17], v1, {WS}, s35 offen sc1\ns_mov_b64 exec, -1"
        mlpos = self.opt.get("mlpos", 4)
        acc = lambda ht, j: 192 + ht * 32 + j * 4
        gr = lambda ht, r: 84 + ht * 16 + r * 4
        late = {}
        for ht in range(2):
            for jp in range(4):
                blk = ht * 4 + jp
                cv = [f"v_cvt_pk_bf16_f32 v{gr(ht, r)+jp}, v{acc(ht, 2*jp)+r}, v{acc(ht, 2*jp+1)+r}" for r in range(4)]
                if jp == 3:
                    nv = []
                    for r in range(4):
                        nv.append(cv[r])
                        st = f"buffer_store_dwordx4 {vr(gr(ht, r))}, v68, {WS}, s34 offen sc1"
                        if not (ht == 1 and r == 3):
                            st += f"\ns_add_u32 s34, s34, {131072 * (13 if r == 3 else 1)}"
                        nv.append(st)
                    cv = nv
                late[blk + 1] = cv
        first = True
        for blk in range(8):
            ht, jp = blk >> 2, blk & 3
            pend = list(late.get(blk, []))
            if blk == 4:
                a(f"""
                s_waitcnt vmcnt({8 if uvpos < 2 and f2pos <= uvpos else 0})
                v_cmp_ne_u32 vcc, {sTAG}, v13
                s_cbranch_vccnz A_F2POLL
                A_F2OK:
                """)
            if um == 3 and blk == mpre:
                assert not side
                a(mlitem[0])
            if blk == mlpos and mlpos > 4:
                assert not side
                a(mlst)
            for kw in range(4):
                if blk == 0:
                    a(f"s_waitcnt lgkmcnt({7-kw})")
                for jj in range(2):
                    j = 2 * jp + jj
                    c = "0" if kw == 0 else vr(acc(ht, j))
                    a(f"v_mfma_f32_16x16x32_bf16 {vr(acc(ht, j))}, {vr(160+(ht*4+kw)*4)}, {ar(128+(kw*8+j)*4)}, {c}")
                    if blk == 0 and kw == 3 and jj == 1:
                        a("s_waitcnt lgkmcnt(0)")
                    n = 2
                    if blk >= 1 and kw >= 2:
                        for _ in range(2):
                            if pend:
                                a(pend.pop(0))
                                n -= 1
                    if blk >= 1:
                        for _ in range(n):
                            if side:
                                a(side.pop(0))
                                if not side and mlpos == 4:
                                    a(mlst)
            assert not pend
        assert not side
        if mlpos == 8:
            a(mlst)
        for i, x in enumerate(late[8]):
            if um == 3 and mpre >= 8 and i == 2 * (mpre - 8):
                a(mlitem[0])
            a(x)
        if mlpos == 9:
            a(mlst)
        self.stamp(9)
        if um == 3:
            a(f"""
            s_movk_i32 {sCNT}, {NPOLL}
            s_waitcnt vmcnt({4 - max(0, mpre - 8)})
            A_MLCHK:
            v_cmp_ne_u32 vcc, {sTAG}, v18
            s_cbranch_vccnz A_MLREDO
            A_MLOK:
            """)
            self.stamp(10)
            a(oloads)
        a(f"""
        v_bfe_u32 v8, v0, 2, 2
        v_xor_b32 v9, {sW}, v8
        v_lshlrev_b32 v9, 6, v9
        v_lshl_add_u32 v9, v8, 12, v9
        v_lshl_add_u32 v9, v2, 8, v9
        v_and_b32 v8, 3, v0
        v_lshl_add_u32 v9, v8, 4, v9
        v_mul_u32_u24 v10, 288, v8
        v_lshl_add_u32 v10, v2, 4, v10
        s_mul_i32 s32, {sW}, 288
        v_lshlrev_b32 v11, 4, v3
        v_lshl_add_u32 v11, v2, 3, v11
        v_add_u32 v11, s32, v11
        v_and_b32 v12, 1, v0
        v_lshlrev_b32 v12, 4, v12
        s_mov_b32 s32, 0xffff
        v_lshlrev_b32 v12, v12, s32
        v_lshrrev_b32 v13, 1, v3
        """)
        for i in range(4):
            a(f"v_cmp_eq_u32 vcc, {i}, v13\nv_cndmask_b32 v{20+i}, 0, v12, vcc")
        a(f"""
        v_bfe_u32 v12, v0, 1, 1
        v_lshlrev_b32 v12, 6, v12
        v_lshl_add_u32 v12, v2, 4, v12
        s_lshl_b32 s60, {sID}, 9
        s_lshl_b32 s32, {sW}, 7
        s_add_u32 s60, s60, s32
        s_add_u32 s60, s60, {H3B}
        """)
        self.premask(96, 0x0005000500050005)
        a("s_barrier" if um == 3 else "s_waitcnt vmcnt(9)\ns_barrier")
        for s in range(4):
            for t in range(2):
                for u in range(2):
                    a(f"ds_read_b64_tr_b16 {vr(128+(s*2+t)*4+2*u, 2)}, v9 offset:{u*16384 + s*1024 + t*8}")
        if um != 3:
            if um:
                self.mpoll([mlitem], 4)
            else:
                self.poll(*mlitem)
            self.stamp(10)
            a(oloads)
        a("v_mov_b32 v18, v16")
        for c in ("quad_perm:[1,0,3,2]", "quad_perm:[2,3,0,1]", "row_half_mirror", "row_mirror"):
            self.dpp("v_max_f32", [18], c)
        self.swapred("v_max_f32", [18], [19], 16)
        self.swapred("v_max_f32", [18], [19], 32)
        a("v_sub_f32 v16, v16, v18\nv_exp_f32 v16, v16\nv_mul_f32 v18, v16, v17")
        for c in ("quad_perm:[1,0,3,2]", "quad_perm:[2,3,0,1]", "row_half_mirror", "row_mirror"):
            self.dpp("v_add_f32", [18], c)
        self.swapred("v_add_f32", [18], [19], 16)
        self.swapred("v_add_f32", [18], [19], 32)
        a("v_rcp_f32 v18, v18\nv_mul_f32 v16, v16, v18\nv_cvt_pk_bf16_f32 v16, v16, v16")
        for j in range(8):
            for i in range(4):
                a(f"v_and_b32_dpp v{192+4*j+i}, v16, v{20+i} row_newbcast:{j} row_mask:0xf bank_mask:0xf")
        chk = self.sent([160 + 4 * j for j in range(8)], 18)
        a(f"""
        s_movk_i32 {sCNT}, {NPOLL}
        A_OWAIT:
        s_waitcnt vmcnt(0)
        {chk}
        s_cbranch_vccnz A_OREDO
        A_OOK:
        """)
        self.stamp(11)
        for j in range(8):
            c = "0" if j < 2 else vr(24 + 4 * (j & 1))
            a(f"v_mfma_f32_16x16x32_bf16 {vr(24+4*(j&1))}, {vr(192+4*j)}, {vr(160+4*j)}, {c}")
        a(f"""
        s_mov_b32 exec_hi, 0
        v_pk_add_f32 v[24:25], v[24:25], v[28:29]
        v_pk_add_f32 v[26:27], v[26:27], v[30:31]
        v_cvt_pk_bf16_f32 v24, v24, v25
        v_cvt_pk_bf16_f32 v25, v26, v27
        ds_write_b64 v11, v[24:25] offset:{XU}
        s_mov_b32 exec_hi, -1
        s_waitcnt lgkmcnt(0)
        s_barrier
        """)
        for s in range(4):
            a(f"ds_read_b128 {vr(32+4*s)}, v10 offset:{XU + s*64}")
        for s in range(4):
            a(f"s_waitcnt lgkmcnt({3-s})")
            for t in range(2):
                c = "0" if s == 0 else vr(24 + 4 * t)
                a(f"v_mfma_f32_16x16x32_bf16 {vr(24+4*t)}, {vr(128+(s*2+t)*4)}, {vr(32+4*s)}, {c}")
        self.dpp("v_add_f32", range(24, 32), "quad_perm:[1,0,3,2]")
        a("s_mov_b64 exec, s[96:97]")
        for i in range(4):
            a(f"v_cvt_pk_bf16_f32 v{32+i}, v{24+2*i}, v{25+2*i}")
        a(f"buffer_store_dwordx4 v[32:35], v12, {WS}, s60 offen sc1")
        self.stamp(12)
        a(f"""
        s_branch FIN
        A_REDO:
        s_sub_u32 {sCNT}, {sCNT}, 1
        s_cbranch_scc1 A_QOK
        s_waitcnt lgkmcnt(0)
        s_barrier
        s_branch A_QDMA
        A_QW0:
        s_waitcnt vmcnt(0)
        s_branch A_QW
        A_OREDO:
        s_sub_u32 {sCNT}, {sCNT}, 1
        s_cbranch_scc1 A_OOK
        {self.mchecks(oitems, 4) + chr(10) + self.mloads(oitems, 4) if um else oloads}
        s_branch A_OWAIT
        """)
        if um == 3:
            a(f"""
            A_MLREDO:
            s_sub_u32 {sCNT}, {sCNT}, 1
            s_cbranch_scc1 A_MLOK
            s_mov_b64 exec, vcc
            {mlitem[0]}
            s_mov_b64 exec, -1
            s_waitcnt vmcnt(0)
            s_branch A_MLCHK
            """)
        a(f"""
        A_F2POLL:
        """)
        self.poll(f2, f"v_cmp_ne_u32 vcc, {sTAG}, v13")
        a("s_branch A_F2OK")

    def tagpoll(self, voff, soff, r, depth):
        if self.opt.get("mt", 0):
            return self.mpoll([(f"buffer_load_dwordx3 {vr(r+4*j, 3)}, {voff}, {WS}, {soff} offen offset:{1024*j} sc1",
                                f"v_cmp_ne_u32 vcc, {sTAG}, v{r+4*j+2}") for j in range(2)], 6)
        self.poll(f"buffer_load_dwordx3 {vr(r, 3)}, {voff}, {WS}, {soff} offen sc1\n"
                  f"buffer_load_dwordx3 {vr(r+4, 3)}, {voff}, {WS}, {soff} offen offset:1024 sc1",
                  f"v_cmp_ne_u32 s[32:33], {sTAG}, v{r+2}\nv_cmp_ne_u32 vcc, {sTAG}, v{r+6}\ns_or_b64 vcc, vcc, s[32:33]", depth)

    def smallgemm(self, xb, wbase):
        a = self.a
        for s in range(4):
            a(f"ds_read_b128 {vr(88+4*s)}, v9 offset:{xb - X1 + s*1024}")
        for s in range(4):
            a(f"s_waitcnt lgkmcnt({3-s})")
            for t in range(2):
                c = "0" if s == 0 else vr(104 + 4 * t)
                a(f"v_mfma_f32_16x16x32_bf16 {vr(104+4*t)}, {vr(wbase+(s*2+t)*4)}, {vr(88+4*s)}, {c}")
        for t in range(2):
            for r in range(4):
                a(f"v_add_f32_dpp v{112+r}, v{104+4*t+r}, v{104+4*t+r} row_ror:8 row_mask:0xf bank_mask:{'0x3' if t == 0 else '0xc'}")
        self.dpp("v_add_f32", range(112, 116), "quad_perm:[2,3,0,1]")

    def wrole(self):
        a = self.a
        self.sect = "W"
        a(f"""
        WROLE:
        s_lshr_b32 s60, {sID}, 2
        s_and_b32 s61, {sID}, 3
        s_lshl2_add_u32 s62, s61, {sW}
        s_lshl_b32 s32, s62, 18
        s_lshl_b32 s33, s60, 8
        s_add_u32 s32, s32, s33
        s_lshl_b32 s33, {sW}, 13
        s_mov_b32 m0, s33
        v_lshlrev_b32 v4, 2, v2
        v_xor_b32 v4, v4, v3
        v_lshlrev_b32 v4, 4, v4
        v_lshl_add_u32 v4, v2, 13, v4
        v_xor_b32 v5, v2, v3
        v_lshlrev_b32 v5, 4, v5
        v_lshl_add_u32 v124, v2, 13, v5
        v_xor_b32 v125, 64, v124
        v_xor_b32 v126, 128, v124
        v_xor_b32 v127, 192, v124
        s_mov_b32 s100, s32
        s_waitcnt lgkmcnt(0)
        """)
        self.srd(R1, 8, 1 << 22)
        self.srd(R2, 10, 1 << 22)
        ukpos = self.opt.get("ukpos", 0)

        def wdma(m):
            R, so = ((R1, "s32"), (R2, "s100"))[m]
            for j in range(8):
                if j == 4 or (m == 1 and j == 0):
                    a(f"s_add_u32 m0, s33, {m*WK + (j>>2)*4096}")
                v = 4 if m == 0 else 124 + (j >> 1)
                a(f"buffer_load_dwordx4 v{v}, {R}, {so} offen offset:{(j&3)*1024} nt lds")
                if j < 7:
                    a(f"s_add_u32 {so}, {so}, {32768 - 1024 + (4096 if j == 3 else 0)}")

        wdma(0)
        if ukpos == 0:
            wdma(1)
        kt, kp = self.opt.get("kt", 0), self.opt.get("kp", 0)

        def ktouch():
            for j in range(kt):
                a(f"buffer_load_dword v{253-j}, v254, {R4}, 0 offen\nv_add_u32 v254, 0x2000, v254")

        if kt:
            self.srd(R4, 6, 1 << 24)
            a(f"""
            s_lshl2_add_u32 s32, {sID}, {sW}
            s_lshl_b32 s32, s32, 15
            s_add_u32 s32, s32, {32768 - 8192 * kt}
            v_lshl_add_u32 v254, v0, 7, s32
            """)
        if kp == 0:
            ktouch()
        a(f"s_load_dword {sTAG}, s[30:31], 0")
        self.srd(WS, 30, 0x10000000)
        self.stamp(1)
        a(f"""
        v_bfe_u32 v4, v0, 2, 2
        v_xor_b32 v5, {sW}, v4
        v_lshlrev_b32 v5, 6, v5
        v_lshrrev_b32 v6, 2, v0
        v_lshl_add_u32 v5, v6, 8, v5
        v_and_b32 v6, 3, v0
        v_lshl_add_u32 v10, v6, 4, v5
        v_lshl_add_u32 v5, v4, 3, v6
        v_lshlrev_b32 v5, 8, v5
        v_xor_b32 v7, v2, v3
        v_lshl_add_u32 v5, v7, 4, v5
        s_add_u32 s32, s33, {WK}
        v_add_u32 v11, s32, v5
        v_add_u32 v9, {X1}, v1
        s_lshl_b32 s32, {sW}, 10
        s_add_u32 s32, s32, {X1}
        v_bfe_u32 v4, v0, 1, 2
        v_lshlrev_b32 v4, 8, v4
        v_and_b32 v5, 1, v0
        v_lshl_add_u32 v4, v5, 6, v4
        v_lshl_add_u32 v4, v2, 4, v4
        v_and_b32 v6, 8, v0
        v_add3_u32 v12, v4, v6, s32
        v_bfe_u32 v4, v0, 3, 2
        v_lshlrev_b32 v4, 8, v4
        v_lshl_add_u32 v4, v5, 4, v4
        v_bfe_u32 v6, v0, 1, 1
        v_lshl_add_u32 v4, v6, 6, v4
        v_and_b32 v6, 32, v0
        v_add_u32 v4, v4, v6
        v_bfe_u32 v6, v0, 2, 1
        v_lshl_add_u32 v4, v6, 3, v4
        v_add_u32 v13, s32, v4
        v_lshrrev_b32 v4, 2, v0
        v_lshl_add_u32 v4, v4, 1, v5
        v_lshlrev_b32 v14, 4, v4
        v_lshlrev_b32 v4, 15, v6
        v_lshl_add_u32 v4, v2, 4, v4
        v_and_b32 v6, 8, v0
        v_add_u32 v15, v4, v6
        v_lshlrev_b32 v120, 9, v0
        s_lshl_b32 s62, s62, 11
        s_and_b32 s63, {sXCD}, {self.opt.get("r1", 1) - 1}
        s_lshl_b32 s63, s63, 15
        s_add_u32 s62, s62, s63
        s_add_u32 s62, s62, {H1}
        s_lshl2_add_u32 s63, s60, {sW}
        s_lshl_b32 s63, s63, 11
        s_add_u32 s63, s63, {HQ}
        s_lshl_b32 s34, s61, 9
        s_add_u32 s34, s34, s63
        s_lshl_b32 s35, s61, 5
        s_add_u32 s35, s35, s60
        s_lshl_b32 s2, s35, 2
        s_add_u32 s2, s2, {FLAG}
        s_lshl_b32 s0, {sW}, {7 + self.opt.get("rf", 5)}
        s_add_u32 s2, s2, s0
        s_lshl2_add_u32 s35, s35, {sW}
        s_lshl_b32 s35, s35, 6
        s_add_u32 s35, s35, {H2}
        s_mov_b32 s0, 0x{(1 << (1 << (self.opt.get("rf", 5) - 2))) - 1:x}
        s_mov_b32 s1, 0
        """)
        if self.opt.get("touch", 1):
            a(f"buffer_load_dwordx3 v[80:82], v1, {WS}, s63 offen sc1\nbuffer_load_dwordx3 v[84:86], v1, {WS}, s63 offen offset:1024 sc1")
        self.premask(96, 0x3333333333333333)
        self.premask(98, 0x1111111111111111)
        a(f"""
        s_waitcnt vmcnt({(2 if self.opt.get("touch", 1) else 0) + (8 if ukpos == 0 else (0, 0, 4, 6)[ukpos]) + (kt if kp == 0 else 0)}) lgkmcnt(0)
        s_add_u32 {sTAG}, {sTAG}, 0x{TAGC:x}
        """)
        if ukpos:
            wdma(1)
        if ukpos > 1:
            a("s_waitcnt vmcnt(10)")
        self.stamp(2)
        a(f"""
        s_barrier
        v_mov_b32 v118, {sTAG}
        v_mov_b32 v119, {sTAG}
        """)
        for s in range(4):
            for t in range(2):
                for u in range(2):
                    a(f"ds_read_b64_tr_b16 {vr(16+(s*2+t)*4+2*u, 2)}, v10 offset:{s*8192 + u*4096 + t*8}")
        self.tagpoll("v1", "s62", 80, self.opt.get("d1", 1))
        self.stamp(3)
        if kp == 1:
            ktouch()
        a(f"""
        ds_write_b64 v12, v[80:81]
        ds_write_b64 v12, v[84:85] offset:128
        s_waitcnt lgkmcnt(0)
        s_barrier
        """)
        self.smallgemm(X1, 16)
        a(f"""
        s_mov_b64 exec, s[96:97]
        v_cvt_pk_bf16_f32 v116, v112, v113
        v_cvt_pk_bf16_f32 v117, v114, v115
        buffer_store_dwordx4 v[116:119], v14, {WS}, s34 offen sc1
        s_mov_b64 exec, -1
        """)
        self.stamp(4)
        for s in range(4):
            if s:
                a(f"v_xor_b32 v4, {64*s}, v11")
            for t in range(2):
                a(f"ds_read_b128 {vr(48+(s*2+t)*4)}, v{4 if s else 11} offset:{t*1024}")
        self.tagpoll("v1", "s63", 80, self.opt.get("dQ", 1))
        self.stamp(5)
        flag = f"s_mov_b64 exec, s[0:1]\nbuffer_store_dword v118, v120, {WS}, s2 offen sc1\ns_mov_b64 exec, -1"
        a(f"""
        ds_write_b64 v13, v[80:81] offset:{X2 - X1}
        ds_write_b64 v13, v[84:85] offset:{X2 - X1 + 128}
        s_waitcnt lgkmcnt(0)
        s_barrier
        """)
        if self.opt.get("earlyflag"):
            a(flag)
        self.smallgemm(X2, 48)
        self.dpp("v_add_f32", range(112, 116), "quad_perm:[1,0,3,2]")
        a("s_mov_b64 exec, s[98:99]")
        for r in range(4):
            a(f"v_mul_f32 v{112+r}, 0x{QSCALE:x}, v{112+r}")
        a(f"""
        v_cvt_pk_bf16_f32 v116, v112, v113
        v_cvt_pk_bf16_f32 v117, v114, v115
        buffer_store_dwordx2 v[116:117], v15, {WS}, s35 offen sc1
        """)
        if not self.opt.get("earlyflag"):
            a(flag)
        else:
            a("s_mov_b64 exec, -1")
        self.stamp(6)
        a(f"""
        v_mov_b32 v64, -1
        v_mov_b32 v65, -1
        v_mov_b32 v66, -1
        v_mov_b32 v67, -1
        s_lshl2_add_u32 s32, {sID}, {sW}
        s_lshl_b32 s32, s32, 13
        s_add_u32 s32, s32, {H3}
        s_add_u32 s34, s32, 4096
        s_add_u32 s2, s2, {FLAG2 - FLAG}
        """)
        for j in range(8):
            a(f"buffer_store_dwordx4 v[64:67], v1, {WS}, {'s32' if j < 4 else 's34'} offen offset:{(j&3)*1024} sc1")
        cw = self.opt.get("cw", 0)

        def flag2(n):
            a(f"s_waitcnt vmcnt({n})")
            self.stamp(12)
            a("s_barrier\n" + flag)

        uvt = self.opt.get("uvt", 0)
        if uvt:
            self.srd(R4, 12, 1 << 22)
            a(f"""
            s_and_b32 s32, {sID}, 3
            s_lshl2_add_u32 s32, s32, {sW}
            s_lshl_b32 s32, s32, 18
            s_lshr_b32 s33, {sID}, 2
            s_lshl_b32 s33, s33, 8
            s_add_u32 s32, s32, s33
            v_lshrrev_b32 v4, 1, v0
            v_and_b32 v5, 1, v0
            v_lshlrev_b32 v5, 7, v5
            v_lshl_add_u32 v4, v4, 13, v5
            """)
        tl = f"buffer_load_dword v68, v4, {R4}, s32 offen"
        if uvt & 4:
            tl += f"\nbuffer_load_dword v69, v4, {R4}, s32 offen offset:64"
        if uvt & 1:
            a(tl)
        if cw == 0:
            flag2(len(tl.splitlines()) if uvt & 1 else 0)
        if uvt & 2:
            a(tl)
        a(f"""
        s_and_b32 s60, {sID}, 15
        s_and_b32 s61, {sID}, 3
        s_lshl2_add_u32 s61, {sXCD}, s61
        s_cmp_lt_u32 s60, 8
        s_cbranch_scc1 W_SETO
        s_cmp_lt_u32 s60, 12
        s_cbranch_scc1 W_SETM
        s_cmp_ge_u32 s61, 28
        s_cbranch_scc1 {"W_IDLE" if cw else "FIN"}
        """)
        self.srd(R1, 18, 512 * 3584)
        a(f"""
        s_movk_i32 s62, 3584
        s_lshl_b32 s32, s61, 7
        s_branch W_LOAD
        W_SETM:
        """)
        self.srd(R1, 24, 512 * 6144)
        a(f"""
        s_movk_i32 s62, 6144
        s_lshl_b32 s32, s61, 7
        s_add_u32 s32, s32, 2048
        s_branch W_LOAD
        W_SETO:
        """)
        self.srd(R1, 14, 1 << 22)
        a(f"""
        s_movk_i32 s62, 1024
        s_lshl_b32 s32, {sXCD}, 19
        s_lshl_b32 s33, s60, 7
        s_add_u32 s32, s32, s33
        W_LOAD:
        s_lshl_b32 s33, {sW}, 7
        s_mul_i32 s33, s33, s62
        s_add_u32 s32, s32, s33
        s_lshl_b32 s33, s62, 3
        s_sub_u32 s33, s33, 1024
        s_add_u32 s63, s33, 4096
        s_lshl_b32 s34, {sW}, 14
        v_lshrrev_b32 v4, 3, v0
        v_mul_lo_u32 v4, v4, s62
        v_and_b32 v5, 1, v2
        v_lshlrev_b32 v5, 1, v5
        v_and_b32 v6, 7, v0
        v_xor_b32 v5, v5, v6
        v_lshl_add_u32 v6, v5, 4, v4
        v_xor_b32 v5, 4, v5
        v_lshl_add_u32 v7, v5, 4, v4
        """)
        gate = self.opt.get("gate", 0)
        if gate:
            gm = (0xff if gate & 1 else 0) | (0xf00 if gate & 2 else 0) | (0xf000 if gate & 4 else 0)
            a(f"""
            s_lshl2_add_u32 s35, {sID}, {sW}
            s_lshl_b32 s35, s35, 7
            s_add_u32 s35, s35, {ML + 8 if self.opt.get("gpos", 2) == 9 else GATE}
            v_mov_b32 v9, 0
            s_bitcmp1_b32 {gm}, s60
            s_cbranch_scc0 W_NOGATE
            """)
            gp = (f"buffer_load_dword v8, v9, {WS}, s35 offen sc1", f"v_cmp_ne_u32 vcc, {sTAG}, v8")
            self.poll(*gp)
            a("W_NOGATE:")
        for j in range(16):
            if j % 4 == 0:
                a(f"s_add_u32 m0, s34, {W2R + j*1024}")
            a(f"buffer_load_dwordx4 v{6+(j&1)}, {R1}, s32 offen offset:{(j&3)*1024} nt lds")
            if j < 15:
                a(f"s_add_u32 s32, s32, {'s63' if j % 4 == 3 else 's33'}")
        if cw:
            flag2(16)
        a(f"""
        v_bfe_u32 v4, v0, 2, 2
        v_lshl_add_u32 v5, v2, 3, v4
        v_lshlrev_b32 v5, 7, v5
        v_bfe_u32 v6, v0, 3, 2
        v_xor_b32 v6, {sW}, v6
        v_lshl_add_u32 v5, v6, 5, v5
        v_and_b32 v6, 3, v0
        v_lshl_add_u32 v5, v6, 3, v5
        v_add_u32 v10, {W2R}, v5
        s_cmp_lt_u32 s60, 8
        s_cbranch_scc1 W_WAIT
        s_cmp_lt_u32 s60, 12
        s_cbranch_scc1 W_PREM
        """)
        self.srd(R2, 20, 1792 * 1024)
        a(f"""
        s_lshl_b32 s32, s61, 16
        s_add_u32 s32, s32, s34
        v_xor_b32 v5, 16, v1
        v_xor_b32 v6, 32, v1
        v_xor_b32 v7, 48, v1
        """)
        if gate & 8:
            self.poll(*gp)
        for j in range(16):
            if j % 4 == 0:
                a(f"s_add_u32 m0, s34, {j*1024}")
                if j:
                    a("s_add_u32 s32, s32, 4096")
            a(f"buffer_load_dwordx4 v{[1, 5, 6, 7][j&3]}, {R2}, s32 offen offset:{(j&3)*1024} nt lds")
        a(f"""
        s_branch W_WAIT
        W_PREM:
        """)
        self.srd(R3, 22, 2048)
        a(f"""
        s_lshl_b32 s32, {sW}, 9
        v_lshlrev_b32 v4, 3, v0
        buffer_load_dwordx2 v[16:17], v4, {R3}, s32 offen
        s_lshr_b32 s33, {sW}, 1
        s_lshl_b32 s33, s33, 5
        s_add_u32 s32, s32, s33
        s_add_u32 s32, s32, {SL}
        v_add_u32 v4, s32, v4
        s_waitcnt vmcnt(0)
        """)
        self.silu([16, 17], 20)
        a(f"""
        ds_write_b64 v4, v[16:17]
        W_WAIT:
        s_waitcnt vmcnt(0) lgkmcnt(0)
        """)
        self.stamp(7)
        a("s_barrier")
        for s in range(16):
            for u in range(2):
                a(f"ds_read_b64_tr_b16 {ar(4*s+2*u, 2)}, v10 offset:{s*4096 + u*512}")
        a(f"""
        s_cmp_lt_u32 s60, 8
        s_cbranch_scc0 W_NOTO
        """)
        self.orole()
        a(f"""
        W_NOTO:
        v_and_b32 v4, 3, v0
        v_mul_u32_u24 v4, 2112, v4
        v_bfe_u32 v5, v0, 2, 1
        v_mul_u32_u24 v5, 1056, v5
        v_lshl_add_u32 v5, v2, 4, v5
        s_cmp_lt_u32 s60, 12
        s_cbranch_scc1 W_M2
        """)
        self.ffn()
        if cw:
            a("W_IDLE:")
            flag2(0)
            a("s_branch FIN")
        a("W_M2:")
        self.m2()

    def actgemm(self, addr, fill=None):
        a = self.a
        fill = list(fill or [])
        for s in range(12):
            a(f"ds_read_b128 {vr(128+4*s)}, v{addr} offset:{s*64}")
        for s in range(16):
            a(f"s_waitcnt lgkmcnt({min(11, 15-s)})")
            c = "0" if s < 2 else vr(104 + 4 * (s & 1))
            a(f"v_mfma_f32_16x16x32_bf16 {vr(104+4*(s&1))}, {vr(128+4*s)}, {ar(4*s)}, {c}")
            if s < 4:
                a(f"ds_read_b128 {vr(128+4*(s+12))}, v{addr} offset:{(s+12)*64}")
            for _ in range(3):
                if fill:
                    a(fill.pop(0))
        assert not fill

    def orole(self):
        a = self.a
        self.sect = "O"
        a(f"""
        s_lshl2_add_u32 s34, {sXCD}, {sW}
        s_lshl_b32 s34, s34, 11
        s_add_u32 s34, s34, {H3B}
        v_lshrrev_b32 v4, 5, v0
        v_bfe_u32 v5, v0, 2, 2
        v_lshl_add_u32 v4, v4, 2, v5
        v_and_b32 v5, 1, v2
        v_lshl_add_u32 v4, v4, 1, v5
        v_and_b32 v5, 3, v0
        v_lshl_add_u32 v4, v4, 2, v5
        v_lshlrev_b32 v16, 4, v4
        v_and_b32 v4, 1, v2
        v_lshlrev_b32 v4, 3, v4
        v_lshrrev_b32 v5, 1, v2
        v_or_b32 v4, v4, v5
        v_lshlrev_b32 v4, 4, v4
        v_xor_b32 v4, v4, v1
        s_lshl_b32 s32, {sW}, 11
        s_add_u32 s32, s32, {XO}
        v_add_u32 v11, s32, v4
        v_xor_b32 v12, 32, v11
        v_and_b32 v4, 3, v0
        v_bfe_u32 v5, v0, 2, 1
        v_lshl_add_u32 v6, v4, 1, v5
        v_lshlrev_b32 v6, 8, v6
        v_xor_b32 v4, v4, v2
        v_lshl_add_u32 v6, v4, 4, v6
        v_lshl_add_u32 v6, v5, 7, v6
        v_bfe_u32 v4, v0, 3, 1
        v_lshl_add_u32 v6, v4, 6, v6
        v_add_u32 v13, {XO}, v6
        v_xor_b32 v14, 128, v13
        v_lshlrev_b32 v5, 5, v5
        v_lshl_add_u32 v15, v2, 3, v5
        v_and_b32 v4, 3, v0
        v_lshl_add_u32 v15, v4, 15, v15
        s_lshl_b32 s35, {sXCD}, 12
        s_lshl2_add_u32 s32, s60, {sW}
        s_lshl_b32 s32, s32, 7
        s_add_u32 s35, s35, s32
        s_add_u32 s35, s35, {H4}
        """)
        self.premask(96, 0x0011001100110011 * ((1 << self.opt.get("r4", 1)) - 1))
        if self.opt.get("mo", 1):
            self.mpoll([(f"buffer_load_dwordx4 {vr(80+4*j)}, v16, {WS}, s34 offen offset:{1024*j} sc1", self.sent([80 + 4 * j], 4)) for j in range(2)], 4)
        else:
          self.poll(f"buffer_load_dwordx4 v[80:83], v16, {WS}, s34 offen sc1\n"
                  f"buffer_load_dwordx4 v[84:87], v16, {WS}, s34 offen offset:1024 sc1", self.sent([80, 84], 4), self.opt.get("dO", 1))
        self.stamp(8)
        a(f"""
        ds_write_b128 v11, v[80:83]
        ds_write_b128 v12, v[84:87] offset:1024
        s_waitcnt lgkmcnt(0)
        s_barrier
        """)
        for sp in range(8):
            a(f"ds_read_b128 {vr(128+4*sp)}, v{13+(sp&1)} offset:{(sp>>1)*2048}")
        for sp in range(8):
            a(f"s_waitcnt lgkmcnt({7-sp})")
            for k in range(2):
                c = "0" if sp == 0 else vr(104 + 4 * k)
                a(f"v_mfma_f32_16x16x32_bf16 {vr(104+4*k)}, {ar(4*(2*sp+k))}, {vr(128+4*sp)}, {c}")
        for r in range(4):
            a(f"v_add_f32_dpp v{112+r}, v{108+r}, v{104+r} row_ror:8 row_mask:0xf bank_mask:0xf")
        self.dpp("v_add_f32", range(112, 116), "quad_perm:[1,0,3,2]")
        self.dpp("v_add_f32", range(112, 116), "quad_perm:[2,3,0,1]")
        a(f"""
        s_mov_b64 exec, s[96:97]
        v_cvt_pk_bf16_f32 v116, v112, v113
        v_cvt_pk_bf16_f32 v117, v114, v115
        buffer_store_dwordx2 v[116:117], v15, {WS}, s35 offen sc1
        """)
        self.stamp(9)
        a("s_branch FIN")

    def selmat(self, esel, on):
        a = self.a
        a(f"""
        v_and_b32 v24, 1, v{esel}
        v_lshlrev_b32 v24, 4, v24
        s_movk_i32 s32, 0x3f80
        v_lshlrev_b32 v24, v24, s32
        v_lshrrev_b32 v25, 1, v{esel}
        v_lshl_or_b32 v25, v{on}, 2, v25
        """)
        for i in range(4):
            a(f"v_cmp_eq_u32 vcc, {i}, v25\nv_cndmask_b32 v{20+i}, 0, v24, vcc")

    def ffn(self):
        a = self.a
        self.sect = "F"
        a(f"""
        s_mov_b32 s32, {YB}
        v_add3_u32 v11, v4, v5, s32
        v_bfe_u32 v4, v0, 2, 2
        v_lshl_add_u32 v5, v2, 3, v4
        v_lshlrev_b32 v5, 10, v5
        v_lshl_add_u32 v5, v4, 4, v5
        v_and_b32 v4, 3, v0
        v_lshl_add_u32 v5, v4, 6, v5
        s_lshl_b32 s33, {sW}, 8
        v_add_u32 v4, s33, v5
        """)
        for tp in range(4):
            if tp:
                a(f"v_xor_b32 v{4+tp}, {16*tp}, v4")
            for th in range(2):
                for s in range(2):
                    for u in range(2):
                        t = 2 * tp + th
                        a(f"ds_read_b64_tr_b16 {ar(64+(t*2+s)*4+2*u, 2)}, v{4+tp} offset:{s*32768 + u*4096 + th*8}")
        self.srd(R2, 4, 2048)
        a(f"""
        v_lshrrev_b32 v4, 5, v0
        v_and_b32 v5, 1, v2
        v_lshl_add_u32 v6, v3, 1, v5
        v_lshlrev_b32 v7, 3, v6
        v_lshl_add_u32 v8, v4, 10, v7
        buffer_load_dwordx2 v[16:17], v8, {R2}, s33 offen
        v_mul_u32_u24 v8, 1056, v4
        s_add_u32 s32, s33, {YB}
        v_add3_u32 v12, v8, v7, s32
        v_lshlrev_b32 v7, 4, v6
        v_lshl_add_u32 v13, v4, 13, v7
        s_lshl_b32 s34, {sW}, 9
        s_add_u32 s34, s34, {M2O}
        s_add_u32 s35, s34, 4096
        v_and_b32 v6, 31, v0
        v_lshlrev_b32 v6, 3, v6
        v_lshl_add_u32 v6, v4, 10, v6
        s_add_u32 s32, s33, {ST}
        v_add_u32 v14, s32, v6
        v_lshlrev_b32 v6, 4, v3
        v_lshl_add_u32 v6, v4, 8, v6
        v_lshl_add_u32 v6, v5, 10, v6
        v_add_u32 v15, {ST}, v6
        v_lshrrev_b32 v6, 1, v3
        v_lshl_add_u32 v6, v4, 5, v6
        v_lshl_add_u32 v6, v6, 2, v5
        v_and_b32 v7, 1, v0
        v_lshl_add_u32 v6, v6, 1, v7
        v_lshlrev_b32 v26, 4, v6
        s_and_b32 s62, {sXCD}, {self.opt.get("r4", 1) - 1}
        s_lshl_b32 s62, s62, 13
        s_add_u32 s62, s62, s33
        s_lshl_b32 s62, s62, 2
        s_add_u32 s62, s62, {H4}
        s_add_u32 s63, s62, 8192
        s_add_u32 s0, s62, 16384
        s_add_u32 s1, s62, 24576
        v_mul_u32_u24 v6, 160, v5
        v_lshl_add_u32 v6, v3, 1, v6
        s_lshl_b32 s32, {sW}, 5
        s_add_u32 s32, s32, {AB}
        v_add_u32 v27, s32, v6
        v_bfe_u32 v6, v0, 2, 1
        v_mul_u32_u24 v6, 160, v6
        v_lshl_add_u32 v6, v2, 4, v6
        v_add_u32 v28, {AB}, v6
        v_bfe_u32 v6, v0, 3, 1
        v_mul_u32_u24 v7, 7168, v6
        v_lshl_add_u32 v7, v5, 7, v7
        v_and_b32 v8, 7, v0
        v_lshl_add_u32 v29, v8, 4, v7
        v_xor_b32 v6, v6, v5
        s_mul_i32 s2, {sW}, 14336
        s_lshl_b32 s32, s61, 8
        s_add_u32 s2, s2, s32
        s_add_u32 s2, s2, {H5}
        """)
        self.selmat(8, 6)
        self.poll(f"buffer_load_dwordx4 v[32:35], v13, {WS}, s34 offen sc1\n"
                  f"buffer_load_dwordx4 v[36:39], v13, {WS}, s34 offen offset:2048 sc1\n"
                  f"buffer_load_dwordx4 v[40:43], v13, {WS}, s35 offen sc1", self.sent(range(32, 44), 4))
        self.stamp(8)
        for r in range(4):
            a(f"v_add_f32 v{40+r}, 1.0, v{40+r}")
        a(f"""
        v_cvt_pk_bf16_f32 v4, v40, v41
        v_cvt_pk_bf16_f32 v5, v42, v43
        v_cvt_pk_bf16_f32 v6, v36, v37
        v_cvt_pk_bf16_f32 v7, v38, v39
        ds_write_b64 v12, v[4:5] offset:2112
        ds_write_b64 v12, v[6:7] offset:4224
        v_lshlrev_b32 v40, 16, v4
        v_and_b32 v41, 0xffff0000, v4
        v_lshlrev_b32 v42, 16, v5
        v_and_b32 v43, 0xffff0000, v5
        v_lshlrev_b32 v36, 16, v16
        v_and_b32 v37, 0xffff0000, v16
        v_lshlrev_b32 v38, 16, v17
        v_and_b32 v39, 0xffff0000, v17
        """)
        so = ["s62", "s63", "s0", "s1"]
        if self.opt.get("mf", 1):
            self.mpoll([(f"buffer_load_dwordx4 {vr(48+4*j)}, v26, {WS}, {so[j]} offen sc1", self.sent([48 + 4 * j, 50 + 4 * j], 4 + j)) for j in range(4)], 4)
        else:
          self.poll("\n".join(f"buffer_load_dwordx4 {vr(48+4*j)}, v26, {WS}, {so[j]} offen sc1" for j in range(4)),
                  self.sent(range(48, 64, 2), 4), self.opt.get("dF", 1))
        self.stamp(9)
        for j in range(4):
            c = "0" if j == 0 else "v[44:47]"
            a(f"v_mfma_f32_16x16x32_bf16 v[44:47], v[20:23], {vr(48+4*j)}, {c}")
        a(f"""
        v_pk_fma_f32 v[36:37], v[32:33], v[44:45], v[36:37]
        v_pk_fma_f32 v[38:39], v[34:35], v[46:47], v[38:39]
        v_pk_mul_f32 v[40:41], v[40:41], v[36:37]
        v_pk_mul_f32 v[42:43], v[42:43], v[38:39]
        v_cvt_pk_bf16_f32 v4, v40, v41
        v_cvt_pk_bf16_f32 v5, v42, v43
        ds_write_b64 v12, v[4:5]
        v_pk_add_f32 v[6:7], v[36:37], v[38:39]
        v_pk_mul_f32 v[8:9], v[36:37], v[36:37]
        v_pk_fma_f32 v[8:9], v[38:39], v[38:39], v[8:9]
        v_add_f32 v6, v6, v7
        v_add_f32 v7, v8, v9
        ds_write_b64 v14, v[6:7]
        s_waitcnt lgkmcnt(0)
        s_barrier
        ds_read_b128 v[32:35], v15
        ds_read_b128 v[36:39], v15 offset:512
        """)
        d = lambda c: [f"v_add_f32_dpp v{r}, v{r}, v{r} {c} row_mask:0xf bank_mask:0xf" for r in (32, 33)] + ["s_nop 0"]
        fill = ["v_pk_add_f32 v[32:33], v[32:33], v[34:35]", "v_pk_add_f32 v[36:37], v[36:37], v[38:39]",
                "v_pk_add_f32 v[32:33], v[32:33], v[36:37]"]
        for c in ("quad_perm:[1,0,3,2]", "quad_perm:[2,3,0,1]", "row_half_mirror", "row_mirror"):
            fill += d(c)
        fill += ["v_mov_b32 v34, v32", "v_mov_b32 v35, v33", "s_nop 0",
                 "v_permlane32_swap_b32 v32, v34", "v_permlane32_swap_b32 v33, v35", "s_nop 0",
                 "v_pk_add_f32 v[32:33], v[32:33], v[34:35]", "v_mov_b32 v34, 0x3727c5ac",
                 "v_mul_f32 v32, 0x3b000000, v32", "v_fmac_f32 v34, 0x3b000000, v33",
                 "v_fma_f32 v34, -v32, v32, v34", "v_rsq_f32 v34, v34"]
        self.actgemm(11, fill)
        a(f"""
        s_mov_b32 exec_hi, 0
        v_pk_add_f32 v[104:105], v[104:105], v[108:109]
        v_add_f32 v106, v106, v110
        v_fma_f32 v104, -v32, v105, v104
        v_fma_f32 v104, v34, v104, v106
        v_max_f32 v104, 0, v104
        v_cvt_pk_bf16_f32 v104, v104, v104
        ds_write_b16 v27, v104
        s_mov_b32 exec_hi, -1
        s_waitcnt lgkmcnt(0)
        s_barrier
        ds_read_b128 v[32:35], v28
        ds_read_b128 v[36:39], v28 offset:64
        """)
        self.stamp(10)
        for s in range(2):
            a(f"s_waitcnt lgkmcnt({1-s})")
            for t in range(8):
                c = "0" if s == 0 else vr(128 + 4 * t)
                a(f"v_mfma_f32_16x16x32_bf16 {vr(128+4*t)}, {vr(32+4*s)}, {ar(64+(t*2+s)*4)}, {c}")
        a("s_mov_b32 exec_hi, 0")
        for i in range(4):
            a(f"v_cvt_pk_bf16_f32 v{40+i}, v{128+8*i}, v{132+8*i}")
        a(f"buffer_store_dwordx4 v[40:43], v29, {WS}, s2 offen sc1")
        self.stamp(11)
        a("s_branch FIN")

    def m2(self):
        a = self.a
        self.sect = "M"
        a(f"""
        v_add_u32 v11, {SL}, v5
        v_lshlrev_b32 v4, 2, v3
        v_lshl_add_u32 v12, v2, 13, v4
        s_lshl2_add_u32 s34, s61, {sW}
        s_lshl_b32 s34, s34, 6
        s_add_u32 s34, s34, {M2O}
        s_waitcnt lgkmcnt(0)
        """)
        self.actgemm(11)
        a(f"""
        s_mov_b32 exec_hi, 0
        v_add_f32 v104, v104, v108
        v_cvt_pk_bf16_f32 v104, v104, v104
        v_lshlrev_b32 v104, 16, v104
        buffer_store_dword v104, v12, {WS}, s34 offen sc1
        s_mov_b32 exec_hi, -1
        """)
        self.stamp(8)
        a(f"""
        s_cmp_lt_u32 s61, 24
        s_cbranch_scc1 FIN
        s_cmp_lg_u32 {sW}, 0
        s_cbranch_scc1 FIN
        s_sub_u32 s61, s61, 24
        """)
        self.srd(R2, 4, 2048)
        self.srd(R3, 26, 2048)
        a(f"""
        v_bfe_u32 v4, v0, 3, 1
        v_and_b32 v5, 7, v0
        v_lshl_add_u32 v6, v5, 2, v2
        v_lshlrev_b32 v7, 2, v6
        v_lshl_add_u32 v7, v4, 10, v7
        s_lshl_b32 s33, s61, 7
        buffer_load_dword v16, v7, {R2}, s33 offen
        v_lshlrev_b32 v7, 3, v6
        v_lshl_add_u32 v11, v4, 13, v7
        v_lshl_add_u32 v7, v4, 8, v7
        v_add_u32 v12, {XF}, v7
        v_bfe_u32 v6, v0, 2, 1
        v_lshl_add_u32 v6, v6, 2, v2
        v_and_b32 v7, 3, v0
        v_lshl_add_u32 v6, v6, 3, v7
        v_lshlrev_b32 v8, 2, v6
        v_lshl_add_u32 v13, v4, 13, v8
        v_lshl_add_u32 v8, v4, 8, v8
        v_add_u32 v14, {XF}, v8
        v_lshlrev_b32 v8, 1, v6
        v_lshl_add_u32 v15, v4, 10, v8
        v_lshrrev_b32 v8, 1, v5
        v_lshl_add_u32 v8, v2, 5, v8
        v_lshl_add_u32 v8, v8, 2, v4
        v_and_b32 v26, 1, v0
        v_lshl_add_u32 v8, v8, 1, v26
        v_lshlrev_b32 v26, 4, v8
        s_lshl_b32 s34, s61, 8
        s_add_u32 s34, s34, {M2O}
        s_add_u32 s35, s34, 6144
        s_and_b32 s62, {sXCD}, {self.opt.get("r4", 1) - 1}
        s_lshl_b32 s62, s62, 13
        s_add_u32 s62, s62, s33
        s_lshl_b32 s62, s62, 2
        s_add_u32 s62, s62, {H4}
        s_add_u32 s63, s62, 16384
        s_mul_i32 s0, s61, 7168
        s_add_u32 s0, s0, {H5}
        s_add_u32 s1, s0, 4096
        v_bfe_u32 v8, v0, 2, 2
        v_and_b32 v6, 1, v0
        v_lshl_add_u32 v8, v8, 1, v6
        v_bfe_u32 v6, v0, 1, 1
        """)
        self.selmat(8, 6)
        self.poll(f"buffer_load_dwordx2 v[32:33], v11, {WS}, s34 offen sc1\n"
                  f"buffer_load_dword v34, v13, {WS}, s35 offen sc1\n"
                  f"buffer_load_dword v35, v13, {WS}, s35 offen offset:16 sc1", self.sent(range(32, 36), 4))
        a("v_lshlrev_b32 v36, 16, v16\nv_and_b32 v37, 0xffff0000, v16")
        if self.opt.get("mf", 1):
            self.mpoll([(f"buffer_load_dwordx4 {vr(48+4*j)}, v26, {WS}, s{62+j} offen sc1", self.sent([48 + 4 * j, 50 + 4 * j], 4 + j)) for j in range(2)], 4)
        else:
          self.poll(f"buffer_load_dwordx4 v[48:51], v26, {WS}, s62 offen sc1\n"
                  f"buffer_load_dwordx4 v[52:55], v26, {WS}, s63 offen sc1", self.sent(range(48, 56, 2), 4))
        self.stamp(9)
        a(f"""
        v_mfma_f32_16x16x32_bf16 v[44:47], v[20:23], v[48:51], 0
        v_mfma_f32_16x16x32_bf16 v[44:47], v[20:23], v[52:55], v[44:47]
        v_pk_fma_f32 v[36:37], v[32:33], v[44:45], v[36:37]
        ds_write_b64 v12, v[36:37]
        s_waitcnt lgkmcnt(0)
        ds_read_b32 v36, v14
        ds_read_b32 v37, v14 offset:16
        s_cmp_lg_u32 s61, 0
        s_cbranch_scc1 W_NOGEN
        s_mov_b64 exec, 1
        buffer_store_dword v118, v0, {WS}, 0 offen sc1
        s_mov_b64 exec, -1
        W_NOGEN:
        """)
        if self.opt.get("m5", 0):
            self.mpoll([(f"buffer_load_dwordx4 {vr(48+4*j)}, v1, {WS}, {'s0' if j < 4 else 's1'} offen offset:{(j&3)*1024} sc1", self.sent([48 + 4 * j], 4)) for j in range(7)], 4)
        else:
          self.poll("\n".join(f"buffer_load_dwordx4 {vr(48+4*j)}, v1, {WS}, {'s0' if j < 4 else 's1'} offen offset:{(j&3)*1024} sc1" for j in range(7)),
                  self.sent(range(48, 76), 4), self.opt.get("d5", 3))
        self.stamp(10)
        for j in range(7):
            c = "0" if j < 2 else vr(40 + 4 * (j & 1))
            a(f"v_mfma_f32_16x16x32_bf16 {vr(40+4*(j&1))}, v[20:23], {vr(48+4*j)}, {c}")
        a(f"""
        s_waitcnt lgkmcnt(0)
        v_pk_add_f32 v[40:41], v[40:41], v[44:45]
        v_pk_fma_f32 v[36:37], v[34:35], v[40:41], v[36:37]
        v_cvt_pk_bf16_f32 v36, v36, v37
        buffer_store_short v36, v15, {R3}, s33 offen
        buffer_store_short_d16_hi v36, v15, {R3}, s33 offen offset:8
        """)
        self.stamp(11)

    def fin(self):
        a = self.a
        a("FIN:")
        if self.diag:
            a("s_mov_b64 exec, -1\ns_waitcnt vmcnt(0)")
            self.stamp(15)
            a(f"""
            s_waitcnt lgkmcnt(0)
            s_lshl2_add_u32 s32, s101, {sW}
            s_lshl_b32 s32, s32, 6
            s_add_u32 s32, s32, {STAMP}
            """)
            for i in range(16):
                a(f"v_mov_b32 v{16+i}, s{64+2*i}")
            a("s_mov_b64 exec, 1")
            for i in range(4):
                a(f"buffer_store_dwordx4 {vr(16+4*i)}, v0, {WS}, s32 offen offset:{16*i}")
        if self.probe:
            wg = self.opt.get("probewg")
            if wg is not None:
                a(f"s_cmp_lg_u32 s101, {wg}\ns_cbranch_scc1 EXIT")
            a(f"""
            s_waitcnt lgkmcnt(0)
            s_cmp_eq_u64 s[64:65], 0
            s_cbranch_scc1 EXIT
            s_add_u32 s32, s64, {self.opt.get("spin", 4000)}
            PROBE:
            s_memrealtime s[34:35]
            s_waitcnt lgkmcnt(0)
            s_sub_u32 s33, s34, s32
            s_cmp_lt_i32 s33, 0
            s_cbranch_scc1 PROBE
            """)
        a("EXIT:")

    def build(self):
        if self.diag:
            self.a("s_mov_b32 s101, s2")
        self.entry()
        self.arole()
        self.wrole()
        self.fin()
        return wrap(pad(self.a.text()), 256, 256, 163840)


if __name__ == "__main__":
    out = sys.argv[1]
    opts = dict(kv.split("=") for kv in sys.argv[2:])
    opts = {k: (int(v) if v.lstrip('-').isdigit() else v) for k, v in opts.items()}
    open(out, "w").write(G(**opts).build())
```

```python
import sys
from asmlib import Asm, wrap, KNAME
from hazard import pad

FLAG, FLAG2, HQ, H1 = 0x10000, 0x18000, 0x20000, 0xC0000
if 'rf=7' in sys.argv:
    FLAG, FLAG2 = 0x540000, 0x560000
SB = 0x60000
H4, H2, H3B, M2O, H5 = SB, SB + 0x20000, SB + 0x30000, SB + 0x44000, SB + 0x50000
ML = 0x500000
GATE = 0x520000
H3 = 0x100000
STAMP = 200 << 20
TAGC = 0x9E3779B9
NPOLL = 20000

Q = 131072
SIL = Q + 8192
PB = Q
MX = Q + 8192 if 'mxk=0' in sys.argv else 49152
XU = 32768
WQ, WK, W2R = 0, 32768, 65536
X1, X2 = 131072, 135168
XO = 139264
YB = 139264
ST = 149504
AB = 151552
SL = 139264
XF = 152064

WS = "s[36:39]"
R1, R2, R3, R4 = "s[40:43]", "s[44:47]", "s[48:51]", "s[52:55]"
sW, sXCD, sID, sTAG, sCNT = "s3", "s56", "s58", "s59", "s57"
LOG2E = 0x3FB8AA3B
QSCALE = 0x3E0293EE


def vr(b, n=4):
    return f"v[{b}:{b+n-1}]"


def ar(b, n=4):
    return f"a[{b}:{b+n-1}]"


class G:
    def __init__(self, diag=False, **opt):
        self.a = Asm()
        self.diag = diag
        self.opt = opt
        self.sect = "E"
        p = opt.get("probe")
        self.probe = (p[0], int(p[1:])) if p else None

    def stamp(self, i):
        if self.diag:
            self.a(f"s_memrealtime s[{64+2*i}:{65+2*i}]")
        elif self.probe == (self.sect, i):
            self.a("s_memrealtime s[64:65]")

    def srd(self, r, ptr, size):
        b = int(r[2:4])
        self.a(f"s_mov_b64 s[{b}:{b+1}], s[{ptr}:{ptr+1}]\ns_mov_b32 s{b+2}, {size}")

    def execmask(self, m):
        lo, hi = m & 0xFFFFFFFF, m >> 32
        self.a(f"s_mov_b32 exec_lo, 0x{lo:x}\ns_mov_b32 exec_hi, 0x{hi:x}")

    def premask(self, s, m):
        lo, hi = m & 0xFFFFFFFF, m >> 32
        self.a(f"s_mov_b32 s{s}, 0x{lo:x}\ns_mov_b32 s{s+1}, 0x{hi:x}")

    def poll(self, loads, check, depth=1):
        a = self.a
        lp, ok = a.label("POLL"), a.label("POK")
        for _ in range(depth - 1):
            a(loads)
        a(f"s_movk_i32 {sCNT}, {NPOLL}\n{lp}:")
        a(loads)
        a(f"s_waitcnt vmcnt({(depth - 1) * len(loads.splitlines())})")
        a(check)
        a(f"""
        s_cbranch_vccz {ok}
        s_sub_u32 {sCNT}, {sCNT}, 1
        s_cbranch_scc0 {lp}
        {ok}:
        """)

    def mchecks(self, items, m0):
        s = []
        for j, (ld, chk) in enumerate(items):
            s.append(chk.replace("vcc", f"s[{m0+2*j}:{m0+2*j+1}]"))
        m = [f"s[{m0+2*j}:{m0+2*j+1}]" for j in range(len(items))]
        s.append(f"s_or_b64 vcc, {m[0]}, {m[-1]}")
        for x in m[1:-1]:
            s.append(f"s_or_b64 vcc, vcc, {x}")
        return "\n".join(s)

    def mloads(self, items, m0):
        s = []
        for j, (ld, chk) in enumerate(items):
            s.append(f"s_mov_b64 exec, s[{m0+2*j}:{m0+2*j+1}]\n{ld}")
        s.append("s_mov_b64 exec, -1")
        return "\n".join(s)

    def mpoll(self, items, m0):
        a = self.a
        lp, ck, ok = a.label("MPL"), a.label("MPC"), a.label("MPK")
        for ld, chk in items:
            a(ld)
        a(f"""
        s_movk_i32 {sCNT}, {NPOLL}
        s_branch {ck}
        {lp}:
        s_sub_u32 {sCNT}, {sCNT}, 1
        s_cbranch_scc1 {ok}
        {self.mloads(items, m0)}
        {ck}:
        s_waitcnt vmcnt(0)
        {self.mchecks(items, m0)}
        s_cbranch_scc1 {lp}
        {ok}:
        """)

    @staticmethod
    def sent(regs, t):
        regs = list(regs)
        if len(regs) == 1:
            return f"v_cmp_eq_u32 vcc, -1, v{regs[0]}"
        s = []
        if len(regs) % 2 == 0:
            s.append(f"v_max_u32 v{t}, v{regs[0]}, v{regs[1]}")
            regs = regs[2:]
        else:
            s.append(f"v_max3_u32 v{t}, v{regs[0]}, v{regs[1]}, v{regs[2]}")
            regs = regs[3:]
        while regs:
            s.append(f"v_max3_u32 v{t}, v{t}, v{regs[0]}, v{regs[1]}")
            regs = regs[2:]
        s.append(f"v_cmp_eq_u32 vcc, -1, v{t}")
        return "\n".join(s)

    def dpp(self, op, regs, ctrl):
        for r in regs:
            self.a(f"{op}_dpp v{r}, v{r}, v{r} {ctrl} row_mask:0xf bank_mask:0xf")

    def swapred(self, op, regs, tmps, which):
        a = self.a
        for r, t in zip(regs, tmps):
            a(f"v_mov_b32 v{t}, v{r}")
        for r, t in zip(regs, tmps):
            a(f"v_permlane{which}_swap_b32 v{r}, v{t}")
        for r, t in zip(regs, tmps):
            a(f"{op} v{r}, v{r}, v{t}")

    def silu(self, pairs, t):
        a = self.a
        n = len(pairs)
        x = [t + i for i in range(2 * n)]
        e = [t + 2 * n + i for i in range(2 * n)]
        for i, p in enumerate(pairs):
            a(f"v_lshlrev_b32 v{x[2*i]}, 16, v{p}\nv_and_b32 v{x[2*i+1]}, 0xffff0000, v{p}")
        for i in range(2 * n):
            a(f"v_mul_f32 v{e[i]}, 0x{LOG2E | 0x80000000:x}, v{x[i]}")
        for i in range(2 * n):
            a(f"v_exp_f32 v{e[i]}, v{e[i]}")
        for i in range(2 * n):
            a(f"v_add_f32 v{e[i]}, 1.0, v{e[i]}")
        for i in range(2 * n):
            a(f"v_rcp_f32 v{e[i]}, v{e[i]}")
        for i in range(2 * n):
            a(f"v_mul_f32 v{x[i]}, v{x[i]}, v{e[i]}")
        for i, p in enumerate(pairs):
            a(f"v_cvt_pk_bf16_f32 v{p}, v{x[2*i]}, v{x[2*i+1]}")

    def entry(self):
        a = self.a
        if self.diag:
            for i in range(1, 16):
                a(f"s_mov_b64 s[{64+2*i}:{65+2*i}], 0")
        if self.probe:
            a("s_mov_b64 s[64:65], 0\ns_mov_b32 s101, s2")
        self.stamp(0)
        a(f"""
        s_cmp_ge_u32 s2, 256
        s_cbranch_scc1 EXIT
        s_load_dwordx16 s[4:19], s[0:1], 0
        s_load_dwordx8 s[20:27], s[0:1], 64
        s_load_dwordx4 s[28:31], s[0:1], 96
        """)
        cwm = self.opt.get("cwm", 16)
        if cwm:
            a(f"""
            s_and_b32 s34, s2, {(0x100 - 16 * cwm) & 0xf0 | 8}
            s_cmp_lg_u32 s34, {self.opt.get("cwr", 8)}
            s_cbranch_scc1 E_NOWARM
            s_getpc_b64 s[32:33]
            E_PC:
            v_lshlrev_b32 v1, 6, v0
            v_min_u32 v1, EXIT-E_PC, v1
            global_load_dword v255, v1, s[32:33]
            E_NOWARM:
            """)
        a(f"""
        v_lshrrev_b32 v1, 6, v0
        v_and_b32 v0, 63, v0
        v_readfirstlane_b32 {sW}, v1
        s_and_b32 {sXCD}, s2, 7
        {"s_bfe_u32 s57, s2, 0x40003" if self.opt.get("hi") else "s_lshr_b32 s57, s2, 4"}
        s_lshl4_add_u32 {sID}, {sXCD}, s57
        v_lshlrev_b32 v1, 4, v0
        v_lshrrev_b32 v2, 4, v0
        v_and_b32 v3, 15, v0
        s_mov_b32 s39, 0x20000
        s_mov_b32 s43, 0x20000
        s_mov_b32 s47, 0x20000
        s_mov_b32 s51, 0x20000
        s_mov_b32 s55, 0x20000
        s_bitcmp1_b32 s2, {7 if self.opt.get('hi') else 3}
        s_cbranch_scc1 WROLE
        """)

    def arole(self):
        a = self.a
        self.sect = "A"
        a(f"""
        s_and_b32 s60, {sID}, 15
        s_lshr_b32 s61, {sID}, 4
        v_lshlrev_b32 v4, 4, v3
        v_lshl_or_b32 v68, v2, 19, v4
        v_mov_b32 v64, -1
        v_mov_b32 v65, -1
        v_mov_b32 v66, -1
        v_mov_b32 v67, -1
        s_lshl_b32 s62, {sW}, 15
        s_lshl_b32 s63, {sID}, 8
        s_add_u32 s62, s62, s63
        s_add_u32 s62, s62, {H3}
        s_cmp_ge_u32 {sW}, 2
        s_cbranch_scc1 A_W23
        v_lshrrev_b32 v5, 3, v0
        v_and_b32 v6, 7, v0
        v_lshlrev_b32 v7, 1, v2
        v_xor_b32 v7, v6, v7
        v_mul_u32_u24 v8, 6144, v5
        v_lshrrev_b32 v9, 2, v7
        v_lshl_add_u32 v8, v9, 10, v8
        v_and_b32 v9, 3, v7
        v_lshl_add_u32 v8, v9, 4, v8
        v_and_b32 v10, 1, v5
        v_lshlrev_b32 v10, 10, v10
        v_lshl_add_u32 v11, v2, 3, v6
        v_lshl_add_u32 v11, v11, 5, v10
        v_lshl_add_u32 v12, v2, 3, v10
        s_lshl1_add_u32 s32, s61, {sW}
        s_mul_i32 s32, s32, {32 * 6144}
        s_lshl_b32 s33, s60, 6
        s_add_u32 s32, s32, s33
        s_lshl_b32 s34, {sW}, 5
        s_add_u32 s33, s33, s34
        s_lshl_b32 s34, {sW}, 12
        s_add_u32 m0, s34, {Q}
        s_waitcnt lgkmcnt(0)
        """)
        self.srd(R2, 4, 2048)
        self.srd(R1, 24, 512 * 6144)
        a(f"""
        buffer_load_dwordx4 v[16:19], v11, {R2}, 0 offen
        buffer_load_dwordx4 v[20:23], v11, {R2}, 0 offen offset:16
        buffer_load_dwordx2 v[24:25], v12, {R2}, s33 offen
        """)
        for j in range(4):
            a(f"buffer_load_dwordx4 v8, {R1}, s32 offen offset:{1024*j} nt lds")
            if j < 3:
                a(f"s_add_u32 s32, s32, {8 * 6144 - 1024}")
        a(f"s_load_dword {sTAG}, s[30:31], 0")
        self.srd(WS, 30, 0x10000000)
        a(f"""
        v_lshrrev_b32 v13, 2, v0
        v_lshlrev_b32 v13, 7, v13
        v_and_b32 v14, 3, v5
        v_xor_b32 v14, {sW}, v14
        v_lshl_add_u32 v13, v14, 5, v13
        v_and_b32 v14, 3, v0
        v_lshl_add_u32 v13, v14, 3, v13
        v_add_u32 v13, {Q}, v13
        v_xor_b32 v14, 64, v13
        v_lshrrev_b32 v15, 3, v10
        v_lshl_add_u32 v15, v2, 4, v15
        v_add_u32 v15, {SIL}, v15
        s_cmp_eq_u32 s61, 0
        s_cselect_b32 s32, 1.0, 0
        v_mov_b32 v56, s32
        v_mov_b32 v57, s32
        v_mov_b32 v58, s32
        v_mov_b32 v59, s32
        v_lshlrev_b32 v5, 4, v5
        v_lshl_add_u32 v5, v6, 15, v5
        s_lshl_b32 s32, s60, 11
        s_lshl_b32 s33, s61, 8
        s_add_u32 s32, s32, s33
        s_lshl_b32 s33, {sW}, 7
        s_add_u32 s32, s32, s33
        s_add_u32 s32, s32, {H1}
        s_mov_b32 s33, 0x3f803f80
        v_mov_b32 v26, 0
        v_mov_b32 v27, 0
        """)
        r1 = self.opt.get("r1", 1)
        self.premask(96, 0x0101010101010101 * ((1 << r1) - 1))
        nc = 0
        a(f"s_waitcnt vmcnt({5+nc})")
        for i in range(8):
            a(f"v_dot2c_f32_bf16 v26, s33, v{16+i}\nv_dot2c_f32_bf16 v27, v{16+i}, v{16+i}")
        self.dpp("v_add_f32", [26, 27], "quad_perm:[1,0,3,2]")
        self.dpp("v_add_f32", [26, 27], "quad_perm:[2,3,0,1]")
        self.dpp("v_add_f32", [26, 27], "row_half_mirror")
        self.swapred("v_add_f32", [26, 27], [16, 17], 16)
        self.swapred("v_add_f32", [26, 27], [16, 17], 32)
        a(f"""
        v_mul_f32 v26, 0x3b000000, v26
        v_mov_b32 v16, 0x3727c5ac
        v_fmac_f32 v16, 0x3b000000, v27
        v_fma_f32 v16, -v26, v26, v16
        v_rsq_f32 v16, v16
        s_waitcnt vmcnt({4+nc})
        v_lshlrev_b32 v20, 16, v24
        v_and_b32 v21, 0xffff0000, v24
        v_lshlrev_b32 v22, 16, v25
        v_and_b32 v23, 0xffff0000, v25
        """)
        for i in range(4):
            a(f"v_sub_f32 v{20+i}, v{20+i}, v26")
        for i in range(4):
            a(f"v_mul_f32 v{20+i}, v{20+i}, v16")
        a(f"s_waitcnt vmcnt({nc}) lgkmcnt(0)")
        self.stamp(1)
        a(f"""
        s_barrier
        ds_read_b128 v[44:47], v15
        """)
        for s in range(2):
            for blk in range(2):
                for u in range(2):
                    a(f"ds_read_b64_tr_b16 {vr(28 + (s*2+blk)*4 + 2*u, 2)}, v{13+blk} offset:{s*4096 + u*2048}")
            if s == 0:
                a("ds_read_b128 v[48:51], v15 offset:64")
        a(f"""
        s_add_u32 {sTAG}, {sTAG}, 0x{TAGC:x}
        v_mov_b32 v62, {sTAG}
        v_mov_b32 v63, {sTAG}
        s_waitcnt lgkmcnt(7)
        v_mfma_f32_16x16x32_bf16 v[52:55], v[28:31], v[44:47], 0
        s_waitcnt lgkmcnt(5)
        v_mfma_f32_16x16x32_bf16 v[56:59], v[32:35], v[44:47], v[56:59]
        s_waitcnt lgkmcnt(2)
        v_mfma_f32_16x16x32_bf16 v[52:55], v[36:39], v[48:51], v[52:55]
        s_waitcnt lgkmcnt(0)
        v_mfma_f32_16x16x32_bf16 v[56:59], v[40:43], v[48:51], v[56:59]
        s_mov_b64 exec, s[96:97]
        v_pk_fma_f32 v[52:53], v[20:21], v[56:57], v[52:53]
        v_pk_fma_f32 v[54:55], v[22:23], v[58:59], v[54:55]
        v_cvt_pk_bf16_f32 v60, v52, v53
        v_cvt_pk_bf16_f32 v61, v54, v55
        buffer_store_dwordx4 v[60:63], v5, {WS}, s32 offen sc1
        s_mov_b64 exec, -1
        """)
        self.stamp(2)
        a(f"""
        s_branch A_STREAM
        A_W23:
        s_cmp_eq_u32 {sW}, 3
        s_cbranch_scc1 A_W3
        v_lshrrev_b32 v5, 5, v0
        v_and_b32 v6, 31, v0
        v_lshlrev_b32 v7, 2, v6
        v_lshl_add_u32 v7, v5, 10, v7
        s_lshl_b32 s32, s61, 7
        s_waitcnt lgkmcnt(0)
        """)
        self.srd(R3, 22, 2048)
        a(f"""
        buffer_load_dword v16, v7, {R3}, s32 offen
        s_load_dword {sTAG}, s[30:31], 0
        """)
        self.srd(WS, 30, 0x10000000)
        a(f"""
        v_lshlrev_b32 v8, 6, v2
        v_bfe_u32 v9, v0, 1, 2
        v_lshl_add_u32 v8, v9, 4, v8
        v_and_b32 v9, 8, v0
        v_add_u32 v8, v8, v9
        v_and_b32 v9, 1, v0
        v_lshl_add_u32 v8, v9, 2, v8
        v_add_u32 v8, {SIL}, v8
        """)
        early = self.opt.get("early", 0)
        if early:
            self.stream(0, early)
        a(f"s_waitcnt vmcnt({early})")
        self.silu([16], 20)
        a(f"""
        ds_write_b32 v8, v16
        s_branch A_W23B
        A_W3:
        s_mul_i32 s32, {sID}, 3072
        s_add_u32 s32, s32, {SB}
        s_waitcnt lgkmcnt(0)
        """)
        self.srd(WS, 30, 0x10000000)
        a(f"""
        buffer_store_dwordx4 v[64:67], v1, {WS}, s32 offen sc1
        buffer_store_dwordx4 v[64:67], v1, {WS}, s32 offen offset:1024 sc1
        buffer_store_dwordx4 v[64:67], v1, {WS}, s32 offen offset:2048 sc1
        s_load_dword {sTAG}, s[30:31], 0
        """)
        if early:
            self.stream(0, early)
        a(f"""
        s_waitcnt vmcnt({early})
        A_W23B:
        s_waitcnt lgkmcnt(0)
        """)
        self.stamp(1)
        a(f"""
        s_barrier
        s_add_u32 {sTAG}, {sTAG}, 0x{TAGC:x}
        {"s_branch A_STREAM2" if early else ""}
        A_STREAM:
        """)
        self.stream(0, 32, early)
        self.stamp(3)
        self.attn()

    def stream(self, k0, k1, early=0):
        a = self.a
        if k0 == 0:
            self.srd(R4, 6, 1 << 24)
            a(f"""
            s_lshl_b32 s32, {sID}, 17
            s_lshl_b32 s33, {sW}, 15
            s_add_u32 s32, s32, s33
            """)
        fk = lambda k: ((k & 7) << 1) | ((k >> 3) & 1)
        for k in range(k0, k1):
            if self.opt.get("tlb", 0) and k == self.opt.get("tlbp", 31):
                self.pagetouch(self.opt["tlb"])
            if early and k == early:
                a("A_STREAM2:")
            if k % 4 == 0:
                a(f"s_add_u32 m0, s33, {k*1024}")
            if k == 16:
                a("s_add_u32 s32, s32, 16384")
            if k < 16:
                a(f"v_xor_b32 v{70+k}, {fk(k)*16 + (k & ~3)*1024}, v1")
            thr = self.opt.get("thr", 0)
            if thr and k >= thr:
                a(f"s_waitcnt vmcnt({thr-1})")
            if k < self.opt.get("nstream", 32):
                a(f"buffer_load_dwordx4 v{70+(k&15)}, {R4}, s32 offen offset:{(k&3)*1024} nt lds")

    def pagetouch(self, m):
        a = self.a
        if m & 1:
            self.srd(R1, 12, 1 << 22)
            a(f"""
            s_and_b32 s34, {sID}, 3
            s_lshl2_add_u32 s34, s34, {sW}
            s_lshl_b32 s34, s34, 18
            s_lshr_b32 s35, {sID}, 2
            s_lshl_b32 s35, s35, 8
            s_add_u32 s34, s34, s35
            v_lshlrev_b32 v253, 16, v0
            s_mov_b64 exec, {15 if m & 8 else 1}
            buffer_load_dword v255, v253, {R1}, s34 offen
            s_mov_b64 exec, -1
            """)
        if m & 2:
            a(f"""
            s_mul_i32 s34, {sW}, {8 * 131072}
            s_add_u32 s34, s34, s62
            v_lshlrev_b32 v252, 17, v0
            s_mov_b64 exec, {63 if m & 8 else 1}
            s_mov_b32 exec_lo, {255 if m & 8 else 1}
            buffer_load_dword v254, v252, {WS}, s34 offen sc1
            s_mov_b64 exec, -1
            """)
        if m & 4:
            a(f"""
            s_lshl_b32 s34, {sID}, 9
            s_add_u32 s34, s34, {ML}
            s_mov_b64 exec, 1
            buffer_load_dword v251, v1, {WS}, s34 offen sc1
            s_mov_b64 exec, -1
            """)

    def attn(self):
        a = self.a
        self.srd(R1, 12, 1 << 22)
        a(f"""
        v_and_b32 v4, 31, v0
        v_lshrrev_b32 v5, 5, v0
        v_and_b32 v6, 7, v0
        v_bfe_u32 v7, v0, 3, 1
        v_lshl_or_b32 v6, v6, 1, v7
        v_xor_b32 v6, v6, v5
        v_lshlrev_b32 v6, 4, v6
        v_lshl_add_u32 v6, v4, 10, v6
        v_add_u32 v69, s33, v6
        v_xor_b32 v6, v3, v5
        v_lshlrev_b32 v6, 4, v6
        v_lshl_add_u32 v6, v4, 8, v6
        v_add_u32 v70, {Q}, v6
        """)
        for i in range(1, 8):
            a(f"v_xor_b32 v{70+i}, {32*i}, v70")
        a(f"""
        v_bfe_u32 v6, v0, 2, 3
        v_lshl_add_u32 v7, v5, 4, v6
        v_lshlrev_b32 v7, 10, v7
        v_lshl_add_u32 v7, v6, 5, v7
        v_and_b32 v6, 3, v0
        v_lshl_add_u32 v7, v6, 3, v7
        s_lshl_b32 s32, {sW}, 8
        v_add_u32 v78, s32, v7
        v_xor_b32 v6, v3, v2
        v_lshlrev_b32 v6, 4, v6
        v_lshl_add_u32 v124, v2, 8, v6
        v_xor_b32 v125, 64, v124
        v_xor_b32 v126, 128, v124
        v_xor_b32 v127, 192, v124
        v_lshlrev_b32 v6, 4, v3
        v_lshl_add_u32 v82, v2, 13, v6
        s_lshl_b32 s32, {sW}, 7
        s_and_b32 s32, s32, 128
        v_xor_b32 v82, s32, v82
        v_xor_b32 v12, 64, v82
        v_lshlrev_b32 v83, 2, v4
        v_add_u32 v83, {FLAG2 - FLAG}, v83
        s_lshl_b32 s32, {sW}, 2
        s_add_u32 s32, s32, {MX}
        v_lshlrev_b32 v6, 4, v4
        v_add_u32 v8, s32, v6
        v_add_u32 v9, {MX}, v6
        s_lshl_b32 s32, {sW}, 11
        s_add_u32 s32, s32, {PB}
        v_add_u32 v10, s32, v1
        v_lshlrev_b32 v6, 4, v3
        v_lshl_add_u32 v6, v2, 9, v6
        v_add_u32 v11, {PB}, v6
        s_lshr_b32 s60, {sID}, 6
        s_lshl2_add_u32 s60, s60, {sW}
        s_lshl_b32 s60, s60, 13
        s_add_u32 s60, s60, {H2}
        s_and_b32 s63, {sID}, 3
        s_lshl2_add_u32 s63, s63, {sW}
        s_lshl_b32 s63, s63, 18
        s_lshr_b32 s32, {sID}, 2
        s_lshl_b32 s32, s32, 8
        s_add_u32 s63, s63, s32
        s_lshr_b32 s61, {sID}, {7 - self.opt.get("rf", 5)}
        s_lshl2_add_u32 s61, s61, {sW}
        s_lshl_b32 s61, s61, 7
        s_add_u32 s61, s61, {FLAG}
        s_add_u32 s2, s61, 64
        s_mov_b32 s0, {sTAG}
        s_mov_b32 s1, {sTAG}
        s_lshl2_add_u32 s32, {sID}, {sW}
        s_lshl_b32 s32, s32, 7
        s_add_u32 s32, s32, {GATE}
        v_lshl_add_u32 v14, v3, 2, s32
        v_mov_b32 v13, {sTAG}
        """)

        uvpos = self.opt.get("uvpos", 0)
        f2pos = self.opt.get("f2pos", 0)

        def wuv(js=range(8)):
            for j in js:
                if j == 0:
                    a(f"s_lshl_b32 s33, {sW}, 13\ns_mov_b32 m0, s33\ns_mov_b32 s32, s63")
                if j == 4:
                    a("s_add_u32 m0, s33, 4096")
                a(f"buffer_load_dwordx4 v{12 if j >> 2 else 82}, {R1}, s32 offen offset:{(j&3)*1024} nt lds")
                if j < 7:
                    a(f"s_add_u32 s32, s32, {32768 - 1024 + (4096 if j == 3 else 0)}")

        def areads():
            for i in range(8):
                if i:
                    a(f"v_xor_b32 v{79+(i&1)}, {32*i}, v69")
                for q in range(4):
                    a(f"ds_read_b128 {ar((q*8+i)*4)}, v{69 if i == 0 else 79+(i&1)} offset:{q*256}")

        cur = {}

        def trread(s, kl):
            kwh, j, u = s >> 4, (s >> 1) & 7, s & 1
            if cur.get(u) != s:
                a(f"v_xor_b32 v{79+u}, {j*32 + u*16 + kwh*65536}, v78")
                cur[u] = s
            kw = 2 * kwh + kl
            a(f"ds_read_b64_tr_b16 {ar(128 + (kw*8+j)*4 + 2*u, 2)}, v{79+u} offset:{u*8192 + kl*32768}")

        moved = ([(s, kl) for s in range(16, 32) for kl in range(2)] + [(s, 1) for s in range(16)])[:self.opt.get("trq", 32)]

        a(f"""
        s_movk_i32 {sCNT}, {NPOLL}
        A_FPOLL:
        s_buffer_load_dwordx16 s[4:19], {WS}, s61 glc
        s_buffer_load_dwordx16 s[20:35], {WS}, s2 glc
        s_sub_u32 {sCNT}, {sCNT}, 1
        s_cbranch_scc1 A_FTIME
        s_waitcnt lgkmcnt(0)
        """)
        for i in range(16):
            a(f"s_cmp_lg_u64 s[{4+2*i}:{5+2*i}], s[0:1]\ns_cbranch_scc1 A_FPOLL")
        a(f"""
        A_FTIME:
        s_waitcnt lgkmcnt(0)
        s_movk_i32 {sCNT}, 2000
        A_QDMA:
        """)
        self.stamp(4)
        a(f"""
        s_lshl_b32 s32, {sW}, 13
        s_add_u32 m0, s32, {Q}
        s_add_u32 s33, s60, 4096
        """)
        for j in range(8):
            if j == 4:
                a(f"s_add_u32 m0, s32, {Q + 4096}")
            a(f"buffer_load_dwordx4 v{124+(j&3)}, {WS}, {'s60' if j < 4 else 's33'} offen offset:{(j&3)*1024} sc1 lds")
        uva = self.opt.get("gpos", 2) if self.opt.get("gate", 0) else 0
        tl = f"buffer_store_dword v13, v14, {WS}, 0 offen sc1"
        a(f"s_cmpk_lg_u32 {sCNT}, 2000\ns_cbranch_scc1 A_QW0")
        if uva == 1:
            a(tl)
        a(f"s_waitcnt vmcnt({9 if uva == 1 else 8})")
        self.stamp(5)
        if uva == 2:
            a(tl)
        areads()
        a("s_barrier")
        if uva == 3:
            a(tl)
        for s in range(32):
            for kl in range(2):
                if (s, kl) not in moved:
                    trread(s, kl)
        cur.clear()
        a(f"A_QW:\nv_mov_b32 v81, 0\ns_waitcnt vmcnt({1 if 0 < uva < 4 else 0}) lgkmcnt(0)")
        self.stamp(6)
        if uva == 4:
            a(tl)
        a("s_barrier")
        D = self.opt.get("qd", 5)
        NS = D + 1
        bs = lambda s: 84 + 4 * (s % NS)
        rdB = lambda s: f"ds_read_b128 {vr(bs(s))}, v{70+(s&7)} offset:{(s>>3)*8192}"
        dsq, nmv, tre = [], len(moved), self.opt.get("tre", 28)
        assert MX > Q or nmv <= 32
        for s in range(D):
            a(rdB(s))
            dsq.append(s)
        for s in range(32):
            n = len(dsq) - 1 - dsq.index(s)
            assert n < 16
            a(f"s_waitcnt lgkmcnt({n})")
            a(f"v_mfma_f32_32x32x16_bf16 v[108:123], {ar(4*s)}, {vr(bs(s))}, {'0' if s == 0 else 'v[108:123]'}")
            if s + D < 32:
                a(rdB(s + D))
                dsq.append(s + D)
            a(f"v_max3_u32 v81, v81, v{bs(s)}, v{bs(s)+2}")
            while moved and nmv - len(moved) < nmv * (s + 1) / tre:
                trread(*moved.pop(0))
                dsq.append(-1)
            if s < 8 and uvpos == 2:
                wuv([s])
            if s == 20 and MX > Q:
                a("s_barrier")
        a(f"""
        v_cmp_eq_u32 vcc, -1, v81
        s_cbranch_vccnz A_REDO
        A_QOK:
        """)
        self.stamp(7)
        if uva == 5:
            a(tl)
        f2 = f"buffer_load_dword v13, v83, {WS}, s61 offen sc1"
        if f2pos == 0:
            a(f2)
        a("v_max3_f32 v4, v108, v109, v110\nv_max3_f32 v5, v111, v112, v113")
        a("v_max3_f32 v4, v4, v114, v115\nv_max3_f32 v5, v5, v116, v117")
        a("v_max3_f32 v4, v4, v118, v119\nv_max3_f32 v5, v5, v120, v121")
        a("v_max3_f32 v4, v4, v122, v123\nv_max_f32 v4, v4, v5")
        self.swapred("v_max_f32", [4], [5], 32)
        a("ds_write_b32 v8, v4")
        if uvpos == 0:
            wuv()
        a(f"""
        s_waitcnt lgkmcnt(0)
        s_barrier
        ds_read_b128 v[4:7], v9
        s_waitcnt lgkmcnt(0)
        v_max3_f32 v4, v4, v5, v6
        v_max_f32 v14, v4, v7
        """)
        for st in range(2):
            for i in range(8):
                a(f"v_sub_f32 v{108+8*st+i}, v{108+8*st+i}, v14")
            for i in range(8):
                a(f"v_exp_f32 v{108+8*st+i}, v{108+8*st+i}")
            for i in range(4):
                a(f"v_cvt_pk_bf16_f32 v{84+4*st+i}, v{108+8*st+2*i}, v{109+8*st+2*i}")
            a(f"ds_write_b128 v10, {vr(84+4*st)} offset:{st*1024}")
        if f2pos == 1:
            a(f2)
        if uvpos == 1:
            wuv()
        a("s_waitcnt lgkmcnt(0)\ns_barrier")
        self.stamp(8)
        for ht in range(2):
            for kw in range(4):
                a(f"ds_read_b128 {vr(160+(ht*4+kw)*4)}, v11 offset:{kw*2048 + ht*256}")
        mlt = self.opt.get("mlt", 2)
        a(f"""
        s_mov_b32 s33, 0x3f803f80
        v_mov_b32 v15, 0
        v_mov_b32 v16, 0
        s_lshl_b32 s34, {sW}, 3
        s_lshl_b32 s96, 0xff, s34
        s_mov_b32 s97, 0
        s_lshr_b32 s35, {sID}, {mlt}
        s_lshl_b32 s35, s35, {9 + mlt}
        s_and_b32 s34, {sID}, {(1 << mlt) - 1}
        s_lshl4_add_u32 s35, s34, s35
        s_add_u32 s35, s35, {ML}
        v_lshlrev_b32 v5, {4 + mlt}, v0
        s_mov_b32 s34, s62
        s_and_b32 s32, {sW}, 1
        s_lshl_b32 s0, s32, 3
        v_xor_b32 v6, s0, v0
        v_and_b32 v4, {(1 << mlt) - 1}, v6
        v_lshrrev_b32 v6, {mlt}, v6
        v_lshlrev_b32 v6, {9 + mlt}, v6
        v_lshl_add_u32 v6, v4, 4, v6
        s_lshr_b32 s1, {sW}, 1
        s_lshr_b32 s0, {sID}, 2
        s_lshl_b32 s0, s0, {4 + mlt}
        s_lshl_b32 s2, s1, 15
        s_add_u32 s0, s0, s2
        s_add_u32 s0, s0, {ML}
        s_lshl3_add_u32 s1, s1, s32
        s_lshl_b32 s1, s1, 11
        s_lshl_b32 s32, {sID}, 15
        s_add_u32 s1, s1, s32
        s_add_u32 s1, s1, {H3}
        v_lshlrev_b32 v7, 4, v3
        v_lshl_add_u32 v7, v2, 12, v7
        """)
        um, mpre = self.opt.get("um", 1), self.opt.get("mpre", 8)
        mlitem = (f"buffer_load_dwordx3 v[16:18], v6, {WS}, s0 offen sc1", f"v_cmp_ne_u32 vcc, {sTAG}, v18")
        oitems = [(f"buffer_load_dwordx4 {vr(160+4*j)}, v7, {WS}, s1 offen offset:{j*256} sc1", self.sent([160 + 4 * j], 18)) for j in range(8)]
        oloads = "\n".join(x[0] for x in oitems)
        side = []
        for ht in range(2):
            for i in range(16):
                side.append(f"v_dot2c_f32_bf16 v{15+ht}, s33, v{160+ht*16+i}")
        side += ["s_nop 0", "v_permlane16_swap_b32 v15, v16", "v_add_f32 v15, v15, v16", "v_mov_b32 v16, v15", "s_nop 0",
                 "v_permlane32_swap_b32 v15, v16", "v_add_f32 v15, v15, v16", f"v_mov_b32 v16, {sTAG}"]
        mlst = f"s_mov_b64 exec, s[96:97]\nbuffer_store_dwordx4 v[14:17], v5, {WS}, s35 offen sc1\ns_mov_b64 exec, -1"
        mlpos = self.opt.get("mlpos", 4)
        acc = lambda ht, j: 192 + ht * 32 + j * 4
        gr = lambda ht, r: 84 + ht * 16 + r * 4
        late = {}
        for ht in range(2):
            for jp in range(4):
                blk = ht * 4 + jp
                cv = [f"v_cvt_pk_bf16_f32 v{gr(ht, r)+jp}, v{acc(ht, 2*jp)+r}, v{acc(ht, 2*jp+1)+r}" for r in range(4)]
                if jp == 3:
                    nv = []
                    for r in range(4):
                        nv.append(cv[r])
                        st = f"buffer_store_dwordx4 {vr(gr(ht, r))}, v68, {WS}, s34 offen sc1"
                        if not (ht == 1 and r == 3):
                            st += f"\ns_add_u32 s34, s34, {131072 * (13 if r == 3 else 1)}"
                        nv.append(st)
                    cv = nv
                late[blk + 1] = cv
        first = True
        for blk in range(8):
            ht, jp = blk >> 2, blk & 3
            pend = list(late.get(blk, []))
            if blk == 4:
                a(f"""
                s_waitcnt vmcnt({8 if uvpos < 2 and f2pos <= uvpos else 0})
                v_cmp_ne_u32 vcc, {sTAG}, v13
                s_cbranch_vccnz A_F2POLL
                A_F2OK:
                """)
            if um == 3 and blk == mpre:
                assert not side
                a(mlitem[0])
            if blk == mlpos and mlpos > 4:
                assert not side
                a(mlst)
            for kw in range(4):
                if blk == 0:
                    a(f"s_waitcnt lgkmcnt({7-kw})")
                for jj in range(2):
                    j = 2 * jp + jj
                    c = "0" if kw == 0 else vr(acc(ht, j))
                    a(f"v_mfma_f32_16x16x32_bf16 {vr(acc(ht, j))}, {vr(160+(ht*4+kw)*4)}, {ar(128+(kw*8+j)*4)}, {c}")
                    if blk == 0 and kw == 3 and jj == 1:
                        a("s_waitcnt lgkmcnt(0)")
                    n = self.opt.get("sn", 3)
                    if blk >= 1 and kw >= 2:
                        for _ in range(2):
                            if pend:
                                a(pend.pop(0))
                                n -= 1
                    if blk >= 1:
                        for _ in range(n):
                            if side:
                                a(side.pop(0))
                                if not side and mlpos == 4:
                                    a(mlst)
            assert not pend
        assert not side
        if mlpos == 8:
            a(mlst)
        for i, x in enumerate(late[8]):
            if um == 3 and mpre >= 8 and i == 2 * (mpre - 8):
                a(mlitem[0])
            a(x)
        if mlpos == 9:
            a(mlst)
        self.stamp(9)
        if um == 3:
            a(f"""
            s_movk_i32 {sCNT}, {NPOLL}
            s_waitcnt vmcnt({4 - max(0, mpre - 8)})
            A_MLCHK:
            v_cmp_ne_u32 vcc, {sTAG}, v18
            s_cbranch_vccnz A_MLREDO
            A_MLOK:
            """)
            self.stamp(10)
            a(oloads)
        a(f"""
        v_bfe_u32 v8, v0, 2, 2
        v_xor_b32 v9, {sW}, v8
        v_lshlrev_b32 v9, 6, v9
        v_lshl_add_u32 v9, v8, 12, v9
        v_lshl_add_u32 v9, v2, 8, v9
        v_and_b32 v8, 3, v0
        v_lshl_add_u32 v9, v8, 4, v9
        v_mul_u32_u24 v10, 288, v8
        v_lshl_add_u32 v10, v2, 4, v10
        s_mul_i32 s32, {sW}, 288
        v_lshlrev_b32 v11, 4, v3
        v_lshl_add_u32 v11, v2, 3, v11
        v_add_u32 v11, s32, v11
        v_and_b32 v12, 1, v0
        v_lshlrev_b32 v12, 4, v12
        s_mov_b32 s32, 0xffff
        v_lshlrev_b32 v12, v12, s32
        v_lshrrev_b32 v13, 1, v3
        """)
        for i in range(4):
            a(f"v_cmp_eq_u32 vcc, {i}, v13\nv_cndmask_b32 v{20+i}, 0, v12, vcc")
        a(f"""
        v_bfe_u32 v12, v0, 1, 1
        v_lshlrev_b32 v12, 6, v12
        v_lshl_add_u32 v12, v2, 4, v12
        s_lshl_b32 s60, {sID}, 9
        s_lshl_b32 s32, {sW}, 7
        s_add_u32 s60, s60, s32
        s_add_u32 s60, s60, {H3B}
        """)
        self.premask(96, 0x0005000500050005)
        a("s_barrier" if um == 3 else "s_waitcnt vmcnt(9)\ns_barrier")
        for s in range(4):
            for t in range(2):
                for u in range(2):
                    a(f"ds_read_b64_tr_b16 {vr(128+(s*2+t)*4+2*u, 2)}, v9 offset:{u*16384 + s*1024 + t*8}")
        if um != 3:
            if um:
                self.mpoll([mlitem], 4)
            else:
                self.poll(*mlitem)
            self.stamp(10)
            a(oloads)
        a("v_mov_b32 v18, v16")
        for c in ("quad_perm:[1,0,3,2]", "quad_perm:[2,3,0,1]", "row_half_mirror", "row_mirror"):
            self.dpp("v_max_f32", [18], c)
        self.swapred("v_max_f32", [18], [19], 16)
        self.swapred("v_max_f32", [18], [19], 32)
        a("v_sub_f32 v16, v16, v18\nv_exp_f32 v16, v16\nv_mul_f32 v18, v16, v17")
        for c in ("quad_perm:[1,0,3,2]", "quad_perm:[2,3,0,1]", "row_half_mirror", "row_mirror"):
            self.dpp("v_add_f32", [18], c)
        self.swapred("v_add_f32", [18], [19], 16)
        self.swapred("v_add_f32", [18], [19], 32)
        a("v_rcp_f32 v18, v18\nv_mul_f32 v16, v16, v18\nv_cvt_pk_bf16_f32 v16, v16, v16")
        for j in range(8):
            for i in range(4):
                a(f"v_and_b32_dpp v{192+4*j+i}, v16, v{20+i} row_newbcast:{j} row_mask:0xf bank_mask:0xf")
        chk = self.sent([160 + 4 * j for j in range(8)], 18)
        a(f"""
        s_movk_i32 {sCNT}, {NPOLL}
        A_OWAIT:
        s_waitcnt vmcnt(0)
        {chk}
        s_cbranch_vccnz A_OREDO
        A_OOK:
        """)
        self.stamp(11)
        for j in range(8):
            c = "0" if j < 2 else vr(24 + 4 * (j & 1))
            a(f"v_mfma_f32_16x16x32_bf16 {vr(24+4*(j&1))}, {vr(192+4*j)}, {vr(160+4*j)}, {c}")
        a(f"""
        s_mov_b32 exec_hi, 0
        v_pk_add_f32 v[24:25], v[24:25], v[28:29]
        v_pk_add_f32 v[26:27], v[26:27], v[30:31]
        v_cvt_pk_bf16_f32 v24, v24, v25
        v_cvt_pk_bf16_f32 v25, v26, v27
        ds_write_b64 v11, v[24:25] offset:{XU}
        s_mov_b32 exec_hi, -1
        s_waitcnt lgkmcnt(0)
        s_barrier
        """)
        for s in range(4):
            a(f"ds_read_b128 {vr(32+4*s)}, v10 offset:{XU + s*64}")
        for s in range(4):
            a(f"s_waitcnt lgkmcnt({3-s})")
            for t in range(2):
                c = "0" if s == 0 else vr(24 + 4 * t)
                a(f"v_mfma_f32_16x16x32_bf16 {vr(24+4*t)}, {vr(128+(s*2+t)*4)}, {vr(32+4*s)}, {c}")
        self.dpp("v_add_f32", range(24, 32), "quad_perm:[1,0,3,2]")
        a("s_mov_b64 exec, s[96:97]")
        for i in range(4):
            a(f"v_cvt_pk_bf16_f32 v{32+i}, v{24+2*i}, v{25+2*i}")
        a(f"buffer_store_dwordx4 v[32:35], v12, {WS}, s60 offen sc1")
        self.stamp(12)
        a(f"""
        s_branch FIN
        A_REDO:
        s_sub_u32 {sCNT}, {sCNT}, 1
        s_cbranch_scc1 A_QOK
        s_waitcnt lgkmcnt(0)
        s_barrier
        s_branch A_QDMA
        A_QW0:
        s_waitcnt vmcnt(0)
        s_branch A_QW
        A_OREDO:
        s_sub_u32 {sCNT}, {sCNT}, 1
        s_cbranch_scc1 A_OOK
        {self.mchecks(oitems, 4) + chr(10) + self.mloads(oitems, 4) if um else oloads}
        s_branch A_OWAIT
        """)
        if um == 3:
            a(f"""
            A_MLREDO:
            s_sub_u32 {sCNT}, {sCNT}, 1
            s_cbranch_scc1 A_MLOK
            s_mov_b64 exec, vcc
            {mlitem[0]}
            s_mov_b64 exec, -1
            s_waitcnt vmcnt(0)
            s_branch A_MLCHK
            """)
        a(f"""
        A_F2POLL:
        """)
        self.poll(f2, f"v_cmp_ne_u32 vcc, {sTAG}, v13")
        a("s_branch A_F2OK")

    def tagpoll(self, voff, soff, r, depth):
        if self.opt.get("mt", 0):
            return self.mpoll([(f"buffer_load_dwordx3 {vr(r+4*j, 3)}, {voff}, {WS}, {soff} offen offset:{1024*j} sc1",
                                f"v_cmp_ne_u32 vcc, {sTAG}, v{r+4*j+2}") for j in range(2)], 6)
        self.poll(f"buffer_load_dwordx3 {vr(r, 3)}, {voff}, {WS}, {soff} offen sc1\n"
                  f"buffer_load_dwordx3 {vr(r+4, 3)}, {voff}, {WS}, {soff} offen offset:1024 sc1",
                  f"v_cmp_ne_u32 s[32:33], {sTAG}, v{r+2}\nv_cmp_ne_u32 vcc, {sTAG}, v{r+6}\ns_or_b64 vcc, vcc, s[32:33]", depth)

    def smallgemm(self, xb, wbase):
        a = self.a
        for s in range(4):
            a(f"ds_read_b128 {vr(88+4*s)}, v9 offset:{xb - X1 + s*1024}")
        for s in range(4):
            a(f"s_waitcnt lgkmcnt({3-s})")
            for t in range(2):
                c = "0" if s == 0 else vr(104 + 4 * t)
                a(f"v_mfma_f32_16x16x32_bf16 {vr(104+4*t)}, {vr(wbase+(s*2+t)*4)}, {vr(88+4*s)}, {c}")
        for t in range(2):
            for r in range(4):
                a(f"v_add_f32_dpp v{112+r}, v{104+4*t+r}, v{104+4*t+r} row_ror:8 row_mask:0xf bank_mask:{'0x3' if t == 0 else '0xc'}")
        self.dpp("v_add_f32", range(112, 116), "quad_perm:[2,3,0,1]")

    def wrole(self):
        a = self.a
        self.sect = "W"
        a(f"""
        WROLE:
        s_lshr_b32 s60, {sID}, 2
        s_and_b32 s61, {sID}, 3
        s_lshl2_add_u32 s62, s61, {sW}
        s_lshl_b32 s32, s62, 18
        s_lshl_b32 s33, s60, 8
        s_add_u32 s32, s32, s33
        s_lshl_b32 s33, {sW}, 13
        s_mov_b32 m0, s33
        v_lshlrev_b32 v4, 2, v2
        v_xor_b32 v4, v4, v3
        v_lshlrev_b32 v4, 4, v4
        v_lshl_add_u32 v4, v2, 13, v4
        v_xor_b32 v5, v2, v3
        v_lshlrev_b32 v5, 4, v5
        v_lshl_add_u32 v124, v2, 13, v5
        v_xor_b32 v125, 64, v124
        v_xor_b32 v126, 128, v124
        v_xor_b32 v127, 192, v124
        s_mov_b32 s100, s32
        s_waitcnt lgkmcnt(0)
        """)
        self.srd(R1, 8, 1 << 22)
        self.srd(R2, 10, 1 << 22)
        ukpos = self.opt.get("ukpos", 0)

        def wdma(m):
            R, so = ((R1, "s32"), (R2, "s100"))[m]
            for j in range(8):
                if j == 4 or (m == 1 and j == 0):
                    a(f"s_add_u32 m0, s33, {m*WK + (j>>2)*4096}")
                v = 4 if m == 0 else 124 + (j >> 1)
                a(f"buffer_load_dwordx4 v{v}, {R}, {so} offen offset:{(j&3)*1024} nt lds")
                if j < 7:
                    a(f"s_add_u32 {so}, {so}, {32768 - 1024 + (4096 if j == 3 else 0)}")

        wdma(0)
        if ukpos == 0:
            wdma(1)
        kt, kp = self.opt.get("kt", 0), self.opt.get("kp", 0)

        def ktouch():
            for j in range(kt):
                a(f"buffer_load_dword v{253-j}, v254, {R4}, 0 offen\nv_add_u32 v254, 0x2000, v254")

        if kt:
            self.srd(R4, 6, 1 << 24)
            a(f"""
            s_lshl2_add_u32 s32, {sID}, {sW}
            s_lshl_b32 s32, s32, 15
            s_add_u32 s32, s32, {32768 - 8192 * kt}
            v_lshl_add_u32 v254, v0, 7, s32
            """)
        if kp == 0:
            ktouch()
        a(f"s_load_dword {sTAG}, s[30:31], 0")
        self.srd(WS, 30, 0x10000000)
        self.stamp(1)
        a(f"""
        v_bfe_u32 v4, v0, 2, 2
        v_xor_b32 v5, {sW}, v4
        v_lshlrev_b32 v5, 6, v5
        v_lshrrev_b32 v6, 2, v0
        v_lshl_add_u32 v5, v6, 8, v5
        v_and_b32 v6, 3, v0
        v_lshl_add_u32 v10, v6, 4, v5
        v_lshl_add_u32 v5, v4, 3, v6
        v_lshlrev_b32 v5, 8, v5
        v_xor_b32 v7, v2, v3
        v_lshl_add_u32 v5, v7, 4, v5
        s_add_u32 s32, s33, {WK}
        v_add_u32 v11, s32, v5
        v_add_u32 v9, {X1}, v1
        s_lshl_b32 s32, {sW}, 10
        s_add_u32 s32, s32, {X1}
        v_bfe_u32 v4, v0, 1, 2
        v_lshlrev_b32 v4, 8, v4
        v_and_b32 v5, 1, v0
        v_lshl_add_u32 v4, v5, 6, v4
        v_lshl_add_u32 v4, v2, 4, v4
        v_and_b32 v6, 8, v0
        v_add3_u32 v12, v4, v6, s32
        v_bfe_u32 v4, v0, 3, 2
        v_lshlrev_b32 v4, 8, v4
        v_lshl_add_u32 v4, v5, 4, v4
        v_bfe_u32 v6, v0, 1, 1
        v_lshl_add_u32 v4, v6, 6, v4
        v_and_b32 v6, 32, v0
        v_add_u32 v4, v4, v6
        v_bfe_u32 v6, v0, 2, 1
        v_lshl_add_u32 v4, v6, 3, v4
        v_add_u32 v13, s32, v4
        v_lshrrev_b32 v4, 2, v0
        v_lshl_add_u32 v4, v4, 1, v5
        v_lshlrev_b32 v14, 4, v4
        v_lshlrev_b32 v4, 15, v6
        v_lshl_add_u32 v4, v2, 4, v4
        v_and_b32 v6, 8, v0
        v_add_u32 v15, v4, v6
        v_lshlrev_b32 v120, 9, v0
        s_lshl_b32 s62, s62, 11
        s_and_b32 s63, {sXCD}, {self.opt.get("r1", 1) - 1}
        s_lshl_b32 s63, s63, 15
        s_add_u32 s62, s62, s63
        s_add_u32 s62, s62, {H1}
        s_lshl2_add_u32 s63, s60, {sW}
        s_lshl_b32 s63, s63, 11
        s_add_u32 s63, s63, {HQ}
        s_lshl_b32 s34, s61, 9
        s_add_u32 s34, s34, s63
        s_lshl_b32 s35, s61, 5
        s_add_u32 s35, s35, s60
        s_lshl_b32 s2, s35, 2
        s_add_u32 s2, s2, {FLAG}
        s_lshl_b32 s0, {sW}, {7 + self.opt.get("rf", 5)}
        s_add_u32 s2, s2, s0
        s_lshl2_add_u32 s35, s35, {sW}
        s_lshl_b32 s35, s35, 6
        s_add_u32 s35, s35, {H2}
        s_mov_b32 s0, 0x{(1 << (1 << (self.opt.get("rf", 5) - 2))) - 1:x}
        s_mov_b32 s1, 0
        """)
        if self.opt.get("touch", 1):
            a(f"buffer_load_dwordx3 v[80:82], v1, {WS}, s63 offen sc1\nbuffer_load_dwordx3 v[84:86], v1, {WS}, s63 offen offset:1024 sc1")
        self.premask(96, 0x3333333333333333)
        self.premask(98, 0x1111111111111111)
        a(f"""
        s_waitcnt vmcnt({(2 if self.opt.get("touch", 1) else 0) + (8 if ukpos == 0 else (0, 0, 4, 6)[ukpos]) + (kt if kp == 0 else 0)}) lgkmcnt(0)
        s_add_u32 {sTAG}, {sTAG}, 0x{TAGC:x}
        """)
        if ukpos:
            wdma(1)
        if ukpos > 1:
            a("s_waitcnt vmcnt(10)")
        self.stamp(2)
        a(f"""
        s_barrier
        v_mov_b32 v118, {sTAG}
        v_mov_b32 v119, {sTAG}
        """)
        for s in range(4):
            for t in range(2):
                for u in range(2):
                    a(f"ds_read_b64_tr_b16 {vr(16+(s*2+t)*4+2*u, 2)}, v10 offset:{s*8192 + u*4096 + t*8}")
        self.tagpoll("v1", "s62", 80, self.opt.get("d1", 1))
        self.stamp(3)
        if kp == 1:
            ktouch()
        a(f"""
        ds_write_b64 v12, v[80:81]
        ds_write_b64 v12, v[84:85] offset:128
        s_waitcnt lgkmcnt(0)
        s_barrier
        """)
        self.smallgemm(X1, 16)
        a(f"""
        s_mov_b64 exec, s[96:97]
        v_cvt_pk_bf16_f32 v116, v112, v113
        v_cvt_pk_bf16_f32 v117, v114, v115
        buffer_store_dwordx4 v[116:119], v14, {WS}, s34 offen sc1
        s_mov_b64 exec, -1
        """)
        self.stamp(4)
        for s in range(4):
            if s:
                a(f"v_xor_b32 v4, {64*s}, v11")
            for t in range(2):
                a(f"ds_read_b128 {vr(48+(s*2+t)*4)}, v{4 if s else 11} offset:{t*1024}")
        self.tagpoll("v1", "s63", 80, self.opt.get("dQ", 1))
        self.stamp(5)
        flag = f"s_mov_b64 exec, s[0:1]\nbuffer_store_dword v118, v120, {WS}, s2 offen sc1\ns_mov_b64 exec, -1"
        if self.opt.get("earlyflag", 1) == 2:
            a(flag)
        a(f"""
        ds_write_b64 v13, v[80:81] offset:{X2 - X1}
        ds_write_b64 v13, v[84:85] offset:{X2 - X1 + 128}
        s_waitcnt lgkmcnt(0)
        s_barrier
        """)
        if self.opt.get("earlyflag", 1) == 1:
            a(flag)
        self.smallgemm(X2, 48)
        self.dpp("v_add_f32", range(112, 116), "quad_perm:[1,0,3,2]")
        a("s_mov_b64 exec, s[98:99]")
        for r in range(4):
            a(f"v_mul_f32 v{112+r}, 0x{QSCALE:x}, v{112+r}")
        a(f"""
        v_cvt_pk_bf16_f32 v116, v112, v113
        v_cvt_pk_bf16_f32 v117, v114, v115
        buffer_store_dwordx2 v[116:117], v15, {WS}, s35 offen sc1
        """)
        if not self.opt.get("earlyflag", 1):
            a(flag)
        else:
            a("s_mov_b64 exec, -1")
        self.stamp(6)
        a(f"""
        v_mov_b32 v64, -1
        v_mov_b32 v65, -1
        v_mov_b32 v66, -1
        v_mov_b32 v67, -1
        s_lshl2_add_u32 s32, {sID}, {sW}
        s_lshl_b32 s32, s32, 13
        s_add_u32 s32, s32, {H3}
        s_add_u32 s34, s32, 4096
        s_add_u32 s2, s2, {FLAG2 - FLAG}
        """)
        for j in range(0 if self.opt.get("noclr") == 1 else 8):
            a(f"buffer_store_dwordx4 v[64:67], v1, {WS}, {'s32' if j < 4 else 's34'} offen offset:{(j&3)*1024} sc1")
        cw = self.opt.get("cw", 0)

        def flag2(n):
            a(f"s_waitcnt vmcnt({n})")
            self.stamp(12)
            a("s_barrier\n" + flag)

        uvt = self.opt.get("uvt", 0)
        if uvt:
            self.srd(R4, 12, 1 << 22)
            a(f"""
            s_and_b32 s32, {sID}, 3
            s_lshl2_add_u32 s32, s32, {sW}
            s_lshl_b32 s32, s32, 18
            s_lshr_b32 s33, {sID}, 2
            s_lshl_b32 s33, s33, 8
            s_add_u32 s32, s32, s33
            v_lshrrev_b32 v4, 1, v0
            v_and_b32 v5, 1, v0
            v_lshlrev_b32 v5, 7, v5
            v_lshl_add_u32 v4, v4, 13, v5
            """)
        tl = f"buffer_load_dword v68, v4, {R4}, s32 offen"
        if uvt & 4:
            tl += f"\nbuffer_load_dword v69, v4, {R4}, s32 offen offset:64"
        if uvt & 1:
            a(tl)
        if cw == 0:
            flag2(len(tl.splitlines()) if uvt & 1 else 0)
        if uvt & 2:
            a(tl)
        a(f"""
        s_and_b32 s60, {sID}, 15
        s_and_b32 s61, {sID}, 3
        s_lshl2_add_u32 s61, {sXCD}, s61
        s_cmp_lt_u32 s60, 8
        s_cbranch_scc1 W_SETO
        s_cmp_lt_u32 s60, 12
        s_cbranch_scc1 W_SETM
        s_cmp_ge_u32 s61, 28
        s_cbranch_scc1 {"W_IDLE" if cw else "FIN"}
        """)
        self.srd(R1, 18, 512 * 3584)
        a(f"""
        s_movk_i32 s62, 3584
        s_lshl_b32 s32, s61, 7
        s_branch W_LOAD
        W_SETM:
        """)
        self.srd(R1, 24, 512 * 6144)
        a(f"""
        s_movk_i32 s62, 6144
        s_lshl_b32 s32, s61, 7
        s_add_u32 s32, s32, 2048
        s_branch W_LOAD
        W_SETO:
        """)
        self.srd(R1, 14, 1 << 22)
        a(f"""
        s_movk_i32 s62, 1024
        s_lshl_b32 s32, {sXCD}, 19
        s_lshl_b32 s33, s60, 7
        s_add_u32 s32, s32, s33
        W_LOAD:
        s_lshl_b32 s33, {sW}, 7
        s_mul_i32 s33, s33, s62
        s_add_u32 s32, s32, s33
        s_lshl_b32 s33, s62, 3
        s_sub_u32 s33, s33, 1024
        s_add_u32 s63, s33, 4096
        s_lshl_b32 s34, {sW}, 14
        v_lshrrev_b32 v4, 3, v0
        v_mul_lo_u32 v4, v4, s62
        v_and_b32 v5, 1, v2
        v_lshlrev_b32 v5, 1, v5
        v_and_b32 v6, 7, v0
        v_xor_b32 v5, v5, v6
        v_lshl_add_u32 v6, v5, 4, v4
        v_xor_b32 v5, 4, v5
        v_lshl_add_u32 v7, v5, 4, v4
        """)
        gate = self.opt.get("gate", 0)
        if gate:
            gm = (0xff if gate & 1 else 0) | (0xf00 if gate & 2 else 0) | (0xf000 if gate & 4 else 0)
            a(f"""
            s_lshl2_add_u32 s35, {sID}, {sW}
            s_lshl_b32 s35, s35, 7
            s_add_u32 s35, s35, {ML + 8 if self.opt.get("gpos", 2) == 9 else GATE}
            v_mov_b32 v9, 0
            s_bitcmp1_b32 {gm}, s60
            s_cbranch_scc0 W_NOGATE
            """)
            gp = (f"buffer_load_dword v8, v9, {WS}, s35 offen sc1", f"v_cmp_ne_u32 vcc, {sTAG}, v8")
            self.poll(*gp)
            a("W_NOGATE:")
        for j in range(16):
            if j % 4 == 0:
                a(f"s_add_u32 m0, s34, {W2R + j*1024}")
            a(f"buffer_load_dwordx4 v{6+(j&1)}, {R1}, s32 offen offset:{(j&3)*1024} nt lds")
            if j < 15:
                a(f"s_add_u32 s32, s32, {'s63' if j % 4 == 3 else 's33'}")
        if cw:
            flag2(16)
        a(f"""
        v_bfe_u32 v4, v0, 2, 2
        v_lshl_add_u32 v5, v2, 3, v4
        v_lshlrev_b32 v5, 7, v5
        v_bfe_u32 v6, v0, 3, 2
        v_xor_b32 v6, {sW}, v6
        v_lshl_add_u32 v5, v6, 5, v5
        v_and_b32 v6, 3, v0
        v_lshl_add_u32 v5, v6, 3, v5
        v_add_u32 v10, {W2R}, v5
        s_cmp_lt_u32 s60, 8
        s_cbranch_scc1 W_WAIT
        s_cmp_lt_u32 s60, 12
        s_cbranch_scc1 W_PREM
        """)
        self.srd(R2, 20, 1792 * 1024)
        a(f"""
        s_lshl_b32 s32, s61, 16
        s_add_u32 s32, s32, s34
        v_xor_b32 v5, 16, v1
        v_xor_b32 v6, 32, v1
        v_xor_b32 v7, 48, v1
        """)
        if gate & 8:
            self.poll(*gp)
        for j in range(16):
            if j % 4 == 0:
                a(f"s_add_u32 m0, s34, {j*1024}")
                if j:
                    a("s_add_u32 s32, s32, 4096")
            a(f"buffer_load_dwordx4 v{[1, 5, 6, 7][j&3]}, {R2}, s32 offen offset:{(j&3)*1024} nt lds")
        a(f"""
        s_branch W_WAIT
        W_PREM:
        """)
        self.srd(R3, 22, 2048)
        a(f"""
        s_lshl_b32 s32, {sW}, 9
        v_lshlrev_b32 v4, 3, v0
        buffer_load_dwordx2 v[16:17], v4, {R3}, s32 offen
        s_lshr_b32 s33, {sW}, 1
        s_lshl_b32 s33, s33, 5
        s_add_u32 s32, s32, s33
        s_add_u32 s32, s32, {SL}
        v_add_u32 v4, s32, v4
        s_waitcnt vmcnt(0)
        """)
        self.silu([16, 17], 20)
        a(f"""
        ds_write_b64 v4, v[16:17]
        W_WAIT:
        s_waitcnt vmcnt(0) lgkmcnt(0)
        """)
        self.stamp(7)
        a("s_barrier")
        for s in range(16):
            for u in range(2):
                a(f"ds_read_b64_tr_b16 {ar(4*s+2*u, 2)}, v10 offset:{s*4096 + u*512}")
        a(f"""
        s_cmp_lt_u32 s60, 8
        s_cbranch_scc0 W_NOTO
        """)
        self.orole()
        a(f"""
        W_NOTO:
        v_and_b32 v4, 3, v0
        v_mul_u32_u24 v4, 2112, v4
        v_bfe_u32 v5, v0, 2, 1
        v_mul_u32_u24 v5, 1056, v5
        v_lshl_add_u32 v5, v2, 4, v5
        s_cmp_lt_u32 s60, 12
        s_cbranch_scc1 W_M2
        """)
        self.ffn()
        if cw:
            a("W_IDLE:")
            flag2(0)
            a("s_branch FIN")
        a("W_M2:")
        self.m2()

    def actgemm(self, addr, fill=None):
        a = self.a
        fill = list(fill or [])
        for s in range(12):
            a(f"ds_read_b128 {vr(128+4*s)}, v{addr} offset:{s*64}")
        for s in range(16):
            a(f"s_waitcnt lgkmcnt({min(11, 15-s)})")
            c = "0" if s < 2 else vr(104 + 4 * (s & 1))
            a(f"v_mfma_f32_16x16x32_bf16 {vr(104+4*(s&1))}, {vr(128+4*s)}, {ar(4*s)}, {c}")
            if s < 4:
                a(f"ds_read_b128 {vr(128+4*(s+12))}, v{addr} offset:{(s+12)*64}")
            for _ in range(3):
                if fill:
                    a(fill.pop(0))
        assert not fill

    def orole(self):
        a = self.a
        self.sect = "O"
        a(f"""
        s_lshl2_add_u32 s34, {sXCD}, {sW}
        s_lshl_b32 s34, s34, 11
        s_add_u32 s34, s34, {H3B}
        v_lshrrev_b32 v4, 5, v0
        v_bfe_u32 v5, v0, 2, 2
        v_lshl_add_u32 v4, v4, 2, v5
        v_and_b32 v5, 1, v2
        v_lshl_add_u32 v4, v4, 1, v5
        v_and_b32 v5, 3, v0
        v_lshl_add_u32 v4, v4, 2, v5
        v_lshlrev_b32 v16, 4, v4
        v_and_b32 v4, 1, v2
        v_lshlrev_b32 v4, 3, v4
        v_lshrrev_b32 v5, 1, v2
        v_or_b32 v4, v4, v5
        v_lshlrev_b32 v4, 4, v4
        v_xor_b32 v4, v4, v1
        s_lshl_b32 s32, {sW}, 11
        s_add_u32 s32, s32, {XO}
        v_add_u32 v11, s32, v4
        v_xor_b32 v12, 32, v11
        v_and_b32 v4, 3, v0
        v_bfe_u32 v5, v0, 2, 1
        v_lshl_add_u32 v6, v4, 1, v5
        v_lshlrev_b32 v6, 8, v6
        v_xor_b32 v4, v4, v2
        v_lshl_add_u32 v6, v4, 4, v6
        v_lshl_add_u32 v6, v5, 7, v6
        v_bfe_u32 v4, v0, 3, 1
        v_lshl_add_u32 v6, v4, 6, v6
        v_add_u32 v13, {XO}, v6
        v_xor_b32 v14, 128, v13
        v_lshlrev_b32 v5, 5, v5
        v_lshl_add_u32 v15, v2, 3, v5
        v_and_b32 v4, 3, v0
        v_lshl_add_u32 v15, v4, 15, v15
        s_lshl_b32 s35, {sXCD}, {12 - self.opt.get("h4c", 1)}
        s_lshl2_add_u32 s32, s60, {sW}
        s_lshl_b32 s32, s32, {7 - self.opt.get("h4c", 1)}
        s_add_u32 s35, s35, s32
        s_add_u32 s35, s35, {H4}
        """)
        self.premask(96, 0x0011001100110011 * ((1 << self.opt.get("r4", 1)) - 1))
        if self.opt.get("mo", 1):
            self.mpoll([(f"buffer_load_dwordx4 {vr(80+4*j)}, v16, {WS}, s34 offen offset:{1024*j} sc1", self.sent([80 + 4 * j], 4)) for j in range(2)], 4)
        else:
          self.poll(f"buffer_load_dwordx4 v[80:83], v16, {WS}, s34 offen sc1\n"
                  f"buffer_load_dwordx4 v[84:87], v16, {WS}, s34 offen offset:1024 sc1", self.sent([80, 84], 4), self.opt.get("dO", 1))
        self.stamp(8)
        a(f"""
        ds_write_b128 v11, v[80:83]
        ds_write_b128 v12, v[84:87] offset:1024
        s_waitcnt lgkmcnt(0)
        s_barrier
        """)
        for sp in range(8):
            a(f"ds_read_b128 {vr(128+4*sp)}, v{13+(sp&1)} offset:{(sp>>1)*2048}")
        for sp in range(8):
            a(f"s_waitcnt lgkmcnt({7-sp})")
            for k in range(2):
                c = "0" if sp == 0 else vr(104 + 4 * k)
                a(f"v_mfma_f32_16x16x32_bf16 {vr(104+4*k)}, {ar(4*(2*sp+k))}, {vr(128+4*sp)}, {c}")
        for r in range(4):
            a(f"v_add_f32_dpp v{112+r}, v{108+r}, v{104+r} row_ror:8 row_mask:0xf bank_mask:0xf")
        self.dpp("v_add_f32", range(112, 116), "quad_perm:[1,0,3,2]")
        self.dpp("v_add_f32", range(112, 116), "quad_perm:[2,3,0,1]")
        a(f"""
        s_mov_b64 exec, s[96:97]
        v_cvt_pk_bf16_f32 v116, v112, v113
        v_cvt_pk_bf16_f32 v117, v114, v115
        buffer_store_dwordx2 v[116:117], v15, {WS}, s35 offen sc1
        """)
        self.stamp(9)
        a("s_branch FIN")

    def selmat(self, esel, on):
        a = self.a
        a(f"""
        v_and_b32 v24, 1, v{esel}
        v_lshlrev_b32 v24, 4, v24
        s_movk_i32 s32, 0x3f80
        v_lshlrev_b32 v24, v24, s32
        v_lshrrev_b32 v25, 1, v{esel}
        v_lshl_or_b32 v25, v{on}, 2, v25
        """)
        for i in range(4):
            a(f"v_cmp_eq_u32 vcc, {i}, v25\nv_cndmask_b32 v{20+i}, 0, v24, vcc")

    def ffn(self):
        a = self.a
        self.sect = "F"
        a(f"""
        s_mov_b32 s32, {YB}
        v_add3_u32 v11, v4, v5, s32
        v_bfe_u32 v4, v0, 2, 2
        v_lshl_add_u32 v5, v2, 3, v4
        v_lshlrev_b32 v5, 10, v5
        v_lshl_add_u32 v5, v4, 4, v5
        v_and_b32 v4, 3, v0
        v_lshl_add_u32 v5, v4, 6, v5
        s_lshl_b32 s33, {sW}, 8
        v_add_u32 v4, s33, v5
        """)
        for tp in range(4):
            if tp:
                a(f"v_xor_b32 v{4+tp}, {16*tp}, v4")
            for th in range(2):
                for s in range(2):
                    for u in range(2):
                        t = 2 * tp + th
                        a(f"ds_read_b64_tr_b16 {ar(64+(t*2+s)*4+2*u, 2)}, v{4+tp} offset:{s*32768 + u*4096 + th*8}")
        self.srd(R2, 4, 2048)
        a(f"""
        v_lshrrev_b32 v4, 5, v0
        v_and_b32 v5, 1, v2
        v_lshl_add_u32 v6, v3, 1, v5
        v_lshlrev_b32 v7, 3, v6
        v_lshl_add_u32 v8, v4, 10, v7
        buffer_load_dwordx2 v[16:17], v8, {R2}, s33 offen
        v_mul_u32_u24 v8, 1056, v4
        s_add_u32 s32, s33, {YB}
        v_add3_u32 v12, v8, v7, s32
        v_lshlrev_b32 v7, 4, v6
        v_lshl_add_u32 v13, v4, 13, v7
        s_lshl_b32 s34, {sW}, 9
        s_add_u32 s34, s34, {M2O}
        s_add_u32 s35, s34, 4096
        v_and_b32 v6, 31, v0
        v_lshlrev_b32 v6, 3, v6
        v_lshl_add_u32 v6, v4, 10, v6
        s_add_u32 s32, s33, {ST}
        v_add_u32 v14, s32, v6
        v_lshlrev_b32 v6, 4, v3
        v_lshl_add_u32 v6, v4, 8, v6
        v_lshl_add_u32 v6, v5, 10, v6
        v_add_u32 v15, {ST}, v6
        v_lshrrev_b32 v6, 1, v3
        v_lshl_add_u32 v6, v4, 5, v6
        v_lshl_add_u32 v6, v6, {2 - self.opt.get("h4c", 1)}, v5
        v_and_b32 v7, 1, v0
        v_lshl_add_u32 v6, v6, 1, v7
        v_lshlrev_b32 v26, 4, v6
        s_and_b32 s62, {sXCD}, {self.opt.get("r4", 1) - 1}
        s_lshl_b32 s62, s62, 13
        s_add_u32 s62, s62, s33
        s_lshl_b32 s62, s62, {2 - self.opt.get("h4c", 1)}
        s_add_u32 s62, s62, {H4}
        s_add_u32 s63, s62, {8192 >> self.opt.get("h4c", 1)}
        s_add_u32 s0, s62, {16384 >> self.opt.get("h4c", 1)}
        s_add_u32 s1, s62, {24576 >> self.opt.get("h4c", 1)}
        v_mul_u32_u24 v6, 160, v5
        v_lshl_add_u32 v6, v3, 1, v6
        s_lshl_b32 s32, {sW}, 5
        s_add_u32 s32, s32, {AB}
        v_add_u32 v27, s32, v6
        v_bfe_u32 v6, v0, 2, 1
        v_mul_u32_u24 v6, 160, v6
        v_lshl_add_u32 v6, v2, 4, v6
        v_add_u32 v28, {AB}, v6
        v_bfe_u32 v6, v0, 3, 1
        v_mul_u32_u24 v7, 7168, v6
        v_lshl_add_u32 v7, v5, 7, v7
        v_and_b32 v8, 7, v0
        v_lshl_add_u32 v29, v8, 4, v7
        v_xor_b32 v6, v6, v5
        s_mul_i32 s2, {sW}, 14336
        s_lshl_b32 s32, s61, 8
        s_add_u32 s2, s2, s32
        s_add_u32 s2, s2, {H5}
        """)
        self.selmat(8, 6)
        self.poll(f"buffer_load_dwordx4 v[32:35], v13, {WS}, s34 offen sc1\n"
                  f"buffer_load_dwordx4 v[36:39], v13, {WS}, s34 offen offset:2048 sc1\n"
                  f"buffer_load_dwordx4 v[40:43], v13, {WS}, s35 offen sc1", self.sent(range(32, 44), 4))
        self.stamp(8)
        for r in range(4):
            a(f"v_add_f32 v{40+r}, 1.0, v{40+r}")
        a(f"""
        v_cvt_pk_bf16_f32 v4, v40, v41
        v_cvt_pk_bf16_f32 v5, v42, v43
        v_cvt_pk_bf16_f32 v6, v36, v37
        v_cvt_pk_bf16_f32 v7, v38, v39
        ds_write_b64 v12, v[4:5] offset:2112
        ds_write_b64 v12, v[6:7] offset:4224
        v_lshlrev_b32 v40, 16, v4
        v_and_b32 v41, 0xffff0000, v4
        v_lshlrev_b32 v42, 16, v5
        v_and_b32 v43, 0xffff0000, v5
        v_lshlrev_b32 v36, 16, v16
        v_and_b32 v37, 0xffff0000, v16
        v_lshlrev_b32 v38, 16, v17
        v_and_b32 v39, 0xffff0000, v17
        """)
        so = ["s62", "s63", "s0", "s1"]
        if self.opt.get("mf", 1):
            self.mpoll([(f"buffer_load_dwordx4 {vr(48+4*j)}, v26, {WS}, {so[j]} offen sc1", self.sent([48 + 4 * j, 50 + 4 * j], 4 + j)) for j in range(4)], 4)
        else:
          self.poll("\n".join(f"buffer_load_dwordx4 {vr(48+4*j)}, v26, {WS}, {so[j]} offen sc1" for j in range(4)),
                  self.sent(range(48, 64, 2), 4), self.opt.get("dF", 1))
        self.stamp(9)
        for j in range(4):
            c = "0" if j == 0 else "v[44:47]"
            a(f"v_mfma_f32_16x16x32_bf16 v[44:47], v[20:23], {vr(48+4*j)}, {c}")
        a(f"""
        v_pk_fma_f32 v[36:37], v[32:33], v[44:45], v[36:37]
        v_pk_fma_f32 v[38:39], v[34:35], v[46:47], v[38:39]
        v_pk_mul_f32 v[40:41], v[40:41], v[36:37]
        v_pk_mul_f32 v[42:43], v[42:43], v[38:39]
        v_cvt_pk_bf16_f32 v4, v40, v41
        v_cvt_pk_bf16_f32 v5, v42, v43
        ds_write_b64 v12, v[4:5]
        v_pk_add_f32 v[6:7], v[36:37], v[38:39]
        v_pk_mul_f32 v[8:9], v[36:37], v[36:37]
        v_pk_fma_f32 v[8:9], v[38:39], v[38:39], v[8:9]
        v_add_f32 v6, v6, v7
        v_add_f32 v7, v8, v9
        ds_write_b64 v14, v[6:7]
        s_waitcnt lgkmcnt(0)
        s_barrier
        ds_read_b128 v[32:35], v15
        ds_read_b128 v[36:39], v15 offset:512
        """)
        d = lambda c: [f"v_add_f32_dpp v{r}, v{r}, v{r} {c} row_mask:0xf bank_mask:0xf" for r in (32, 33)] + ["s_nop 0"]
        fill = ["v_pk_add_f32 v[32:33], v[32:33], v[34:35]", "v_pk_add_f32 v[36:37], v[36:37], v[38:39]",
                "v_pk_add_f32 v[32:33], v[32:33], v[36:37]"]
        for c in ("quad_perm:[1,0,3,2]", "quad_perm:[2,3,0,1]", "row_half_mirror", "row_mirror"):
            fill += d(c)
        fill += ["v_mov_b32 v34, v32", "v_mov_b32 v35, v33", "s_nop 0",
                 "v_permlane32_swap_b32 v32, v34", "v_permlane32_swap_b32 v33, v35", "s_nop 0",
                 "v_pk_add_f32 v[32:33], v[32:33], v[34:35]", "v_mov_b32 v34, 0x3727c5ac",
                 "v_mul_f32 v32, 0x3b000000, v32", "v_fmac_f32 v34, 0x3b000000, v33",
                 "v_fma_f32 v34, -v32, v32, v34", "v_rsq_f32 v34, v34"]
        self.actgemm(11, fill)
        a(f"""
        s_mov_b32 exec_hi, 0
        v_pk_add_f32 v[104:105], v[104:105], v[108:109]
        v_add_f32 v106, v106, v110
        v_fma_f32 v104, -v32, v105, v104
        v_fma_f32 v104, v34, v104, v106
        v_max_f32 v104, 0, v104
        v_cvt_pk_bf16_f32 v104, v104, v104
        ds_write_b16 v27, v104
        s_mov_b32 exec_hi, -1
        s_waitcnt lgkmcnt(0)
        s_barrier
        ds_read_b128 v[32:35], v28
        ds_read_b128 v[36:39], v28 offset:64
        """)
        self.stamp(10)
        for s in range(2):
            a(f"s_waitcnt lgkmcnt({1-s})")
            for t in range(8):
                c = "0" if s == 0 else vr(128 + 4 * t)
                a(f"v_mfma_f32_16x16x32_bf16 {vr(128+4*t)}, {vr(32+4*s)}, {ar(64+(t*2+s)*4)}, {c}")
        a("s_mov_b32 exec_hi, 0")
        for i in range(4):
            a(f"v_cvt_pk_bf16_f32 v{40+i}, v{128+8*i}, v{132+8*i}")
        a(f"buffer_store_dwordx4 v[40:43], v29, {WS}, s2 offen sc1")
        self.stamp(11)
        a("s_branch FIN")

    def m2(self):
        a = self.a
        self.sect = "M"
        a(f"""
        v_add_u32 v11, {SL}, v5
        v_lshlrev_b32 v4, 2, v3
        v_lshl_add_u32 v12, v2, 13, v4
        s_lshl2_add_u32 s34, s61, {sW}
        s_lshl_b32 s34, s34, 6
        s_add_u32 s34, s34, {M2O}
        s_waitcnt lgkmcnt(0)
        """)
        self.actgemm(11)
        a(f"""
        s_mov_b32 exec_hi, 0
        v_add_f32 v104, v104, v108
        v_cvt_pk_bf16_f32 v104, v104, v104
        v_lshlrev_b32 v104, 16, v104
        buffer_store_dword v104, v12, {WS}, s34 offen sc1
        s_mov_b32 exec_hi, -1
        """)
        self.stamp(8)
        a(f"""
        s_cmp_lt_u32 s61, 24
        s_cbranch_scc1 FIN
        s_cmp_lg_u32 {sW}, 0
        s_cbranch_scc1 FIN
        s_sub_u32 s61, s61, 24
        """)
        self.srd(R2, 4, 2048)
        self.srd(R3, 26, 2048)
        a(f"""
        v_bfe_u32 v4, v0, 3, 1
        v_and_b32 v5, 7, v0
        v_lshl_add_u32 v6, v5, 2, v2
        v_lshlrev_b32 v7, 2, v6
        v_lshl_add_u32 v7, v4, 10, v7
        s_lshl_b32 s33, s61, 7
        buffer_load_dword v16, v7, {R2}, s33 offen
        v_lshlrev_b32 v7, 3, v6
        v_lshl_add_u32 v11, v4, 13, v7
        v_lshl_add_u32 v7, v4, 8, v7
        v_add_u32 v12, {XF}, v7
        v_bfe_u32 v6, v0, 2, 1
        v_lshl_add_u32 v6, v6, 2, v2
        v_and_b32 v7, 3, v0
        v_lshl_add_u32 v6, v6, 3, v7
        v_lshlrev_b32 v8, 2, v6
        v_lshl_add_u32 v13, v4, 13, v8
        v_lshl_add_u32 v8, v4, 8, v8
        v_add_u32 v14, {XF}, v8
        v_lshlrev_b32 v8, 1, v6
        v_lshl_add_u32 v15, v4, 10, v8
        v_lshrrev_b32 v8, 1, v5
        v_lshl_add_u32 v8, v2, 5, v8
        v_lshl_add_u32 v8, v8, {2 - self.opt.get("h4c", 1)}, v4
        v_and_b32 v26, 1, v0
        v_lshl_add_u32 v8, v8, 1, v26
        v_lshlrev_b32 v26, 4, v8
        s_lshl_b32 s34, s61, 8
        s_add_u32 s34, s34, {M2O}
        s_add_u32 s35, s34, 6144
        s_and_b32 s62, {sXCD}, {self.opt.get("r4", 1) - 1}
        s_lshl_b32 s62, s62, 13
        s_add_u32 s62, s62, s33
        s_lshl_b32 s62, s62, {2 - self.opt.get("h4c", 1)}
        s_add_u32 s62, s62, {H4}
        s_add_u32 s63, s62, {16384 >> self.opt.get("h4c", 1)}
        s_mul_i32 s0, s61, 7168
        s_add_u32 s0, s0, {H5}
        s_add_u32 s1, s0, 4096
        v_bfe_u32 v8, v0, 2, 2
        v_and_b32 v6, 1, v0
        v_lshl_add_u32 v8, v8, 1, v6
        v_bfe_u32 v6, v0, 1, 1
        """)
        self.selmat(8, 6)
        self.poll(f"buffer_load_dwordx2 v[32:33], v11, {WS}, s34 offen sc1\n"
                  f"buffer_load_dword v34, v13, {WS}, s35 offen sc1\n"
                  f"buffer_load_dword v35, v13, {WS}, s35 offen offset:16 sc1", self.sent(range(32, 36), 4))
        a("v_lshlrev_b32 v36, 16, v16\nv_and_b32 v37, 0xffff0000, v16")
        if self.opt.get("mf", 1):
            self.mpoll([(f"buffer_load_dwordx4 {vr(48+4*j)}, v26, {WS}, s{62+j} offen sc1", self.sent([48 + 4 * j, 50 + 4 * j], 4 + j)) for j in range(2)], 4)
        else:
          self.poll(f"buffer_load_dwordx4 v[48:51], v26, {WS}, s62 offen sc1\n"
                  f"buffer_load_dwordx4 v[52:55], v26, {WS}, s63 offen sc1", self.sent(range(48, 56, 2), 4))
        self.stamp(9)
        a(f"""
        v_mfma_f32_16x16x32_bf16 v[44:47], v[20:23], v[48:51], 0
        v_mfma_f32_16x16x32_bf16 v[44:47], v[20:23], v[52:55], v[44:47]
        v_pk_fma_f32 v[36:37], v[32:33], v[44:45], v[36:37]
        ds_write_b64 v12, v[36:37]
        s_waitcnt lgkmcnt(0)
        ds_read_b32 v36, v14
        ds_read_b32 v37, v14 offset:16
        s_cmp_lg_u32 s61, 0
        s_cbranch_scc1 W_NOGEN
        s_mov_b64 exec, 1
        buffer_store_dword v118, v0, {WS}, 0 offen sc1
        s_mov_b64 exec, -1
        W_NOGEN:
        """)
        if self.opt.get("m5", 0):
            self.mpoll([(f"buffer_load_dwordx4 {vr(48+4*j)}, v1, {WS}, {'s0' if j < 4 else 's1'} offen offset:{(j&3)*1024} sc1", self.sent([48 + 4 * j], 4)) for j in range(7)], 4)
        else:
          self.poll("\n".join(f"buffer_load_dwordx4 {vr(48+4*j)}, v1, {WS}, {'s0' if j < 4 else 's1'} offen offset:{(j&3)*1024} sc1" for j in range(7)),
                  self.sent(range(48, 76), 4), self.opt.get("d5", 3))
        self.stamp(10)
        for j in range(7):
            c = "0" if j < 2 else vr(40 + 4 * (j & 1))
            a(f"v_mfma_f32_16x16x32_bf16 {vr(40+4*(j&1))}, v[20:23], {vr(48+4*j)}, {c}")
        a(f"""
        s_waitcnt lgkmcnt(0)
        v_pk_add_f32 v[40:41], v[40:41], v[44:45]
        v_pk_fma_f32 v[36:37], v[34:35], v[40:41], v[36:37]
        v_cvt_pk_bf16_f32 v36, v36, v37
        buffer_store_short v36, v15, {R3}, s33 offen
        buffer_store_short_d16_hi v36, v15, {R3}, s33 offen offset:8
        """)
        self.stamp(11)

    def fin(self):
        a = self.a
        a("FIN:")
        if self.diag:
            a("s_mov_b64 exec, -1\ns_waitcnt vmcnt(0)")
            self.stamp(15)
            a(f"""
            s_waitcnt lgkmcnt(0)
            s_lshl2_add_u32 s32, s101, {sW}
            s_lshl_b32 s32, s32, 6
            s_add_u32 s32, s32, {STAMP}
            """)
            for i in range(16):
                a(f"v_mov_b32 v{16+i}, s{64+2*i}")
            a("s_mov_b64 exec, 1")
            for i in range(4):
                a(f"buffer_store_dwordx4 {vr(16+4*i)}, v0, {WS}, s32 offen offset:{16*i}")
        if self.probe:
            wg = self.opt.get("probewg")
            if wg is not None:
                a(f"s_cmp_lg_u32 s101, {wg}\ns_cbranch_scc1 EXIT")
            a(f"""
            s_waitcnt lgkmcnt(0)
            s_cmp_eq_u64 s[64:65], 0
            s_cbranch_scc1 EXIT
            s_add_u32 s32, s64, {self.opt.get("spin", 4000)}
            PROBE:
            s_memrealtime s[34:35]
            s_waitcnt lgkmcnt(0)
            s_sub_u32 s33, s34, s32
            s_cmp_lt_i32 s33, 0
            s_cbranch_scc1 PROBE
            """)
        a("EXIT:")

    def build(self):
        if self.diag:
            self.a("s_mov_b32 s101, s2")
        self.entry()
        self.arole()
        self.wrole()
        self.fin()
        return wrap(pad(self.a.text()), 256, 256, 163840)


if __name__ == "__main__":
    out = sys.argv[1]
    opts = dict(kv.split("=") for kv in sys.argv[2:])
    opts = {k: (int(v) if v.lstrip('-').isdigit() else v) for k, v in opts.items()}
    open(out, "w").write(G(**opts).build())
```

```python
import sys
from asmlib import Asm, wrap, KNAME
from hazard import pad

FLAG, FLAG2, HQ, H1 = 0x10000, 0x18000, 0x20000, 0xC0000
if 'rf=7' in sys.argv:
    FLAG, FLAG2 = 0x540000, 0x560000
SB = 0x60000
H4, H2, H3B, M2O, H5 = SB, SB + 0x20000, SB + 0x30000, SB + 0x44000, SB + 0x50000
SBC = 3
if 'sbc=0' not in sys.argv:
    SBC = 2
    H4, H2, H3B, M2O, H5 = SB + 0x30000, SB, SB + 0x10000, SB + 0x34000, SB + 0x20000
ML = 0x500000
GATE = 0x520000
H3 = 0x100000
STAMP = 200 << 20
TAGC = 0x9E3779B9
NPOLL = 20000

Q = 131072
SIL = Q + 8192
PB = Q
MX = Q + 8192 if 'mxk=0' in sys.argv else 49152
XU = 32768
WQ, WK, W2R = 0, 32768, 65536
X1, X2 = 131072, 135168
XO = 139264
YB = 139264
ST = 149504
AB = 151552
SL = 139264
XF = 152064

WS = "s[36:39]"
R1, R2, R3, R4 = "s[40:43]", "s[44:47]", "s[48:51]", "s[52:55]"
sW, sXCD, sID, sTAG, sCNT = "s3", "s56", "s58", "s59", "s57"
LOG2E = 0x3FB8AA3B
QSCALE = 0x3E0293EE


def vr(b, n=4):
    return f"v[{b}:{b+n-1}]"


def ar(b, n=4):
    return f"a[{b}:{b+n-1}]"


class G:
    def __init__(self, diag=False, **opt):
        self.a = Asm()
        self.diag = diag
        self.opt = opt
        self.sect = "E"
        p = opt.get("probe")
        self.probe = (p[0], int(p[1:])) if p else None

    def stamp(self, i):
        if self.diag:
            self.a(f"s_memrealtime s[{64+2*i}:{65+2*i}]")
        elif self.probe == (self.sect, i):
            self.a("s_memrealtime s[64:65]")

    def srd(self, r, ptr, size):
        b = int(r[2:4])
        self.a(f"s_mov_b64 s[{b}:{b+1}], s[{ptr}:{ptr+1}]\ns_mov_b32 s{b+2}, {size}")

    def execmask(self, m):
        lo, hi = m & 0xFFFFFFFF, m >> 32
        self.a(f"s_mov_b32 exec_lo, 0x{lo:x}\ns_mov_b32 exec_hi, 0x{hi:x}")

    def premask(self, s, m):
        lo, hi = m & 0xFFFFFFFF, m >> 32
        self.a(f"s_mov_b32 s{s}, 0x{lo:x}\ns_mov_b32 s{s+1}, 0x{hi:x}")

    def poll(self, loads, check, depth=1):
        a = self.a
        lp, ok = a.label("POLL"), a.label("POK")
        for _ in range(depth - 1):
            a(loads)
        a(f"s_movk_i32 {sCNT}, {NPOLL}\n{lp}:")
        a(loads)
        a(f"s_waitcnt vmcnt({(depth - 1) * len(loads.splitlines())})")
        a(check)
        a(f"""
        s_cbranch_vccz {ok}
        s_sub_u32 {sCNT}, {sCNT}, 1
        s_cbranch_scc0 {lp}
        {ok}:
        """)

    def mchecks(self, items, m0):
        s = []
        for j, (ld, chk) in enumerate(items):
            s.append(chk.replace("vcc", f"s[{m0+2*j}:{m0+2*j+1}]"))
        m = [f"s[{m0+2*j}:{m0+2*j+1}]" for j in range(len(items))]
        s.append(f"s_or_b64 vcc, {m[0]}, {m[-1]}")
        for x in m[1:-1]:
            s.append(f"s_or_b64 vcc, vcc, {x}")
        return "\n".join(s)

    def mloads(self, items, m0):
        s = []
        for j, (ld, chk) in enumerate(items):
            s.append(f"s_mov_b64 exec, s[{m0+2*j}:{m0+2*j+1}]\n{ld}")
        s.append("s_mov_b64 exec, -1")
        return "\n".join(s)

    def mpoll(self, items, m0):
        a = self.a
        lp, ck, ok = a.label("MPL"), a.label("MPC"), a.label("MPK")
        for ld, chk in items:
            a(ld)
        a(f"""
        s_movk_i32 {sCNT}, {NPOLL}
        s_branch {ck}
        {lp}:
        s_sub_u32 {sCNT}, {sCNT}, 1
        s_cbranch_scc1 {ok}
        {self.mloads(items, m0)}
        {ck}:
        s_waitcnt vmcnt(0)
        {self.mchecks(items, m0)}
        s_cbranch_scc1 {lp}
        {ok}:
        """)

    @staticmethod
    def sent(regs, t):
        regs = list(regs)
        if len(regs) == 1:
            return f"v_cmp_eq_u32 vcc, -1, v{regs[0]}"
        s = []
        if len(regs) % 2 == 0:
            s.append(f"v_max_u32 v{t}, v{regs[0]}, v{regs[1]}")
            regs = regs[2:]
        else:
            s.append(f"v_max3_u32 v{t}, v{regs[0]}, v{regs[1]}, v{regs[2]}")
            regs = regs[3:]
        while regs:
            s.append(f"v_max3_u32 v{t}, v{t}, v{regs[0]}, v{regs[1]}")
            regs = regs[2:]
        s.append(f"v_cmp_eq_u32 vcc, -1, v{t}")
        return "\n".join(s)

    def dpp(self, op, regs, ctrl):
        for r in regs:
            self.a(f"{op}_dpp v{r}, v{r}, v{r} {ctrl} row_mask:0xf bank_mask:0xf")

    def swapred(self, op, regs, tmps, which):
        a = self.a
        for r, t in zip(regs, tmps):
            a(f"v_mov_b32 v{t}, v{r}")
        for r, t in zip(regs, tmps):
            a(f"v_permlane{which}_swap_b32 v{r}, v{t}")
        for r, t in zip(regs, tmps):
            a(f"{op} v{r}, v{r}, v{t}")

    def silu(self, pairs, t):
        a = self.a
        n = len(pairs)
        x = [t + i for i in range(2 * n)]
        e = [t + 2 * n + i for i in range(2 * n)]
        for i, p in enumerate(pairs):
            a(f"v_lshlrev_b32 v{x[2*i]}, 16, v{p}\nv_and_b32 v{x[2*i+1]}, 0xffff0000, v{p}")
        for i in range(2 * n):
            a(f"v_mul_f32 v{e[i]}, 0x{LOG2E | 0x80000000:x}, v{x[i]}")
        for i in range(2 * n):
            a(f"v_exp_f32 v{e[i]}, v{e[i]}")
        for i in range(2 * n):
            a(f"v_add_f32 v{e[i]}, 1.0, v{e[i]}")
        for i in range(2 * n):
            a(f"v_rcp_f32 v{e[i]}, v{e[i]}")
        for i in range(2 * n):
            a(f"v_mul_f32 v{x[i]}, v{x[i]}, v{e[i]}")
        for i, p in enumerate(pairs):
            a(f"v_cvt_pk_bf16_f32 v{p}, v{x[2*i]}, v{x[2*i+1]}")

    def entry(self):
        a = self.a
        if self.diag:
            for i in range(1, 16):
                a(f"s_mov_b64 s[{64+2*i}:{65+2*i}], 0")
        if self.probe:
            a("s_mov_b64 s[64:65], 0\ns_mov_b32 s101, s2")
        self.stamp(0)
        a(f"""
        s_cmp_ge_u32 s2, 256
        s_cbranch_scc1 EXIT
        s_load_dwordx16 s[4:19], s[0:1], 0
        s_load_dwordx8 s[20:27], s[0:1], 64
        s_load_dwordx4 s[28:31], s[0:1], 96
        """)
        cwm = self.opt.get("cwm", 16)
        if cwm:
            a(f"""
            s_and_b32 s34, s2, {(0x100 - 16 * cwm) & 0xf0 | 8}
            s_cmp_lg_u32 s34, {self.opt.get("cwr", 8)}
            s_cbranch_scc1 E_NOWARM
            s_getpc_b64 s[32:33]
            E_PC:
            v_lshlrev_b32 v1, 6, v0
            v_min_u32 v1, EXIT-E_PC, v1
            global_load_dword v255, v1, s[32:33]
            E_NOWARM:
            """)
        a(f"""
        v_lshrrev_b32 v1, 6, v0
        v_and_b32 v0, 63, v0
        v_readfirstlane_b32 {sW}, v1
        s_and_b32 {sXCD}, s2, 7
        {"s_bfe_u32 s57, s2, 0x40003" if self.opt.get("hi") else "s_lshr_b32 s57, s2, 4"}
        s_lshl4_add_u32 {sID}, {sXCD}, s57
        v_lshlrev_b32 v1, 4, v0
        v_lshrrev_b32 v2, 4, v0
        v_and_b32 v3, 15, v0
        s_mov_b32 s39, 0x20000
        s_mov_b32 s43, 0x20000
        s_mov_b32 s47, 0x20000
        s_mov_b32 s51, 0x20000
        s_mov_b32 s55, 0x20000
        s_bitcmp1_b32 s2, {7 if self.opt.get('hi') else 3}
        s_cbranch_scc1 WROLE
        """)

    def arole(self):
        a = self.a
        self.sect = "A"
        a(f"""
        s_and_b32 s60, {sID}, 15
        s_lshr_b32 s61, {sID}, 4
        v_lshlrev_b32 v4, 4, v3
        v_lshl_or_b32 v68, v2, 19, v4
        v_mov_b32 v64, -1
        v_mov_b32 v65, -1
        v_mov_b32 v66, -1
        v_mov_b32 v67, -1
        s_lshl_b32 s62, {sW}, 15
        s_lshl_b32 s63, {sID}, 8
        s_add_u32 s62, s62, s63
        s_add_u32 s62, s62, {H3}
        s_cmp_ge_u32 {sW}, 2
        s_cbranch_scc1 A_W23
        v_lshrrev_b32 v5, 3, v0
        v_and_b32 v6, 7, v0
        v_lshlrev_b32 v7, 1, v2
        v_xor_b32 v7, v6, v7
        v_mul_u32_u24 v8, 6144, v5
        v_lshrrev_b32 v9, 2, v7
        v_lshl_add_u32 v8, v9, 10, v8
        v_and_b32 v9, 3, v7
        v_lshl_add_u32 v8, v9, 4, v8
        v_and_b32 v10, 1, v5
        v_lshlrev_b32 v10, 10, v10
        v_lshl_add_u32 v11, v2, 3, v6
        v_lshl_add_u32 v11, v11, 5, v10
        v_lshl_add_u32 v12, v2, 3, v10
        s_lshl1_add_u32 s32, s61, {sW}
        s_mul_i32 s32, s32, {32 * 6144}
        s_lshl_b32 s33, s60, 6
        s_add_u32 s32, s32, s33
        s_lshl_b32 s34, {sW}, 5
        s_add_u32 s33, s33, s34
        s_lshl_b32 s34, {sW}, 12
        s_add_u32 m0, s34, {Q}
        s_waitcnt lgkmcnt(0)
        """)
        self.srd(R2, 4, 2048)
        self.srd(R1, 24, 512 * 6144)
        a(f"""
        buffer_load_dwordx4 v[16:19], v11, {R2}, 0 offen
        buffer_load_dwordx4 v[20:23], v11, {R2}, 0 offen offset:16
        buffer_load_dwordx2 v[24:25], v12, {R2}, s33 offen
        """)
        for j in range(4):
            a(f"buffer_load_dwordx4 v8, {R1}, s32 offen offset:{1024*j} nt lds")
            if j < 3:
                a(f"s_add_u32 s32, s32, {8 * 6144 - 1024}")
        a(f"s_load_dword {sTAG}, s[30:31], 0")
        self.srd(WS, 30, 0x10000000)
        a(f"""
        v_lshrrev_b32 v13, 2, v0
        v_lshlrev_b32 v13, 7, v13
        v_and_b32 v14, 3, v5
        v_xor_b32 v14, {sW}, v14
        v_lshl_add_u32 v13, v14, 5, v13
        v_and_b32 v14, 3, v0
        v_lshl_add_u32 v13, v14, 3, v13
        v_add_u32 v13, {Q}, v13
        v_xor_b32 v14, 64, v13
        v_lshrrev_b32 v15, 3, v10
        v_lshl_add_u32 v15, v2, 4, v15
        v_add_u32 v15, {SIL}, v15
        s_cmp_eq_u32 s61, 0
        s_cselect_b32 s32, 1.0, 0
        v_mov_b32 v56, s32
        v_mov_b32 v57, s32
        v_mov_b32 v58, s32
        v_mov_b32 v59, s32
        v_lshlrev_b32 v5, 4, v5
        v_lshl_add_u32 v5, v6, 15, v5
        s_lshl_b32 s32, s60, 11
        s_lshl_b32 s33, s61, 8
        s_add_u32 s32, s32, s33
        s_lshl_b32 s33, {sW}, 7
        s_add_u32 s32, s32, s33
        s_add_u32 s32, s32, {H1}
        s_mov_b32 s33, 0x3f803f80
        v_mov_b32 v26, 0
        v_mov_b32 v27, 0
        """)
        r1 = self.opt.get("r1", 1)
        self.premask(96, 0x0101010101010101 * ((1 << r1) - 1))
        nc = 0
        a(f"s_waitcnt vmcnt({5+nc})")
        for i in range(8):
            a(f"v_dot2c_f32_bf16 v26, s33, v{16+i}\nv_dot2c_f32_bf16 v27, v{16+i}, v{16+i}")
        self.dpp("v_add_f32", [26, 27], "quad_perm:[1,0,3,2]")
        self.dpp("v_add_f32", [26, 27], "quad_perm:[2,3,0,1]")
        self.dpp("v_add_f32", [26, 27], "row_half_mirror")
        self.swapred("v_add_f32", [26, 27], [16, 17], 16)
        self.swapred("v_add_f32", [26, 27], [16, 17], 32)
        a(f"""
        v_mul_f32 v26, 0x3b000000, v26
        v_mov_b32 v16, 0x3727c5ac
        v_fmac_f32 v16, 0x3b000000, v27
        v_fma_f32 v16, -v26, v26, v16
        v_rsq_f32 v16, v16
        s_waitcnt vmcnt({4+nc})
        v_lshlrev_b32 v20, 16, v24
        v_and_b32 v21, 0xffff0000, v24
        v_lshlrev_b32 v22, 16, v25
        v_and_b32 v23, 0xffff0000, v25
        """)
        for i in range(4):
            a(f"v_sub_f32 v{20+i}, v{20+i}, v26")
        for i in range(4):
            a(f"v_mul_f32 v{20+i}, v{20+i}, v16")
        a(f"s_waitcnt vmcnt({nc}) lgkmcnt(0)")
        self.stamp(1)
        a(f"""
        s_barrier
        ds_read_b128 v[44:47], v15
        """)
        for s in range(2):
            for blk in range(2):
                for u in range(2):
                    a(f"ds_read_b64_tr_b16 {vr(28 + (s*2+blk)*4 + 2*u, 2)}, v{13+blk} offset:{s*4096 + u*2048}")
            if s == 0:
                a("ds_read_b128 v[48:51], v15 offset:64")
        a(f"""
        s_add_u32 {sTAG}, {sTAG}, 0x{TAGC:x}
        v_mov_b32 v62, {sTAG}
        v_mov_b32 v63, {sTAG}
        s_waitcnt lgkmcnt(7)
        v_mfma_f32_16x16x32_bf16 v[52:55], v[28:31], v[44:47], 0
        s_waitcnt lgkmcnt(5)
        v_mfma_f32_16x16x32_bf16 v[56:59], v[32:35], v[44:47], v[56:59]
        s_waitcnt lgkmcnt(2)
        v_mfma_f32_16x16x32_bf16 v[52:55], v[36:39], v[48:51], v[52:55]
        s_waitcnt lgkmcnt(0)
        v_mfma_f32_16x16x32_bf16 v[56:59], v[40:43], v[48:51], v[56:59]
        s_mov_b64 exec, s[96:97]
        v_pk_fma_f32 v[52:53], v[20:21], v[56:57], v[52:53]
        v_pk_fma_f32 v[54:55], v[22:23], v[58:59], v[54:55]
        v_cvt_pk_bf16_f32 v60, v52, v53
        v_cvt_pk_bf16_f32 v61, v54, v55
        buffer_store_dwordx4 v[60:63], v5, {WS}, s32 offen sc1
        s_mov_b64 exec, -1
        """)
        self.stamp(2)
        a(f"""
        s_branch A_STREAM
        A_W23:
        s_cmp_eq_u32 {sW}, 3
        s_cbranch_scc1 A_W3
        v_lshrrev_b32 v5, 5, v0
        v_and_b32 v6, 31, v0
        v_lshlrev_b32 v7, 2, v6
        v_lshl_add_u32 v7, v5, 10, v7
        s_lshl_b32 s32, s61, 7
        s_waitcnt lgkmcnt(0)
        """)
        self.srd(R3, 22, 2048)
        a(f"""
        buffer_load_dword v16, v7, {R3}, s32 offen
        s_load_dword {sTAG}, s[30:31], 0
        """)
        self.srd(WS, 30, 0x10000000)
        a(f"""
        v_lshlrev_b32 v8, 6, v2
        v_bfe_u32 v9, v0, 1, 2
        v_lshl_add_u32 v8, v9, 4, v8
        v_and_b32 v9, 8, v0
        v_add_u32 v8, v8, v9
        v_and_b32 v9, 1, v0
        v_lshl_add_u32 v8, v9, 2, v8
        v_add_u32 v8, {SIL}, v8
        """)
        early = self.opt.get("early", 0)
        if early:
            self.stream(0, early)
        a(f"s_waitcnt vmcnt({early})")
        self.silu([16], 20)
        a(f"""
        ds_write_b32 v8, v16
        s_branch A_W23B
        A_W3:
        s_mul_i32 s32, {sID}, {1024 * SBC}
        s_add_u32 s32, s32, {SB}
        s_waitcnt lgkmcnt(0)
        """)
        self.srd(WS, 30, 0x10000000)
        a(f"""
        buffer_store_dwordx4 v[64:67], v1, {WS}, s32 offen sc1
        buffer_store_dwordx4 v[64:67], v1, {WS}, s32 offen offset:1024 sc1
        {f'buffer_store_dwordx4 v[64:67], v1, {WS}, s32 offen offset:2048 sc1' if SBC == 3 else ''}
        s_load_dword {sTAG}, s[30:31], 0
        """)
        if early:
            self.stream(0, early)
        a(f"""
        s_waitcnt vmcnt({early})
        A_W23B:
        s_waitcnt lgkmcnt(0)
        """)
        self.stamp(1)
        a(f"""
        s_barrier
        s_add_u32 {sTAG}, {sTAG}, 0x{TAGC:x}
        {"s_branch A_STREAM2" if early else ""}
        A_STREAM:
        """)
        self.stream(0, 32, early)
        self.stamp(3)
        self.attn()

    def stream(self, k0, k1, early=0):
        a = self.a
        if k0 == 0:
            self.srd(R4, 6, 1 << 24)
            a(f"""
            s_lshl_b32 s32, {sID}, 17
            s_lshl_b32 s33, {sW}, 15
            s_add_u32 s32, s32, s33
            """)
        fk = lambda k: ((k & 7) << 1) | ((k >> 3) & 1)
        for k in range(k0, k1):
            if self.opt.get("tlb", 0) and k == self.opt.get("tlbp", 31):
                self.pagetouch(self.opt["tlb"])
            if early and k == early:
                a("A_STREAM2:")
            if k % 4 == 0:
                a(f"s_add_u32 m0, s33, {k*1024}")
            if k == 16:
                a("s_add_u32 s32, s32, 16384")
            if k < 16:
                a(f"v_xor_b32 v{70+k}, {fk(k)*16 + (k & ~3)*1024}, v1")
            thr = self.opt.get("thr", 0)
            if thr and k >= thr:
                a(f"s_waitcnt vmcnt({thr-1})")
            if k < self.opt.get("nstream", 32):
                a(f"buffer_load_dwordx4 v{70+(k&15)}, {R4}, s32 offen offset:{(k&3)*1024} nt lds")

    def pagetouch(self, m):
        a = self.a
        if m & 1:
            self.srd(R1, 12, 1 << 22)
            a(f"""
            s_and_b32 s34, {sID}, 3
            s_lshl2_add_u32 s34, s34, {sW}
            s_lshl_b32 s34, s34, 18
            s_lshr_b32 s35, {sID}, 2
            s_lshl_b32 s35, s35, 8
            s_add_u32 s34, s34, s35
            v_lshlrev_b32 v253, 16, v0
            s_mov_b64 exec, {15 if m & 8 else 1}
            buffer_load_dword v255, v253, {R1}, s34 offen
            s_mov_b64 exec, -1
            """)
        if m & 2:
            a(f"""
            s_mul_i32 s34, {sW}, {8 * 131072}
            s_add_u32 s34, s34, s62
            v_lshlrev_b32 v252, 17, v0
            s_mov_b64 exec, {63 if m & 8 else 1}
            s_mov_b32 exec_lo, {255 if m & 8 else 1}
            buffer_load_dword v254, v252, {WS}, s34 offen sc1
            s_mov_b64 exec, -1
            """)
        if m & 4:
            a(f"""
            s_lshl_b32 s34, {sID}, 9
            s_add_u32 s34, s34, {ML}
            s_mov_b64 exec, 1
            buffer_load_dword v251, v1, {WS}, s34 offen sc1
            s_mov_b64 exec, -1
            """)

    def attn(self):
        a = self.a
        self.srd(R1, 12, 1 << 22)
        a(f"""
        v_and_b32 v4, 31, v0
        v_lshrrev_b32 v5, 5, v0
        v_and_b32 v6, 7, v0
        v_bfe_u32 v7, v0, 3, 1
        v_lshl_or_b32 v6, v6, 1, v7
        v_xor_b32 v6, v6, v5
        v_lshlrev_b32 v6, 4, v6
        v_lshl_add_u32 v6, v4, 10, v6
        v_add_u32 v69, s33, v6
        v_xor_b32 v6, v3, v5
        v_lshlrev_b32 v6, 4, v6
        v_lshl_add_u32 v6, v4, 8, v6
        v_add_u32 v70, {Q}, v6
        """)
        for i in range(1, 8):
            a(f"v_xor_b32 v{70+i}, {32*i}, v70")
        a(f"""
        v_bfe_u32 v6, v0, 2, 3
        v_lshl_add_u32 v7, v5, 4, v6
        v_lshlrev_b32 v7, 10, v7
        v_lshl_add_u32 v7, v6, 5, v7
        v_and_b32 v6, 3, v0
        v_lshl_add_u32 v7, v6, 3, v7
        s_lshl_b32 s32, {sW}, 8
        v_add_u32 v78, s32, v7
        v_xor_b32 v6, v3, v2
        v_lshlrev_b32 v6, 4, v6
        v_lshl_add_u32 v124, v2, 8, v6
        v_xor_b32 v125, 64, v124
        v_xor_b32 v126, 128, v124
        v_xor_b32 v127, 192, v124
        v_lshlrev_b32 v6, 4, v3
        v_lshl_add_u32 v82, v2, 13, v6
        s_lshl_b32 s32, {sW}, 7
        s_and_b32 s32, s32, 128
        v_xor_b32 v82, s32, v82
        v_xor_b32 v12, 64, v82
        v_lshlrev_b32 v83, 2, v4
        v_add_u32 v83, {FLAG2 - FLAG}, v83
        s_lshl_b32 s32, {sW}, 2
        s_add_u32 s32, s32, {MX}
        v_lshlrev_b32 v6, 4, v4
        v_add_u32 v8, s32, v6
        v_add_u32 v9, {MX}, v6
        s_lshl_b32 s32, {sW}, 11
        s_add_u32 s32, s32, {PB}
        v_add_u32 v10, s32, v1
        v_lshlrev_b32 v6, 4, v3
        v_lshl_add_u32 v6, v2, 9, v6
        v_add_u32 v11, {PB}, v6
        s_lshr_b32 s60, {sID}, 6
        s_lshl2_add_u32 s60, s60, {sW}
        s_lshl_b32 s60, s60, 13
        s_add_u32 s60, s60, {H2}
        s_and_b32 s63, {sID}, 3
        s_lshl2_add_u32 s63, s63, {sW}
        s_lshl_b32 s63, s63, 18
        s_lshr_b32 s32, {sID}, 2
        s_lshl_b32 s32, s32, 8
        s_add_u32 s63, s63, s32
        s_lshr_b32 s61, {sID}, {7 - self.opt.get("rf", 5)}
        s_lshl2_add_u32 s61, s61, {sW}
        s_lshl_b32 s61, s61, 7
        s_add_u32 s61, s61, {FLAG}
        s_add_u32 s2, s61, 64
        s_mov_b32 s0, {sTAG}
        s_mov_b32 s1, {sTAG}
        s_lshl2_add_u32 s32, {sID}, {sW}
        s_lshl_b32 s32, s32, 7
        s_add_u32 s32, s32, {GATE}
        v_lshl_add_u32 v14, v3, 2, s32
        v_mov_b32 v13, {sTAG}
        """)

        uvpos = self.opt.get("uvpos", 0)
        f2pos = self.opt.get("f2pos", 0)

        def wuv(js=range(8)):
            for j in js:
                if j == 0:
                    a(f"s_lshl_b32 s33, {sW}, 13\ns_mov_b32 m0, s33\ns_mov_b32 s32, s63")
                if j == 4:
                    a("s_add_u32 m0, s33, 4096")
                a(f"buffer_load_dwordx4 v{12 if j >> 2 else 82}, {R1}, s32 offen offset:{(j&3)*1024} nt lds")
                if j < 7:
                    a(f"s_add_u32 s32, s32, {32768 - 1024 + (4096 if j == 3 else 0)}")

        def areads():
            for i in range(8):
                if i:
                    a(f"v_xor_b32 v{79+(i&1)}, {32*i}, v69")
                for q in range(4):
                    a(f"ds_read_b128 {ar((q*8+i)*4)}, v{69 if i == 0 else 79+(i&1)} offset:{q*256}")

        cur = {}

        def trread(s, kl):
            kwh, j, u = s >> 4, (s >> 1) & 7, s & 1
            if cur.get(u) != s:
                a(f"v_xor_b32 v{79+u}, {j*32 + u*16 + kwh*65536}, v78")
                cur[u] = s
            kw = 2 * kwh + kl
            a(f"ds_read_b64_tr_b16 {ar(128 + (kw*8+j)*4 + 2*u, 2)}, v{79+u} offset:{u*8192 + kl*32768}")

        moved = ([(s, kl) for s in range(16, 32) for kl in range(2)] + [(s, 1) for s in range(16)])[:self.opt.get("trq", 32)]

        a(f"""
        s_movk_i32 {sCNT}, {NPOLL}
        A_FPOLL:
        s_buffer_load_dwordx16 s[4:19], {WS}, s61 glc
        s_buffer_load_dwordx16 s[20:35], {WS}, s2 glc
        s_sub_u32 {sCNT}, {sCNT}, 1
        s_cbranch_scc1 A_FTIME
        s_waitcnt lgkmcnt(0)
        """)
        for i in range(16):
            a(f"s_cmp_lg_u64 s[{4+2*i}:{5+2*i}], s[0:1]\ns_cbranch_scc1 A_FPOLL")
        a(f"""
        A_FTIME:
        s_waitcnt lgkmcnt(0)
        s_movk_i32 {sCNT}, 2000
        A_QDMA:
        """)
        self.stamp(4)
        a(f"""
        s_lshl_b32 s32, {sW}, 13
        s_add_u32 m0, s32, {Q}
        s_add_u32 s33, s60, 4096
        """)
        for j in range(8):
            if j == 4:
                a(f"s_add_u32 m0, s32, {Q + 4096}")
            a(f"buffer_load_dwordx4 v{124+(j&3)}, {WS}, {'s60' if j < 4 else 's33'} offen offset:{(j&3)*1024} sc1 lds")
        uva = self.opt.get("gpos", 2) if self.opt.get("gate", 0) else 0
        tl = f"buffer_store_dword v13, v14, {WS}, 0 offen sc1"
        a(f"s_cmpk_lg_u32 {sCNT}, 2000\ns_cbranch_scc1 A_QW0")
        if uva == 1:
            a(tl)
        a(f"s_waitcnt vmcnt({9 if uva == 1 else 8})")
        self.stamp(5)
        if uva == 2:
            a(tl)
        areads()
        a("s_barrier")
        if uva == 3:
            a(tl)
        for s in range(32):
            for kl in range(2):
                if (s, kl) not in moved:
                    trread(s, kl)
        cur.clear()
        a(f"A_QW:\nv_mov_b32 v81, 0\ns_waitcnt vmcnt({1 if 0 < uva < 4 else 0}) lgkmcnt(0)")
        self.stamp(6)
        if uva == 4:
            a(tl)
        a("s_barrier")
        D = self.opt.get("qd", 5)
        NS = D + 1
        bs = lambda s: 84 + 4 * (s % NS)
        rdB = lambda s: f"ds_read_b128 {vr(bs(s))}, v{70+(s&7)} offset:{(s>>3)*8192}"
        dsq, nmv, tre = [], len(moved), self.opt.get("tre", 28)
        assert MX > Q or nmv <= 32
        for s in range(D):
            a(rdB(s))
            dsq.append(s)
        for s in range(32):
            n = len(dsq) - 1 - dsq.index(s)
            assert n < 16
            a(f"s_waitcnt lgkmcnt({n})")
            a(f"v_mfma_f32_32x32x16_bf16 v[108:123], {ar(4*s)}, {vr(bs(s))}, {'0' if s == 0 else 'v[108:123]'}")
            if s + D < 32:
                a(rdB(s + D))
                dsq.append(s + D)
            a(f"v_max3_u32 v81, v81, v{bs(s)}, v{bs(s)+2}")
            while moved and nmv - len(moved) < nmv * (s + 1) / tre:
                trread(*moved.pop(0))
                dsq.append(-1)
            if s < 8 and uvpos == 2:
                wuv([s])
            if s == 20 and MX > Q:
                a("s_barrier")
        a(f"""
        v_cmp_eq_u32 vcc, -1, v81
        s_cbranch_vccnz A_REDO
        A_QOK:
        """)
        self.stamp(7)
        if uva == 5:
            a(tl)
        f2 = f"buffer_load_dword v13, v83, {WS}, s61 offen sc1"
        if f2pos == 0:
            a(f2)
        a("v_max3_f32 v4, v108, v109, v110\nv_max3_f32 v5, v111, v112, v113")
        a("v_max3_f32 v4, v4, v114, v115\nv_max3_f32 v5, v5, v116, v117")
        a("v_max3_f32 v4, v4, v118, v119\nv_max3_f32 v5, v5, v120, v121")
        a("v_max3_f32 v4, v4, v122, v123\nv_max_f32 v4, v4, v5")
        self.swapred("v_max_f32", [4], [5], 32)
        a("ds_write_b32 v8, v4")
        if uvpos == 0:
            wuv()
        a(f"""
        s_waitcnt lgkmcnt(0)
        s_barrier
        ds_read_b128 v[4:7], v9
        s_waitcnt lgkmcnt(0)
        v_max3_f32 v4, v4, v5, v6
        v_max_f32 v14, v4, v7
        """)
        for st in range(2):
            for i in range(8):
                a(f"v_sub_f32 v{108+8*st+i}, v{108+8*st+i}, v14")
            for i in range(8):
                a(f"v_exp_f32 v{108+8*st+i}, v{108+8*st+i}")
            for i in range(4):
                a(f"v_cvt_pk_bf16_f32 v{84+4*st+i}, v{108+8*st+2*i}, v{109+8*st+2*i}")
            a(f"ds_write_b128 v10, {vr(84+4*st)} offset:{st*1024}")
        if f2pos == 1:
            a(f2)
        if uvpos == 1:
            wuv()
        a("s_waitcnt lgkmcnt(0)\ns_barrier")
        self.stamp(8)
        for ht in range(2):
            for kw in range(4):
                a(f"ds_read_b128 {vr(160+(ht*4+kw)*4)}, v11 offset:{kw*2048 + ht*256}")
        mlt = self.opt.get("mlt", 2)
        a(f"""
        s_mov_b32 s33, 0x3f803f80
        v_mov_b32 v15, 0
        v_mov_b32 v16, 0
        s_lshl_b32 s34, {sW}, 3
        s_lshl_b32 s96, 0xff, s34
        s_mov_b32 s97, 0
        s_lshr_b32 s35, {sID}, {mlt}
        s_lshl_b32 s35, s35, {9 + mlt}
        s_and_b32 s34, {sID}, {(1 << mlt) - 1}
        s_lshl4_add_u32 s35, s34, s35
        s_add_u32 s35, s35, {ML}
        v_lshlrev_b32 v5, {4 + mlt}, v0
        s_mov_b32 s34, s62
        s_and_b32 s32, {sW}, 1
        s_lshl_b32 s0, s32, 3
        v_xor_b32 v6, s0, v0
        v_and_b32 v4, {(1 << mlt) - 1}, v6
        v_lshrrev_b32 v6, {mlt}, v6
        v_lshlrev_b32 v6, {9 + mlt}, v6
        v_lshl_add_u32 v6, v4, 4, v6
        s_lshr_b32 s1, {sW}, 1
        s_lshr_b32 s0, {sID}, 2
        s_lshl_b32 s0, s0, {4 + mlt}
        s_lshl_b32 s2, s1, 15
        s_add_u32 s0, s0, s2
        s_add_u32 s0, s0, {ML}
        s_lshl3_add_u32 s1, s1, s32
        s_lshl_b32 s1, s1, 11
        s_lshl_b32 s32, {sID}, 15
        s_add_u32 s1, s1, s32
        s_add_u32 s1, s1, {H3}
        v_lshlrev_b32 v7, 4, v3
        v_lshl_add_u32 v7, v2, 12, v7
        """)
        um, mpre = self.opt.get("um", 1), self.opt.get("mpre", 8)
        mlitem = (f"buffer_load_dwordx3 v[16:18], v6, {WS}, s0 offen sc1", f"v_cmp_ne_u32 vcc, {sTAG}, v18")
        oitems = [(f"buffer_load_dwordx4 {vr(160+4*j)}, v7, {WS}, s1 offen offset:{j*256} sc1", self.sent([160 + 4 * j], 18)) for j in range(8)]
        oloads = "\n".join(x[0] for x in oitems)
        side = []
        for ht in range(2):
            for i in range(16):
                side.append(f"v_dot2c_f32_bf16 v{15+ht}, s33, v{160+ht*16+i}")
        side += ["s_nop 0", "v_permlane16_swap_b32 v15, v16", "v_add_f32 v15, v15, v16", "v_mov_b32 v16, v15", "s_nop 0",
                 "v_permlane32_swap_b32 v15, v16", "v_add_f32 v15, v15, v16", f"v_mov_b32 v16, {sTAG}"]
        mlst = f"s_mov_b64 exec, s[96:97]\nbuffer_store_dwordx4 v[14:17], v5, {WS}, s35 offen sc1\ns_mov_b64 exec, -1"
        mlpos = self.opt.get("mlpos", 4)
        acc = lambda ht, j: 192 + ht * 32 + j * 4
        gr = lambda ht, r: 84 + ht * 16 + r * 4
        late = {}
        for ht in range(2):
            for jp in range(4):
                blk = ht * 4 + jp
                cv = [f"v_cvt_pk_bf16_f32 v{gr(ht, r)+jp}, v{acc(ht, 2*jp)+r}, v{acc(ht, 2*jp+1)+r}" for r in range(4)]
                if jp == 3:
                    nv = []
                    for r in range(4):
                        nv.append(cv[r])
                        st = f"buffer_store_dwordx4 {vr(gr(ht, r))}, v68, {WS}, s34 offen sc1"
                        if not (ht == 1 and r == 3):
                            st += f"\ns_add_u32 s34, s34, {131072 * (13 if r == 3 else 1)}"
                        nv.append(st)
                    cv = nv
                late[blk + 1] = cv
        first = True
        for blk in range(8):
            ht, jp = blk >> 2, blk & 3
            pend = list(late.get(blk, []))
            if blk == 4:
                a(f"""
                s_waitcnt vmcnt({8 if uvpos < 2 and f2pos <= uvpos else 0})
                v_cmp_ne_u32 vcc, {sTAG}, v13
                s_cbranch_vccnz A_F2POLL
                A_F2OK:
                """)
            if um == 3 and blk == mpre:
                assert not side
                a(mlitem[0])
            if blk == mlpos and mlpos > 4:
                assert not side
                a(mlst)
            for kw in range(4):
                if blk == 0:
                    a(f"s_waitcnt lgkmcnt({7-kw})")
                for jj in range(2):
                    j = 2 * jp + jj
                    c = "0" if kw == 0 else vr(acc(ht, j))
                    a(f"v_mfma_f32_16x16x32_bf16 {vr(acc(ht, j))}, {vr(160+(ht*4+kw)*4)}, {ar(128+(kw*8+j)*4)}, {c}")
                    if blk == 0 and kw == 3 and jj == 1:
                        a("s_waitcnt lgkmcnt(0)")
                    n = self.opt.get("sn", 3)
                    if blk >= 1 and kw >= 2:
                        for _ in range(2):
                            if pend:
                                a(pend.pop(0))
                                n -= 1
                    if blk >= 1:
                        for _ in range(n):
                            if side:
                                a(side.pop(0))
                                if not side and mlpos == 4:
                                    a(mlst)
            assert not pend
        assert not side
        if mlpos == 8:
            a(mlst)
        for i, x in enumerate(late[8]):
            if um == 3 and mpre >= 8 and i == 2 * (mpre - 8):
                a(mlitem[0])
            a(x)
        if mlpos == 9:
            a(mlst)
        self.stamp(9)
        if um == 3:
            a(f"""
            s_movk_i32 {sCNT}, {NPOLL}
            s_waitcnt vmcnt({4 - max(0, mpre - 8)})
            A_MLCHK:
            v_cmp_ne_u32 vcc, {sTAG}, v18
            s_cbranch_vccnz A_MLREDO
            A_MLOK:
            """)
            self.stamp(10)
            a(oloads)
        a(f"""
        v_bfe_u32 v8, v0, 2, 2
        v_xor_b32 v9, {sW}, v8
        v_lshlrev_b32 v9, 6, v9
        v_lshl_add_u32 v9, v8, 12, v9
        v_lshl_add_u32 v9, v2, 8, v9
        v_and_b32 v8, 3, v0
        v_lshl_add_u32 v9, v8, 4, v9
        v_mul_u32_u24 v10, 288, v8
        v_lshl_add_u32 v10, v2, 4, v10
        s_mul_i32 s32, {sW}, 288
        v_lshlrev_b32 v11, 4, v3
        v_lshl_add_u32 v11, v2, 3, v11
        v_add_u32 v11, s32, v11
        v_and_b32 v12, 1, v0
        v_lshlrev_b32 v12, 4, v12
        s_mov_b32 s32, 0xffff
        v_lshlrev_b32 v12, v12, s32
        v_lshrrev_b32 v13, 1, v3
        """)
        for i in range(4):
            a(f"v_cmp_eq_u32 vcc, {i}, v13\nv_cndmask_b32 v{20+i}, 0, v12, vcc")
        a(f"""
        v_bfe_u32 v12, v0, 1, 1
        v_lshlrev_b32 v12, 6, v12
        v_lshl_add_u32 v12, v2, 4, v12
        s_lshl_b32 s60, {sID}, 9
        s_lshl_b32 s32, {sW}, 7
        s_add_u32 s60, s60, s32
        s_add_u32 s60, s60, {H3B}
        """)
        self.premask(96, 0x0005000500050005)
        a("s_barrier" if um == 3 else "s_waitcnt vmcnt(9)\ns_barrier")
        for s in range(4):
            for t in range(2):
                for u in range(2):
                    a(f"ds_read_b64_tr_b16 {vr(128+(s*2+t)*4+2*u, 2)}, v9 offset:{u*16384 + s*1024 + t*8}")
        if um != 3:
            if um:
                self.mpoll([mlitem], 4)
            else:
                self.poll(*mlitem)
            self.stamp(10)
            a(oloads)
        a("v_mov_b32 v18, v16")
        for c in ("quad_perm:[1,0,3,2]", "quad_perm:[2,3,0,1]", "row_half_mirror", "row_mirror"):
            self.dpp("v_max_f32", [18], c)
        self.swapred("v_max_f32", [18], [19], 16)
        self.swapred("v_max_f32", [18], [19], 32)
        a("v_sub_f32 v16, v16, v18\nv_exp_f32 v16, v16\nv_mul_f32 v18, v16, v17")
        for c in ("quad_perm:[1,0,3,2]", "quad_perm:[2,3,0,1]", "row_half_mirror", "row_mirror"):
            self.dpp("v_add_f32", [18], c)
        self.swapred("v_add_f32", [18], [19], 16)
        self.swapred("v_add_f32", [18], [19], 32)
        a("v_rcp_f32 v18, v18\nv_mul_f32 v16, v16, v18\nv_cvt_pk_bf16_f32 v16, v16, v16")
        for j in range(8):
            for i in range(4):
                a(f"v_and_b32_dpp v{192+4*j+i}, v16, v{20+i} row_newbcast:{j} row_mask:0xf bank_mask:0xf")
        chk = self.sent([160 + 4 * j for j in range(8)], 18)
        a(f"""
        s_movk_i32 {sCNT}, {NPOLL}
        A_OWAIT:
        s_waitcnt vmcnt(0)
        {chk}
        s_cbranch_vccnz A_OREDO
        A_OOK:
        """)
        self.stamp(11)
        for j in range(8):
            c = "0" if j < 2 else vr(24 + 4 * (j & 1))
            a(f"v_mfma_f32_16x16x32_bf16 {vr(24+4*(j&1))}, {vr(192+4*j)}, {vr(160+4*j)}, {c}")
        a(f"""
        s_mov_b32 exec_hi, 0
        v_pk_add_f32 v[24:25], v[24:25], v[28:29]
        v_pk_add_f32 v[26:27], v[26:27], v[30:31]
        v_cvt_pk_bf16_f32 v24, v24, v25
        v_cvt_pk_bf16_f32 v25, v26, v27
        ds_write_b64 v11, v[24:25] offset:{XU}
        s_mov_b32 exec_hi, -1
        s_waitcnt lgkmcnt(0)
        s_barrier
        """)
        for s in range(4):
            a(f"ds_read_b128 {vr(32+4*s)}, v10 offset:{XU + s*64}")
        for s in range(4):
            a(f"s_waitcnt lgkmcnt({3-s})")
            for t in range(2):
                c = "0" if s == 0 else vr(24 + 4 * t)
                a(f"v_mfma_f32_16x16x32_bf16 {vr(24+4*t)}, {vr(128+(s*2+t)*4)}, {vr(32+4*s)}, {c}")
        self.dpp("v_add_f32", range(24, 32), "quad_perm:[1,0,3,2]")
        a("s_mov_b64 exec, s[96:97]")
        for i in range(4):
            a(f"v_cvt_pk_bf16_f32 v{32+i}, v{24+2*i}, v{25+2*i}")
        a(f"buffer_store_dwordx4 v[32:35], v12, {WS}, s60 offen sc1")
        self.stamp(12)
        a(f"""
        s_branch FIN
        A_REDO:
        s_sub_u32 {sCNT}, {sCNT}, 1
        s_cbranch_scc1 A_QOK
        s_waitcnt lgkmcnt(0)
        s_barrier
        s_branch A_QDMA
        A_QW0:
        s_waitcnt vmcnt(0)
        s_branch A_QW
        A_OREDO:
        s_sub_u32 {sCNT}, {sCNT}, 1
        s_cbranch_scc1 A_OOK
        {self.mchecks(oitems, 4) + chr(10) + self.mloads(oitems, 4) if um else oloads}
        s_branch A_OWAIT
        """)
        if um == 3:
            a(f"""
            A_MLREDO:
            s_sub_u32 {sCNT}, {sCNT}, 1
            s_cbranch_scc1 A_MLOK
            s_mov_b64 exec, vcc
            {mlitem[0]}
            s_mov_b64 exec, -1
            s_waitcnt vmcnt(0)
            s_branch A_MLCHK
            """)
        a(f"""
        A_F2POLL:
        """)
        self.poll(f2, f"v_cmp_ne_u32 vcc, {sTAG}, v13")
        a("s_branch A_F2OK")

    def tagpoll(self, voff, soff, r, depth):
        if self.opt.get("mt", 0):
            return self.mpoll([(f"buffer_load_dwordx3 {vr(r+4*j, 3)}, {voff}, {WS}, {soff} offen offset:{1024*j} sc1",
                                f"v_cmp_ne_u32 vcc, {sTAG}, v{r+4*j+2}") for j in range(2)], 6)
        self.poll(f"buffer_load_dwordx3 {vr(r, 3)}, {voff}, {WS}, {soff} offen sc1\n"
                  f"buffer_load_dwordx3 {vr(r+4, 3)}, {voff}, {WS}, {soff} offen offset:1024 sc1",
                  f"v_cmp_ne_u32 s[32:33], {sTAG}, v{r+2}\nv_cmp_ne_u32 vcc, {sTAG}, v{r+6}\ns_or_b64 vcc, vcc, s[32:33]", depth)

    def smallgemm(self, xb, wbase):
        a = self.a
        for s in range(4):
            a(f"ds_read_b128 {vr(88+4*s)}, v9 offset:{xb - X1 + s*1024}")
        for s in range(4):
            a(f"s_waitcnt lgkmcnt({3-s})")
            for t in range(2):
                c = "0" if s == 0 else vr(104 + 4 * t)
                a(f"v_mfma_f32_16x16x32_bf16 {vr(104+4*t)}, {vr(wbase+(s*2+t)*4)}, {vr(88+4*s)}, {c}")
        for t in range(2):
            for r in range(4):
                a(f"v_add_f32_dpp v{112+r}, v{104+4*t+r}, v{104+4*t+r} row_ror:8 row_mask:0xf bank_mask:{'0x3' if t == 0 else '0xc'}")
        self.dpp("v_add_f32", range(112, 116), "quad_perm:[2,3,0,1]")

    def wrole(self):
        a = self.a
        self.sect = "W"
        a(f"""
        WROLE:
        s_lshr_b32 s60, {sID}, 2
        s_and_b32 s61, {sID}, 3
        s_lshl2_add_u32 s62, s61, {sW}
        s_lshl_b32 s32, s62, 18
        s_lshl_b32 s33, s60, 8
        s_add_u32 s32, s32, s33
        s_lshl_b32 s33, {sW}, 13
        s_mov_b32 m0, s33
        v_lshlrev_b32 v4, 2, v2
        v_xor_b32 v4, v4, v3
        v_lshlrev_b32 v4, 4, v4
        v_lshl_add_u32 v4, v2, 13, v4
        v_xor_b32 v5, v2, v3
        v_lshlrev_b32 v5, 4, v5
        v_lshl_add_u32 v124, v2, 13, v5
        v_xor_b32 v125, 64, v124
        v_xor_b32 v126, 128, v124
        v_xor_b32 v127, 192, v124
        s_mov_b32 s100, s32
        s_waitcnt lgkmcnt(0)
        """)
        self.srd(R1, 8, 1 << 22)
        self.srd(R2, 10, 1 << 22)
        ukpos = self.opt.get("ukpos", 0)

        def wdma(m):
            R, so = ((R1, "s32"), (R2, "s100"))[m]
            for j in range(8):
                if j == 4 or (m == 1 and j == 0):
                    a(f"s_add_u32 m0, s33, {m*WK + (j>>2)*4096}")
                v = 4 if m == 0 else 124 + (j >> 1)
                a(f"buffer_load_dwordx4 v{v}, {R}, {so} offen offset:{(j&3)*1024} nt lds")
                if j < 7:
                    a(f"s_add_u32 {so}, {so}, {32768 - 1024 + (4096 if j == 3 else 0)}")

        wdma(0)
        if ukpos == 0:
            wdma(1)
        kt, kp = self.opt.get("kt", 0), self.opt.get("kp", 0)

        def ktouch():
            for j in range(kt):
                a(f"buffer_load_dword v{253-j}, v254, {R4}, 0 offen\nv_add_u32 v254, 0x2000, v254")

        if kt:
            self.srd(R4, 6, 1 << 24)
            a(f"""
            s_lshl2_add_u32 s32, {sID}, {sW}
            s_lshl_b32 s32, s32, 15
            s_add_u32 s32, s32, {32768 - 8192 * kt}
            v_lshl_add_u32 v254, v0, 7, s32
            """)
        if kp == 0:
            ktouch()
        a(f"s_load_dword {sTAG}, s[30:31], 0")
        self.srd(WS, 30, 0x10000000)
        self.stamp(1)
        a(f"""
        v_bfe_u32 v4, v0, 2, 2
        v_xor_b32 v5, {sW}, v4
        v_lshlrev_b32 v5, 6, v5
        v_lshrrev_b32 v6, 2, v0
        v_lshl_add_u32 v5, v6, 8, v5
        v_and_b32 v6, 3, v0
        v_lshl_add_u32 v10, v6, 4, v5
        v_lshl_add_u32 v5, v4, 3, v6
        v_lshlrev_b32 v5, 8, v5
        v_xor_b32 v7, v2, v3
        v_lshl_add_u32 v5, v7, 4, v5
        s_add_u32 s32, s33, {WK}
        v_add_u32 v11, s32, v5
        v_add_u32 v9, {X1}, v1
        s_lshl_b32 s32, {sW}, 10
        s_add_u32 s32, s32, {X1}
        v_bfe_u32 v4, v0, 1, 2
        v_lshlrev_b32 v4, 8, v4
        v_and_b32 v5, 1, v0
        v_lshl_add_u32 v4, v5, 6, v4
        v_lshl_add_u32 v4, v2, 4, v4
        v_and_b32 v6, 8, v0
        v_add3_u32 v12, v4, v6, s32
        v_bfe_u32 v4, v0, 3, 2
        v_lshlrev_b32 v4, 8, v4
        v_lshl_add_u32 v4, v5, 4, v4
        v_bfe_u32 v6, v0, 1, 1
        v_lshl_add_u32 v4, v6, 6, v4
        v_and_b32 v6, 32, v0
        v_add_u32 v4, v4, v6
        v_bfe_u32 v6, v0, 2, 1
        v_lshl_add_u32 v4, v6, 3, v4
        v_add_u32 v13, s32, v4
        v_lshrrev_b32 v4, 2, v0
        v_lshl_add_u32 v4, v4, 1, v5
        v_lshlrev_b32 v14, 4, v4
        v_lshlrev_b32 v4, 15, v6
        v_lshl_add_u32 v4, v2, 4, v4
        v_and_b32 v6, 8, v0
        v_add_u32 v15, v4, v6
        v_lshlrev_b32 v120, 9, v0
        s_lshl_b32 s62, s62, 11
        s_and_b32 s63, {sXCD}, {self.opt.get("r1", 1) - 1}
        s_lshl_b32 s63, s63, 15
        s_add_u32 s62, s62, s63
        s_add_u32 s62, s62, {H1}
        s_lshl2_add_u32 s63, s60, {sW}
        s_lshl_b32 s63, s63, 11
        s_add_u32 s63, s63, {HQ}
        s_lshl_b32 s34, s61, 9
        s_add_u32 s34, s34, s63
        s_lshl_b32 s35, s61, 5
        s_add_u32 s35, s35, s60
        s_lshl_b32 s2, s35, 2
        s_add_u32 s2, s2, {FLAG}
        s_lshl_b32 s0, {sW}, {7 + self.opt.get("rf", 5)}
        s_add_u32 s2, s2, s0
        s_lshl2_add_u32 s35, s35, {sW}
        s_lshl_b32 s35, s35, 6
        s_add_u32 s35, s35, {H2}
        s_mov_b32 s0, 0x{(1 << (1 << (self.opt.get("rf", 5) - 2))) - 1:x}
        s_mov_b32 s1, 0
        """)
        if self.opt.get("touch", 1):
            a(f"buffer_load_dwordx3 v[80:82], v1, {WS}, s63 offen sc1\nbuffer_load_dwordx3 v[84:86], v1, {WS}, s63 offen offset:1024 sc1")
        self.premask(96, 0x3333333333333333)
        self.premask(98, 0x1111111111111111)
        a(f"""
        s_waitcnt vmcnt({(2 if self.opt.get("touch", 1) else 0) + (8 if ukpos == 0 else (0, 0, 4, 6)[ukpos]) + (kt if kp == 0 else 0)}) lgkmcnt(0)
        s_add_u32 {sTAG}, {sTAG}, 0x{TAGC:x}
        """)
        if ukpos:
            wdma(1)
        if ukpos > 1:
            a("s_waitcnt vmcnt(10)")
        self.stamp(2)
        a(f"""
        s_barrier
        v_mov_b32 v118, {sTAG}
        v_mov_b32 v119, {sTAG}
        """)
        for s in range(4):
            for t in range(2):
                for u in range(2):
                    a(f"ds_read_b64_tr_b16 {vr(16+(s*2+t)*4+2*u, 2)}, v10 offset:{s*8192 + u*4096 + t*8}")
        self.tagpoll("v1", "s62", 80, self.opt.get("d1", 1))
        self.stamp(3)
        if kp == 1:
            ktouch()
        a(f"""
        ds_write_b64 v12, v[80:81]
        ds_write_b64 v12, v[84:85] offset:128
        s_waitcnt lgkmcnt(0)
        s_barrier
        """)
        self.smallgemm(X1, 16)
        a(f"""
        s_mov_b64 exec, s[96:97]
        v_cvt_pk_bf16_f32 v116, v112, v113
        v_cvt_pk_bf16_f32 v117, v114, v115
        buffer_store_dwordx4 v[116:119], v14, {WS}, s34 offen sc1
        s_mov_b64 exec, -1
        """)
        self.stamp(4)
        for s in range(4):
            if s:
                a(f"v_xor_b32 v4, {64*s}, v11")
            for t in range(2):
                a(f"ds_read_b128 {vr(48+(s*2+t)*4)}, v{4 if s else 11} offset:{t*1024}")
        self.tagpoll("v1", "s63", 80, self.opt.get("dQ", 1))
        self.stamp(5)
        flag = f"s_mov_b64 exec, s[0:1]\nbuffer_store_dword v118, v120, {WS}, s2 offen sc1\ns_mov_b64 exec, -1"
        if self.opt.get("earlyflag", 1) == 2:
            a(flag)
        a(f"""
        ds_write_b64 v13, v[80:81] offset:{X2 - X1}
        ds_write_b64 v13, v[84:85] offset:{X2 - X1 + 128}
        s_waitcnt lgkmcnt(0)
        s_barrier
        """)
        if self.opt.get("earlyflag", 1) == 1:
            a(flag)
        self.smallgemm(X2, 48)
        self.dpp("v_add_f32", range(112, 116), "quad_perm:[1,0,3,2]")
        a("s_mov_b64 exec, s[98:99]")
        for r in range(4):
            a(f"v_mul_f32 v{112+r}, 0x{QSCALE:x}, v{112+r}")
        a(f"""
        v_cvt_pk_bf16_f32 v116, v112, v113
        v_cvt_pk_bf16_f32 v117, v114, v115
        buffer_store_dwordx2 v[116:117], v15, {WS}, s35 offen sc1
        """)
        if not self.opt.get("earlyflag", 1):
            a(flag)
        else:
            a("s_mov_b64 exec, -1")
        self.stamp(6)
        a(f"""
        v_mov_b32 v64, -1
        v_mov_b32 v65, -1
        v_mov_b32 v66, -1
        v_mov_b32 v67, -1
        s_lshl2_add_u32 s32, {sID}, {sW}
        s_lshl_b32 s32, s32, 13
        s_add_u32 s32, s32, {H3}
        s_add_u32 s34, s32, 4096
        s_add_u32 s2, s2, {FLAG2 - FLAG}
        """)
        for j in range(0 if self.opt.get("noclr") == 1 else 8):
            a(f"buffer_store_dwordx4 v[64:67], v1, {WS}, {'s32' if j < 4 else 's34'} offen offset:{(j&3)*1024} sc1")
        cw = self.opt.get("cw", 0)

        def flag2(n):
            a(f"s_waitcnt vmcnt({n})")
            self.stamp(12)
            a("s_barrier\n" + flag)

        uvt = self.opt.get("uvt", 0)
        if uvt:
            self.srd(R4, 12, 1 << 22)
            a(f"""
            s_and_b32 s32, {sID}, 3
            s_lshl2_add_u32 s32, s32, {sW}
            s_lshl_b32 s32, s32, 18
            s_lshr_b32 s33, {sID}, 2
            s_lshl_b32 s33, s33, 8
            s_add_u32 s32, s32, s33
            v_lshrrev_b32 v4, 1, v0
            v_and_b32 v5, 1, v0
            v_lshlrev_b32 v5, 7, v5
            v_lshl_add_u32 v4, v4, 13, v5
            """)
        tl = f"buffer_load_dword v68, v4, {R4}, s32 offen"
        if uvt & 4:
            tl += f"\nbuffer_load_dword v69, v4, {R4}, s32 offen offset:64"
        if uvt & 1:
            a(tl)
        if cw == 0:
            flag2(len(tl.splitlines()) if uvt & 1 else 0)
        if uvt & 2:
            a(tl)
        a(f"""
        s_and_b32 s60, {sID}, 15
        s_and_b32 s61, {sID}, 3
        s_lshl2_add_u32 s61, {sXCD}, s61
        s_cmp_lt_u32 s60, 8
        s_cbranch_scc1 W_SETO
        s_cmp_lt_u32 s60, 12
        s_cbranch_scc1 W_SETM
        s_cmp_ge_u32 s61, 28
        s_cbranch_scc1 {"W_IDLE" if cw else "FIN"}
        """)
        self.srd(R1, 18, 512 * 3584)
        a(f"""
        s_movk_i32 s62, 3584
        s_lshl_b32 s32, s61, 7
        s_branch W_LOAD
        W_SETM:
        """)
        self.srd(R1, 24, 512 * 6144)
        a(f"""
        s_movk_i32 s62, 6144
        s_lshl_b32 s32, s61, 7
        s_add_u32 s32, s32, 2048
        s_branch W_LOAD
        W_SETO:
        """)
        self.srd(R1, 14, 1 << 22)
        a(f"""
        s_movk_i32 s62, 1024
        s_lshl_b32 s32, {sXCD}, 19
        s_lshl_b32 s33, s60, 7
        s_add_u32 s32, s32, s33
        W_LOAD:
        s_lshl_b32 s33, {sW}, 7
        s_mul_i32 s33, s33, s62
        s_add_u32 s32, s32, s33
        s_lshl_b32 s33, s62, 3
        s_sub_u32 s33, s33, 1024
        s_add_u32 s63, s33, 4096
        s_lshl_b32 s34, {sW}, 14
        v_lshrrev_b32 v4, 3, v0
        v_mul_lo_u32 v4, v4, s62
        v_and_b32 v5, 1, v2
        v_lshlrev_b32 v5, 1, v5
        v_and_b32 v6, 7, v0
        v_xor_b32 v5, v5, v6
        v_lshl_add_u32 v6, v5, 4, v4
        v_xor_b32 v5, 4, v5
        v_lshl_add_u32 v7, v5, 4, v4
        """)
        gate = self.opt.get("gate", 0)
        if gate:
            gm = (0xff if gate & 1 else 0) | (0xf00 if gate & 2 else 0) | (0xf000 if gate & 4 else 0)
            a(f"""
            s_lshl2_add_u32 s35, {sID}, {sW}
            s_lshl_b32 s35, s35, 7
            s_add_u32 s35, s35, {ML + 8 if self.opt.get("gpos", 2) == 9 else GATE}
            v_mov_b32 v9, 0
            s_bitcmp1_b32 {gm}, s60
            s_cbranch_scc0 W_NOGATE
            """)
            gp = (f"buffer_load_dword v8, v9, {WS}, s35 offen sc1", f"v_cmp_ne_u32 vcc, {sTAG}, v8")
            self.poll(*gp)
            a("W_NOGATE:")
        for j in range(16):
            if j % 4 == 0:
                a(f"s_add_u32 m0, s34, {W2R + j*1024}")
            a(f"buffer_load_dwordx4 v{6+(j&1)}, {R1}, s32 offen offset:{(j&3)*1024} nt lds")
            if j < 15:
                a(f"s_add_u32 s32, s32, {'s63' if j % 4 == 3 else 's33'}")
        if cw:
            flag2(16)
        a(f"""
        v_bfe_u32 v4, v0, 2, 2
        v_lshl_add_u32 v5, v2, 3, v4
        v_lshlrev_b32 v5, 7, v5
        v_bfe_u32 v6, v0, 3, 2
        v_xor_b32 v6, {sW}, v6
        v_lshl_add_u32 v5, v6, 5, v5
        v_and_b32 v6, 3, v0
        v_lshl_add_u32 v5, v6, 3, v5
        v_add_u32 v10, {W2R}, v5
        s_cmp_lt_u32 s60, 8
        s_cbranch_scc1 W_WAIT
        s_cmp_lt_u32 s60, 12
        s_cbranch_scc1 W_PREM
        """)
        self.srd(R2, 20, 1792 * 1024)
        a(f"""
        s_lshl_b32 s32, s61, 16
        s_add_u32 s32, s32, s34
        v_xor_b32 v5, 16, v1
        v_xor_b32 v6, 32, v1
        v_xor_b32 v7, 48, v1
        """)
        if gate & 8:
            self.poll(*gp)
        for j in range(16):
            if j % 4 == 0:
                a(f"s_add_u32 m0, s34, {j*1024}")
                if j:
                    a("s_add_u32 s32, s32, 4096")
            a(f"buffer_load_dwordx4 v{[1, 5, 6, 7][j&3]}, {R2}, s32 offen offset:{(j&3)*1024} nt lds")
        a(f"""
        s_branch W_WAIT
        W_PREM:
        """)
        self.srd(R3, 22, 2048)
        a(f"""
        s_lshl_b32 s32, {sW}, 9
        v_lshlrev_b32 v4, 3, v0
        buffer_load_dwordx2 v[16:17], v4, {R3}, s32 offen
        s_lshr_b32 s33, {sW}, 1
        s_lshl_b32 s33, s33, 5
        s_add_u32 s32, s32, s33
        s_add_u32 s32, s32, {SL}
        v_add_u32 v4, s32, v4
        s_waitcnt vmcnt(0)
        """)
        self.silu([16, 17], 20)
        a(f"""
        ds_write_b64 v4, v[16:17]
        W_WAIT:
        s_waitcnt vmcnt(0) lgkmcnt(0)
        """)
        self.stamp(7)
        a("s_barrier")
        for s in range(16):
            for u in range(2):
                a(f"ds_read_b64_tr_b16 {ar(4*s+2*u, 2)}, v10 offset:{s*4096 + u*512}")
        a(f"""
        s_cmp_lt_u32 s60, 8
        s_cbranch_scc0 W_NOTO
        """)
        self.orole()
        a(f"""
        W_NOTO:
        v_and_b32 v4, 3, v0
        v_mul_u32_u24 v4, 2112, v4
        v_bfe_u32 v5, v0, 2, 1
        v_mul_u32_u24 v5, 1056, v5
        v_lshl_add_u32 v5, v2, 4, v5
        s_cmp_lt_u32 s60, 12
        s_cbranch_scc1 W_M2
        """)
        self.ffn()
        if cw:
            a("W_IDLE:")
            flag2(0)
            a("s_branch FIN")
        a("W_M2:")
        self.m2()

    def actgemm(self, addr, fill=None):
        a = self.a
        fill = list(fill or [])
        for s in range(12):
            a(f"ds_read_b128 {vr(128+4*s)}, v{addr} offset:{s*64}")
        for s in range(16):
            a(f"s_waitcnt lgkmcnt({min(11, 15-s)})")
            c = "0" if s < 2 else vr(104 + 4 * (s & 1))
            a(f"v_mfma_f32_16x16x32_bf16 {vr(104+4*(s&1))}, {vr(128+4*s)}, {ar(4*s)}, {c}")
            if s < 4:
                a(f"ds_read_b128 {vr(128+4*(s+12))}, v{addr} offset:{(s+12)*64}")
            for _ in range(3):
                if fill:
                    a(fill.pop(0))
        assert not fill

    def orole(self):
        a = self.a
        self.sect = "O"
        a(f"""
        s_lshl2_add_u32 s34, {sXCD}, {sW}
        s_lshl_b32 s34, s34, 11
        s_add_u32 s34, s34, {H3B}
        v_lshrrev_b32 v4, 5, v0
        v_bfe_u32 v5, v0, 2, 2
        v_lshl_add_u32 v4, v4, 2, v5
        v_and_b32 v5, 1, v2
        v_lshl_add_u32 v4, v4, 1, v5
        v_and_b32 v5, 3, v0
        v_lshl_add_u32 v4, v4, 2, v5
        v_lshlrev_b32 v16, 4, v4
        v_and_b32 v4, 1, v2
        v_lshlrev_b32 v4, 3, v4
        v_lshrrev_b32 v5, 1, v2
        v_or_b32 v4, v4, v5
        v_lshlrev_b32 v4, 4, v4
        v_xor_b32 v4, v4, v1
        s_lshl_b32 s32, {sW}, 11
        s_add_u32 s32, s32, {XO}
        v_add_u32 v11, s32, v4
        v_xor_b32 v12, 32, v11
        v_and_b32 v4, 3, v0
        v_bfe_u32 v5, v0, 2, 1
        v_lshl_add_u32 v6, v4, 1, v5
        v_lshlrev_b32 v6, 8, v6
        v_xor_b32 v4, v4, v2
        v_lshl_add_u32 v6, v4, 4, v6
        v_lshl_add_u32 v6, v5, 7, v6
        v_bfe_u32 v4, v0, 3, 1
        v_lshl_add_u32 v6, v4, 6, v6
        v_add_u32 v13, {XO}, v6
        v_xor_b32 v14, 128, v13
        v_lshlrev_b32 v5, 5, v5
        v_lshl_add_u32 v15, v2, 3, v5
        v_and_b32 v4, 3, v0
        v_lshl_add_u32 v15, v4, 15, v15
        s_lshl_b32 s35, {sXCD}, {12 - self.opt.get("h4c", 1)}
        s_lshl2_add_u32 s32, s60, {sW}
        s_lshl_b32 s32, s32, {7 - self.opt.get("h4c", 1)}
        s_add_u32 s35, s35, s32
        s_add_u32 s35, s35, {H4}
        """)
        self.premask(96, 0x0011001100110011 * ((1 << self.opt.get("r4", 1)) - 1))
        if self.opt.get("mo", 1):
            self.mpoll([(f"buffer_load_dwordx4 {vr(80+4*j)}, v16, {WS}, s34 offen offset:{1024*j} sc1", self.sent([80 + 4 * j], 4)) for j in range(2)], 4)
        else:
          self.poll(f"buffer_load_dwordx4 v[80:83], v16, {WS}, s34 offen sc1\n"
                  f"buffer_load_dwordx4 v[84:87], v16, {WS}, s34 offen offset:1024 sc1", self.sent([80, 84], 4), self.opt.get("dO", 1))
        self.stamp(8)
        a(f"""
        ds_write_b128 v11, v[80:83]
        ds_write_b128 v12, v[84:87] offset:1024
        s_waitcnt lgkmcnt(0)
        s_barrier
        """)
        for sp in range(8):
            a(f"ds_read_b128 {vr(128+4*sp)}, v{13+(sp&1)} offset:{(sp>>1)*2048}")
        for sp in range(8):
            a(f"s_waitcnt lgkmcnt({7-sp})")
            for k in range(2):
                c = "0" if sp == 0 else vr(104 + 4 * k)
                a(f"v_mfma_f32_16x16x32_bf16 {vr(104+4*k)}, {ar(4*(2*sp+k))}, {vr(128+4*sp)}, {c}")
        for r in range(4):
            a(f"v_add_f32_dpp v{112+r}, v{108+r}, v{104+r} row_ror:8 row_mask:0xf bank_mask:0xf")
        self.dpp("v_add_f32", range(112, 116), "quad_perm:[1,0,3,2]")
        self.dpp("v_add_f32", range(112, 116), "quad_perm:[2,3,0,1]")
        a(f"""
        s_mov_b64 exec, s[96:97]
        v_cvt_pk_bf16_f32 v116, v112, v113
        v_cvt_pk_bf16_f32 v117, v114, v115
        buffer_store_dwordx2 v[116:117], v15, {WS}, s35 offen sc1
        """)
        self.stamp(9)
        a("s_branch FIN")

    def selmat(self, esel, on):
        a = self.a
        a(f"""
        v_and_b32 v24, 1, v{esel}
        v_lshlrev_b32 v24, 4, v24
        s_movk_i32 s32, 0x3f80
        v_lshlrev_b32 v24, v24, s32
        v_lshrrev_b32 v25, 1, v{esel}
        v_lshl_or_b32 v25, v{on}, 2, v25
        """)
        for i in range(4):
            a(f"v_cmp_eq_u32 vcc, {i}, v25\nv_cndmask_b32 v{20+i}, 0, v24, vcc")

    def ffn(self):
        a = self.a
        self.sect = "F"
        a(f"""
        s_mov_b32 s32, {YB}
        v_add3_u32 v11, v4, v5, s32
        v_bfe_u32 v4, v0, 2, 2
        v_lshl_add_u32 v5, v2, 3, v4
        v_lshlrev_b32 v5, 10, v5
        v_lshl_add_u32 v5, v4, 4, v5
        v_and_b32 v4, 3, v0
        v_lshl_add_u32 v5, v4, 6, v5
        s_lshl_b32 s33, {sW}, 8
        v_add_u32 v4, s33, v5
        """)
        for tp in range(4):
            if tp:
                a(f"v_xor_b32 v{4+tp}, {16*tp}, v4")
            for th in range(2):
                for s in range(2):
                    for u in range(2):
                        t = 2 * tp + th
                        a(f"ds_read_b64_tr_b16 {ar(64+(t*2+s)*4+2*u, 2)}, v{4+tp} offset:{s*32768 + u*4096 + th*8}")
        self.srd(R2, 4, 2048)
        a(f"""
        v_lshrrev_b32 v4, 5, v0
        v_and_b32 v5, 1, v2
        v_lshl_add_u32 v6, v3, 1, v5
        v_lshlrev_b32 v7, 3, v6
        v_lshl_add_u32 v8, v4, 10, v7
        buffer_load_dwordx2 v[16:17], v8, {R2}, s33 offen
        v_mul_u32_u24 v8, 1056, v4
        s_add_u32 s32, s33, {YB}
        v_add3_u32 v12, v8, v7, s32
        v_lshlrev_b32 v7, 4, v6
        v_lshl_add_u32 v13, v4, 13, v7
        s_lshl_b32 s34, {sW}, 9
        s_add_u32 s34, s34, {M2O}
        s_add_u32 s35, s34, 4096
        v_and_b32 v6, 31, v0
        v_lshlrev_b32 v6, 3, v6
        v_lshl_add_u32 v6, v4, 10, v6
        s_add_u32 s32, s33, {ST}
        v_add_u32 v14, s32, v6
        v_lshlrev_b32 v6, 4, v3
        v_lshl_add_u32 v6, v4, 8, v6
        v_lshl_add_u32 v6, v5, 10, v6
        v_add_u32 v15, {ST}, v6
        v_lshrrev_b32 v6, 1, v3
        v_lshl_add_u32 v6, v4, 5, v6
        v_lshl_add_u32 v6, v6, {2 - self.opt.get("h4c", 1)}, v5
        v_and_b32 v7, 1, v0
        v_lshl_add_u32 v6, v6, 1, v7
        v_lshlrev_b32 v26, 4, v6
        s_and_b32 s62, {sXCD}, {self.opt.get("r4", 1) - 1}
        s_lshl_b32 s62, s62, 13
        s_add_u32 s62, s62, s33
        s_lshl_b32 s62, s62, {2 - self.opt.get("h4c", 1)}
        s_add_u32 s62, s62, {H4}
        s_add_u32 s63, s62, {8192 >> self.opt.get("h4c", 1)}
        s_add_u32 s0, s62, {16384 >> self.opt.get("h4c", 1)}
        s_add_u32 s1, s62, {24576 >> self.opt.get("h4c", 1)}
        v_mul_u32_u24 v6, 160, v5
        v_lshl_add_u32 v6, v3, 1, v6
        s_lshl_b32 s32, {sW}, 5
        s_add_u32 s32, s32, {AB}
        v_add_u32 v27, s32, v6
        v_bfe_u32 v6, v0, 2, 1
        v_mul_u32_u24 v6, 160, v6
        v_lshl_add_u32 v6, v2, 4, v6
        v_add_u32 v28, {AB}, v6
        v_bfe_u32 v6, v0, 3, 1
        v_mul_u32_u24 v7, 7168, v6
        v_lshl_add_u32 v7, v5, 7, v7
        v_and_b32 v8, 7, v0
        v_lshl_add_u32 v29, v8, 4, v7
        v_xor_b32 v6, v6, v5
        s_mul_i32 s2, {sW}, 14336
        s_lshl_b32 s32, s61, 8
        s_add_u32 s2, s2, s32
        s_add_u32 s2, s2, {H5}
        """)
        self.selmat(8, 6)
        self.poll(f"buffer_load_dwordx4 v[32:35], v13, {WS}, s34 offen sc1\n"
                  f"buffer_load_dwordx4 v[36:39], v13, {WS}, s34 offen offset:2048 sc1\n"
                  f"buffer_load_dwordx4 v[40:43], v13, {WS}, s35 offen sc1", self.sent(range(32, 44), 4))
        self.stamp(8)
        for r in range(4):
            a(f"v_add_f32 v{40+r}, 1.0, v{40+r}")
        a(f"""
        v_cvt_pk_bf16_f32 v4, v40, v41
        v_cvt_pk_bf16_f32 v5, v42, v43
        v_cvt_pk_bf16_f32 v6, v36, v37
        v_cvt_pk_bf16_f32 v7, v38, v39
        ds_write_b64 v12, v[4:5] offset:2112
        ds_write_b64 v12, v[6:7] offset:4224
        v_lshlrev_b32 v40, 16, v4
        v_and_b32 v41, 0xffff0000, v4
        v_lshlrev_b32 v42, 16, v5
        v_and_b32 v43, 0xffff0000, v5
        v_lshlrev_b32 v36, 16, v16
        v_and_b32 v37, 0xffff0000, v16
        v_lshlrev_b32 v38, 16, v17
        v_and_b32 v39, 0xffff0000, v17
        """)
        so = ["s62", "s63", "s0", "s1"]
        if self.opt.get("mf", 1):
            self.mpoll([(f"buffer_load_dwordx4 {vr(48+4*j)}, v26, {WS}, {so[j]} offen sc1", self.sent([48 + 4 * j, 50 + 4 * j], 4 + j)) for j in range(4)], 4)
        else:
          self.poll("\n".join(f"buffer_load_dwordx4 {vr(48+4*j)}, v26, {WS}, {so[j]} offen sc1" for j in range(4)),
                  self.sent(range(48, 64, 2), 4), self.opt.get("dF", 1))
        self.stamp(9)
        for j in range(4):
            c = "0" if j == 0 else "v[44:47]"
            a(f"v_mfma_f32_16x16x32_bf16 v[44:47], v[20:23], {vr(48+4*j)}, {c}")
        a(f"""
        v_pk_fma_f32 v[36:37], v[32:33], v[44:45], v[36:37]
        v_pk_fma_f32 v[38:39], v[34:35], v[46:47], v[38:39]
        v_pk_mul_f32 v[40:41], v[40:41], v[36:37]
        v_pk_mul_f32 v[42:43], v[42:43], v[38:39]
        v_cvt_pk_bf16_f32 v4, v40, v41
        v_cvt_pk_bf16_f32 v5, v42, v43
        ds_write_b64 v12, v[4:5]
        v_pk_add_f32 v[6:7], v[36:37], v[38:39]
        v_pk_mul_f32 v[8:9], v[36:37], v[36:37]
        v_pk_fma_f32 v[8:9], v[38:39], v[38:39], v[8:9]
        v_add_f32 v6, v6, v7
        v_add_f32 v7, v8, v9
        ds_write_b64 v14, v[6:7]
        s_waitcnt lgkmcnt(0)
        s_barrier
        ds_read_b128 v[32:35], v15
        ds_read_b128 v[36:39], v15 offset:512
        """)
        d = lambda c: [f"v_add_f32_dpp v{r}, v{r}, v{r} {c} row_mask:0xf bank_mask:0xf" for r in (32, 33)] + ["s_nop 0"]
        fill = ["v_pk_add_f32 v[32:33], v[32:33], v[34:35]", "v_pk_add_f32 v[36:37], v[36:37], v[38:39]",
                "v_pk_add_f32 v[32:33], v[32:33], v[36:37]"]
        for c in ("quad_perm:[1,0,3,2]", "quad_perm:[2,3,0,1]", "row_half_mirror", "row_mirror"):
            fill += d(c)
        fill += ["v_mov_b32 v34, v32", "v_mov_b32 v35, v33", "s_nop 0",
                 "v_permlane32_swap_b32 v32, v34", "v_permlane32_swap_b32 v33, v35", "s_nop 0",
                 "v_pk_add_f32 v[32:33], v[32:33], v[34:35]", "v_mov_b32 v34, 0x3727c5ac",
                 "v_mul_f32 v32, 0x3b000000, v32", "v_fmac_f32 v34, 0x3b000000, v33",
                 "v_fma_f32 v34, -v32, v32, v34", "v_rsq_f32 v34, v34"]
        self.actgemm(11, fill)
        a(f"""
        s_mov_b32 exec_hi, 0
        v_pk_add_f32 v[104:105], v[104:105], v[108:109]
        v_add_f32 v106, v106, v110
        v_fma_f32 v104, -v32, v105, v104
        v_fma_f32 v104, v34, v104, v106
        v_max_f32 v104, 0, v104
        v_cvt_pk_bf16_f32 v104, v104, v104
        ds_write_b16 v27, v104
        s_mov_b32 exec_hi, -1
        s_waitcnt lgkmcnt(0)
        s_barrier
        ds_read_b128 v[32:35], v28
        ds_read_b128 v[36:39], v28 offset:64
        """)
        self.stamp(10)
        for s in range(2):
            a(f"s_waitcnt lgkmcnt({1-s})")
            for t in range(8):
                c = "0" if s == 0 else vr(128 + 4 * t)
                a(f"v_mfma_f32_16x16x32_bf16 {vr(128+4*t)}, {vr(32+4*s)}, {ar(64+(t*2+s)*4)}, {c}")
        a("s_mov_b32 exec_hi, 0")
        for i in range(4):
            a(f"v_cvt_pk_bf16_f32 v{40+i}, v{128+8*i}, v{132+8*i}")
        a(f"buffer_store_dwordx4 v[40:43], v29, {WS}, s2 offen sc1")
        self.stamp(11)
        a("s_branch FIN")

    def m2(self):
        a = self.a
        self.sect = "M"
        a(f"""
        v_add_u32 v11, {SL}, v5
        v_lshlrev_b32 v4, 2, v3
        v_lshl_add_u32 v12, v2, 13, v4
        s_lshl2_add_u32 s34, s61, {sW}
        s_lshl_b32 s34, s34, 6
        s_add_u32 s34, s34, {M2O}
        s_waitcnt lgkmcnt(0)
        """)
        self.actgemm(11)
        a(f"""
        s_mov_b32 exec_hi, 0
        v_add_f32 v104, v104, v108
        v_cvt_pk_bf16_f32 v104, v104, v104
        v_lshlrev_b32 v104, 16, v104
        buffer_store_dword v104, v12, {WS}, s34 offen sc1
        s_mov_b32 exec_hi, -1
        """)
        self.stamp(8)
        a(f"""
        s_cmp_lt_u32 s61, 24
        s_cbranch_scc1 FIN
        s_cmp_lg_u32 {sW}, 0
        s_cbranch_scc1 FIN
        s_sub_u32 s61, s61, 24
        """)
        self.srd(R2, 4, 2048)
        self.srd(R3, 26, 2048)
        a(f"""
        v_bfe_u32 v4, v0, 3, 1
        v_and_b32 v5, 7, v0
        v_lshl_add_u32 v6, v5, 2, v2
        v_lshlrev_b32 v7, 2, v6
        v_lshl_add_u32 v7, v4, 10, v7
        s_lshl_b32 s33, s61, 7
        buffer_load_dword v16, v7, {R2}, s33 offen
        v_lshlrev_b32 v7, 3, v6
        v_lshl_add_u32 v11, v4, 13, v7
        v_lshl_add_u32 v7, v4, 8, v7
        v_add_u32 v12, {XF}, v7
        v_bfe_u32 v6, v0, 2, 1
        v_lshl_add_u32 v6, v6, 2, v2
        v_and_b32 v7, 3, v0
        v_lshl_add_u32 v6, v6, 3, v7
        v_lshlrev_b32 v8, 2, v6
        v_lshl_add_u32 v13, v4, 13, v8
        v_lshl_add_u32 v8, v4, 8, v8
        v_add_u32 v14, {XF}, v8
        v_lshlrev_b32 v8, 1, v6
        v_lshl_add_u32 v15, v4, 10, v8
        v_lshrrev_b32 v8, 1, v5
        v_lshl_add_u32 v8, v2, 5, v8
        v_lshl_add_u32 v8, v8, {2 - self.opt.get("h4c", 1)}, v4
        v_and_b32 v26, 1, v0
        v_lshl_add_u32 v8, v8, 1, v26
        v_lshlrev_b32 v26, 4, v8
        s_lshl_b32 s34, s61, 8
        s_add_u32 s34, s34, {M2O}
        s_add_u32 s35, s34, 6144
        s_and_b32 s62, {sXCD}, {self.opt.get("r4", 1) - 1}
        s_lshl_b32 s62, s62, 13
        s_add_u32 s62, s62, s33
        s_lshl_b32 s62, s62, {2 - self.opt.get("h4c", 1)}
        s_add_u32 s62, s62, {H4}
        s_add_u32 s63, s62, {16384 >> self.opt.get("h4c", 1)}
        s_mul_i32 s0, s61, 7168
        s_add_u32 s0, s0, {H5}
        s_add_u32 s1, s0, 4096
        v_bfe_u32 v8, v0, 2, 2
        v_and_b32 v6, 1, v0
        v_lshl_add_u32 v8, v8, 1, v6
        v_bfe_u32 v6, v0, 1, 1
        """)
        self.selmat(8, 6)
        self.poll(f"buffer_load_dwordx2 v[32:33], v11, {WS}, s34 offen sc1\n"
                  f"buffer_load_dword v34, v13, {WS}, s35 offen sc1\n"
                  f"buffer_load_dword v35, v13, {WS}, s35 offen offset:16 sc1", self.sent(range(32, 36), 4))
        a("v_lshlrev_b32 v36, 16, v16\nv_and_b32 v37, 0xffff0000, v16")
        if self.opt.get("mf", 1):
            self.mpoll([(f"buffer_load_dwordx4 {vr(48+4*j)}, v26, {WS}, s{62+j} offen sc1", self.sent([48 + 4 * j, 50 + 4 * j], 4 + j)) for j in range(2)], 4)
        else:
          self.poll(f"buffer_load_dwordx4 v[48:51], v26, {WS}, s62 offen sc1\n"
                  f"buffer_load_dwordx4 v[52:55], v26, {WS}, s63 offen sc1", self.sent(range(48, 56, 2), 4))
        self.stamp(9)
        a(f"""
        v_mfma_f32_16x16x32_bf16 v[44:47], v[20:23], v[48:51], 0
        v_mfma_f32_16x16x32_bf16 v[44:47], v[20:23], v[52:55], v[44:47]
        v_pk_fma_f32 v[36:37], v[32:33], v[44:45], v[36:37]
        ds_write_b64 v12, v[36:37]
        s_waitcnt lgkmcnt(0)
        ds_read_b32 v36, v14
        ds_read_b32 v37, v14 offset:16
        s_cmp_lg_u32 s61, 0
        s_cbranch_scc1 W_NOGEN
        s_mov_b64 exec, 1
        buffer_store_dword v118, v0, {WS}, 0 offen sc1
        s_mov_b64 exec, -1
        W_NOGEN:
        """)
        if self.opt.get("m5", 0):
            self.mpoll([(f"buffer_load_dwordx4 {vr(48+4*j)}, v1, {WS}, {'s0' if j < 4 else 's1'} offen offset:{(j&3)*1024} sc1", self.sent([48 + 4 * j], 4)) for j in range(7)], 4)
        else:
          self.poll("\n".join(f"buffer_load_dwordx4 {vr(48+4*j)}, v1, {WS}, {'s0' if j < 4 else 's1'} offen offset:{(j&3)*1024} sc1" for j in range(7)),
                  self.sent(range(48, 76), 4), self.opt.get("d5", 3))
        self.stamp(10)
        for j in range(7):
            c = "0" if j < 2 else vr(40 + 4 * (j & 1))
            a(f"v_mfma_f32_16x16x32_bf16 {vr(40+4*(j&1))}, v[20:23], {vr(48+4*j)}, {c}")
        a(f"""
        s_waitcnt lgkmcnt(0)
        v_pk_add_f32 v[40:41], v[40:41], v[44:45]
        v_pk_fma_f32 v[36:37], v[34:35], v[40:41], v[36:37]
        v_cvt_pk_bf16_f32 v36, v36, v37
        buffer_store_short v36, v15, {R3}, s33 offen
        buffer_store_short_d16_hi v36, v15, {R3}, s33 offen offset:8
        """)
        self.stamp(11)

    def fin(self):
        a = self.a
        a("FIN:")
        if self.diag:
            a("s_mov_b64 exec, -1\ns_waitcnt vmcnt(0)")
            self.stamp(15)
            a(f"""
            s_waitcnt lgkmcnt(0)
            s_lshl2_add_u32 s32, s101, {sW}
            s_lshl_b32 s32, s32, 6
            s_add_u32 s32, s32, {STAMP}
            """)
            for i in range(16):
                a(f"v_mov_b32 v{16+i}, s{64+2*i}")
            a("s_mov_b64 exec, 1")
            for i in range(4):
                a(f"buffer_store_dwordx4 {vr(16+4*i)}, v0, {WS}, s32 offen offset:{16*i}")
        if self.probe:
            wg = self.opt.get("probewg")
            if wg is not None:
                a(f"s_cmp_lg_u32 s101, {wg}\ns_cbranch_scc1 EXIT")
            a(f"""
            s_waitcnt lgkmcnt(0)
            s_cmp_eq_u64 s[64:65], 0
            s_cbranch_scc1 EXIT
            s_add_u32 s32, s64, {self.opt.get("spin", 4000)}
            PROBE:
            s_memrealtime s[34:35]
            s_waitcnt lgkmcnt(0)
            s_sub_u32 s33, s34, s32
            s_cmp_lt_i32 s33, 0
            s_cbranch_scc1 PROBE
            """)
        a("EXIT:")

    def build(self):
        if self.diag:
            self.a("s_mov_b32 s101, s2")
        self.entry()
        self.arole()
        self.wrole()
        self.fin()
        return wrap(pad(self.a.text()), 256, 256, 163840)


if __name__ == "__main__":
    out = sys.argv[1]
    opts = dict(kv.split("=") for kv in sys.argv[2:])
    opts = {k: (int(v) if v.lstrip('-').isdigit() else v) for k, v in opts.items()}
    open(out, "w").write(G(**opts).build())
```
